```python
import torch

def _softmax(x, axis=-1):
    return torch.softmax(x, dim=axis)
def _gelu(x):
    return torch.nn.functional.gelu(x, approximate="tanh")
def _silu(x):
    return torch.nn.functional.silu(x)
def _sigmoid(x):
    return torch.sigmoid(x)
def _layernorm(x, axis=-1, eps=1e-5):
    m = x.mean(dim=axis, keepdim=True)
    v = x.var(dim=axis, keepdim=True, unbiased=False)
    return (x - m) / torch.sqrt(v + eps)
def _scatter_add(tgt, idx, src, axis=0):
    return tgt.clone().index_add_(axis, idx, src)
def _segment_sum(src, seg, n):
    out = torch.zeros((n,) + src.shape[1:], dtype=src.dtype)
    return out.index_add_(0, seg, src)
def _pad(x, pw):
    flat = tuple(v for pair in reversed(pw) for v in pair)
    return torch.nn.functional.pad(x, flat)

kernel_name = 'sequential_preLN__softmax_full_mha__geglu_ffn__prompt'

def setup_inputs():

    _w = (lambda a: (lambda t: t.to(torch.bfloat16) if t.is_floating_point() else t)(torch.as_tensor(a)))
    def _A_setup():
        B, S, D = 1, 2048, 448
        return {
            "x": _w((lambda *s: torch.randn(*s, dtype=torch.bfloat16) * 0.05)(B, S, D)),
            "wqkv": _w((lambda *s: torch.randn(*s, dtype=torch.bfloat16) * 0.05)(D, 3 * D)),
            "wo": _w((lambda *s: torch.randn(*s, dtype=torch.bfloat16) * 0.05)(D, D)),
        }
    _A_in = _A_setup()

    def _B_setup():
        B, S, D, F = 1, 2048, 448, 1792
        return {
            "x": _w((lambda *s: torch.randn(*s, dtype=torch.bfloat16) * 0.05)(B, S, D)),
            "w_gate": _w((lambda *s: torch.randn(*s, dtype=torch.bfloat16) * 0.05)(D, F)),
            "w_up": _w((lambda *s: torch.randn(*s, dtype=torch.bfloat16) * 0.05)(D, F)),
            "w_down": _w((lambda *s: torch.randn(*s, dtype=torch.bfloat16) * 0.05)(F, D)),
        }
    _B_in = _B_setup()

    return {
        "A_x": _A_in["x"],
        "A_wqkv": _A_in["wqkv"],
        "A_wo": _A_in["wo"],
        "B_x": _B_in["x"],
        "B_w_gate": _B_in["w_gate"],
        "B_w_up": _B_in["w_up"],
        "B_w_down": _B_in["w_down"],
    }

def reference(A_x, A_wqkv, A_wo, B_x, B_w_gate, B_w_up, B_w_down):
    def _A_ref(x, wqkv, wo):
        B, S, D = x.shape
        H = 16; Dh = D // H
        qkv = (lambda x, *d: x.permute(*d))((x @ wqkv).reshape(B, S, 3, H, Dh), 2, 0, 3, 1, 4)
        q, k, v = qkv[0], qkv[1], qkv[2]
        scale = Dh ** -0.5
        scores = torch.einsum("bhqd,bhkd->bhqk", q, k) * scale
        p = _softmax(scores, axis=-1)
        o = torch.einsum("bhqk,bhkd->bhqd", p, v)
        return (lambda x, *d: x.permute(*d))(o, 0, 2, 1, 3).reshape(B, S, D) @ wo

    def _B_ref(x, w_gate, w_up, w_down):
        return (_gelu(x @ w_gate) * (x @ w_up)) @ w_down

    x = A_x
    h = x + _A_ref(_layernorm(x, axis=-1), A_wqkv, A_wo)
    h2 = h + _B_ref(_layernorm(h, axis=-1), B_w_gate, B_w_up, B_w_down)
    return h2
```

```python
import math, sys

NAME = "sequential_preLN__softmax_full_mha__geglu_ffn__prompt"
S, D, H, DH, F = 2048, 448, 16, 28, 1792
WS_Q, WS_K, WS_V, WS_O, WS_H, WS_ACT = 0x0, 0x200000, 0x400000, 0x600000, 0x800000, 0xA00000
WS_SIZE = 268435456


def f2u(x):
    import struct
    return struct.unpack("<I", struct.pack("<f", x))[0]


class K:
    def __init__(s, name):
        s.name = name
        s.L = []
        s.nlab = 0

    def e(s, x):
        s.L.append("    " + x)

    def lab(s, l):
        s.L.append(l + ":")

    def newlab(s, p="L"):
        s.nlab += 1
        return f"{s.name}_{p}{s.nlab}"

    def nop(s, n):
        while n > 0:
            k = min(n, 16)
            s.e(f"s_nop {k-1}")
            n -= k

    def srd(s, sd, sb, off, nbytes):
        if off:
            s.e(f"s_add_u32 s{sd}, s{sb}, {hex(off)}")
            s.e(f"s_addc_u32 s{sd+1}, s{sb+1}, 0")
        else:
            s.e(f"s_mov_b32 s{sd}, s{sb}")
            s.e(f"s_mov_b32 s{sd+1}, s{sb+1}")
        s.e(f"s_mov_b32 s{sd+2}, {hex(nbytes)}")
        s.e(f"s_mov_b32 s{sd+3}, 0x00020000")

    def mfma(s, d, a, b, c):
        cs = f"v[{c}:{c+15}]" if isinstance(c, int) else c
        s.e(f"v_mfma_f32_32x32x16_bf16 v[{d}:{d+15}], v[{a}:{a+3}], v[{b}:{b+3}], {cs}")


def vr(a, n):
    return f"v[{a}:{a+n-1}]"


VA = 64
VACC0 = 176
VACC1 = 192
VB = 208
VPF = 224
A_STRIDE = 912
A_WAVE = 32 * A_STRIDE
BBUF = 28672


def tmpl_prologue(k, nwg, a_arg, a_off, a_bytes):
    k.e(f"s_cmp_ge_u32 s2, {nwg}")
    k.e(f"s_cbranch_scc1 {k.name}_end")
    k.e(f"s_load_dwordx2 s[4:5], s[0:1], {a_arg}")
    k.e(f"s_load_dwordx2 s[28:29], s[0:1], 72")
    k.e("v_and_b32 v1, 63, v0")
    k.e("v_lshrrev_b32 v2, 6, v0")
    k.e("s_nop 0")
    k.e("v_readfirstlane_b32 s3, v2")


def b_loads(k, srd, colbytes_sreg_or_imm, stride):
    if isinstance(colbytes_sreg_or_imm, str):
        k.e(f"s_mov_b32 s40, {colbytes_sreg_or_imm}")
    else:
        k.e(f"s_mov_b32 s40, {hex(colbytes_sreg_or_imm)}")
    for i in range(7):
        k.e(f"buffer_load_dwordx4 {vr(VPF+4*i,4)}, v3, s[{srd}:{srd+3}], s40 offen")
        if i < 6:
            k.e(f"s_add_u32 s40, s40, {hex(64*stride)}")


def b_writes(k, buf):
    for i in range(7):
        k.e(f"ds_write_b128 v4, {vr(VPF+4*i,4)} offset:{buf*BBUF + i*4096}")


def a_stage(k, do_ln):
    k.e("v_lshlrev_b32 v5, 4, v1")
    for i in range(28):
        if i % 4 == 0:
            if i == 0:
                k.e("s_mov_b32 s42, s41")
            else:
                k.e("s_add_u32 s42, s42, 4096")
        k.e(f"buffer_load_dwordx4 {vr(VA+4*i,4)}, v5, s[8:11], s42 offen offset:{(i%4)*1024}")
    k.e(f"s_mul_i32 s43, s3, {A_WAVE}")
    k.e("s_movk_i32 s44, 2341")
    addr_regs = []
    for i in range(28):
        pass
    k.e("s_waitcnt vmcnt(0)")
    for i in range(28):
        k.e(f"v_add_u32 v7, {i*64}, v1")
        k.e("v_mul_u32_u24 v8, s44, v7")
        k.e("v_lshrrev_b32 v8, 17, v8")
        k.e("v_add_lshl_u32 v7, v7, v8, 4")
        k.e("v_add_u32 v7, s43, v7")
        k.e(f"ds_write_b128 v7, {vr(VA+4*i,4)}")
    k.e("v_and_b32 v7, 31, v1")
    k.e(f"v_mul_u32_u24 v7, {A_STRIDE}, v7")
    k.e("v_lshrrev_b32 v8, 5, v1")
    k.e("v_lshl_add_u32 v7, v8, 4, v7")
    k.e("v_add_u32 v7, s43, v7")
    k.e("s_waitcnt lgkmcnt(0)")
    for s_ in range(28):
        k.e(f"ds_read_b128 {vr(VA+4*s_,4)}, v7 offset:{32*s_}")
    k.e("s_waitcnt lgkmcnt(0)")


def a_ln(k):
    k.e("s_mov_b32 s44, 0x3f803f80")
    for r in (8, 9, 10, 11):
        k.e(f"v_mov_b32 v{r}, 0")
    for r in range(112):
        k.e(f"v_dot2_f32_bf16 v{8+(r&1)}, v{VA+r}, s44, v{8+(r&1)}")
        k.e(f"v_dot2_f32_bf16 v{10+(r&1)}, v{VA+r}, v{VA+r}, v{10+(r&1)}")
    k.e("s_nop 1")
    k.e("v_add_f32 v8, v8, v9")
    k.e("v_add_f32 v10, v10, v11")
    k.e("s_nop 0")
    k.e("v_mov_b32 v9, v8")
    k.e("v_mov_b32 v11, v10")
    k.e("s_nop 1")
    k.e("v_permlane32_swap_b32 v8, v9")
    k.e("v_permlane32_swap_b32 v10, v11")
    k.e("s_nop 1")
    k.e("v_add_f32 v8, v8, v9")
    k.e("v_add_f32 v10, v10, v11")
    k.e(f"s_mov_b32 s44, {hex(f2u(1.0/448))}")
    k.e("v_mul_f32 v8, s44, v8")
    k.e("v_mul_f32 v10, s44, v10")
    k.e("v_fma_f32 v10, -v8, v8, v10")
    k.e("v_max_f32 v10, 0, v10")
    k.e(f"v_add_f32 v10, {hex(f2u(1e-5))}, v10")
    k.e("v_rsq_f32 v12, v10")
    k.e("s_nop 0")
    k.e("v_mov_b32 v13, v12")
    k.e("v_mul_f32 v14, v8, v12")
    k.e("v_sub_f32 v14, 0, v14")
    k.e("v_mov_b32 v15, v14")
    for r in range(112):
        t = 16 + 2 * (r & 1)
        k.e(f"v_lshlrev_b32 v{t}, 16, v{VA+r}")
        k.e(f"v_and_b32 v{t+1}, 0xffff0000, v{VA+r}")
        k.e(f"v_pk_fma_f32 v[{t}:{t+1}], v[{t}:{t+1}], v[12:13], v[14:15]")
        k.e(f"v_cvt_pk_bf16_f32 v{VA+r}, v{t}, v{t+1}")


def chunk_mfma(k, buf, acc, w_first):
    def rd(s_):
        b = VB + 4 * (s_ % 4)
        k.e(f"ds_read_b64_tr_b16 v[{b}:{b+1}], v21 offset:{buf*BBUF + 1024*s_}")
        k.e(f"ds_read_b64_tr_b16 v[{b+2}:{b+3}], v21 offset:{buf*BBUF + 1024*s_ + 256}")
    for s_ in range(3):
        rd(s_)
    for s_ in range(28):
        if s_ + 3 < 28:
            rd(s_ + 3)
            k.e("s_waitcnt lgkmcnt(6)")
        else:
            k.e(f"s_waitcnt lgkmcnt({2*(27-s_)})")
        b = VB + 4 * (s_ % 4)
        a = VA + 4 * s_
        c = "0" if s_ == 0 else acc
        if w_first:
            k.mfma(acc, b, a, c)
        else:
            k.mfma(acc, a, b, c)


def tr_addr(k):
    k.e("v_lshrrev_b32 v22, 5, v1")
    k.e("v_lshlrev_b32 v21, 9, v22")
    k.e("v_bfe_u32 v22, v1, 2, 2")
    k.e("v_lshl_add_u32 v21, v22, 6, v21")
    k.e("v_bfe_u32 v22, v1, 4, 1")
    k.e("v_lshl_add_u32 v21, v22, 5, v21")
    k.e("v_and_b32 v22, 3, v1")
    k.e("v_lshl_add_u32 v21, v22, 3, v21")


def b_thread_addr(k, stride):
    k.e("v_lshrrev_b32 v3, 2, v0")
    k.e(f"s_movk_i32 s44, {stride}" if stride < 32768 else f"s_mov_b32 s44, {stride}")
    k.e("v_mul_u32_u24 v3, s44, v3")
    k.e("v_and_b32 v4, 3, v0")
    k.e("v_lshl_add_u32 v3, v4, 4, v3")
    k.e("v_lshlrev_b32 v4, 4, v0")


def finish(k):
    k.lab(f"{k.name}_end")
    k.e("s_endpgm")


def gen_k1():
    k = K("k1_qkv_kernel")
    tmpl_prologue(k, 256, 0, 0, 0)
    k.e("s_load_dwordx2 s[6:7], s[0:1], 8")
    k.e("s_and_b32 s30, s2, 15")
    k.e("s_lshr_b32 s31, s2, 4")
    k.e("s_waitcnt lgkmcnt(0)")
    k.srd(8, 4, 0, S * D * 2)
    k.srd(12, 6, 0, D * 3 * D * 2)
    k.e("s_lshl_b32 s32, s31, 17")
    k.e("s_add_u32 s16, s28, s32")
    k.e("s_addc_u32 s17, s29, 0")
    k.e(f"s_mov_b32 s18, {hex(0x400000 + 0x20000)}")
    k.e("s_mov_b32 s19, 0x00020000")
    b_thread_addr(k, 2688)
    tr_addr(k)
    k.e("s_mul_i32 s33, s31, 56")
    b_loads(k, 12, "s33", 2688)
    k.e("s_lshl_b32 s41, s30, 2")
    k.e("s_add_u32 s41, s41, s3")
    k.e("s_lshl_b32 s34, s41, 5")
    k.e(f"s_mul_i32 s41, s41, {32*896}")
    a_stage(k, True)
    k.e("s_barrier")
    b_writes(k, 0)
    k.e("s_add_u32 s35, s33, 896")
    b_loads(k, 12, "s35", 2688)
    a_ln(k)
    k.e("v_and_b32 v25, 31, v1")
    k.e("v_lshrrev_b32 v26, 5, v1")
    k.e("v_add_u32 v23, s34, v25")
    k.e("v_lshlrev_b32 v23, 6, v23")
    k.e("v_lshl_add_u32 v23, v26, 3, v23")
    k.e("v_lshlrev_b32 v24, 12, v25")
    k.e("v_lshl_add_u32 v24, v26, 4, v24")
    k.e("s_lshl_b32 s36, s34, 1")
    k.e("v_add_u32 v24, s36, v24")
    k.e("s_waitcnt lgkmcnt(0)")
    k.e("s_barrier")
    for c in range(3):
        chunk_mfma(k, c & 1, VACC0, w_first=(c < 2))
        if c < 2:
            k.e("s_waitcnt vmcnt(0)")
            b_writes(k, (c + 1) & 1)
            if c == 0:
                k.e("s_add_u32 s35, s33, 1792")
                b_loads(k, 12, "s35", 2688)
        k.nop(16)
        if c < 2:
            k.e("v_cmp_gt_u32 vcc, 32, v1")
            k.e("s_nop 1")
            for r in range(12, 16):
                k.e(f"v_cndmask_b32 v{VACC0+r}, 0, v{VACC0+r}, vcc")
            for g in range(4):
                k.e(f"v_cvt_pk_bf16_f32 v{28+2*g}, v{VACC0+4*g}, v{VACC0+4*g+1}")
                k.e(f"v_cvt_pk_bf16_f32 v{29+2*g}, v{VACC0+4*g+2}, v{VACC0+4*g+3}")
            k.e(f"s_mov_b32 s37, {hex(c*0x200000)}")
            for g in range(4):
                k.e(f"buffer_store_dwordx2 v[{28+2*g}:{29+2*g}], v23, s[16:19], s37 offen offset:{16*g}")
        else:
            k.e("v_cmp_gt_u32 vcc, 28, v25")
            k.e("v_cmp_eq_u32 s[38:39], 28, v25")
            k.e("v_cndmask_b32 v27, 0, 1.0, s[38:39]")
            k.e("s_nop 1")
            for r in range(16):
                k.e(f"v_cndmask_b32 v{VACC0+r}, v27, v{VACC0+r}, vcc")
            for r in range(8):
                k.e(f"v_cvt_pk_bf16_f32 v{28+r}, v{VACC0+2*r}, v{VACC0+2*r+1}")
            k.e("s_mov_b32 s37, 0x400000")
            for G in range(2):
                k.e(f"buffer_store_dwordx4 v[{28+4*G}:{31+4*G}], v24, s[16:19], s37 offen offset:{32*G}")
        if c < 2:
            k.e("s_waitcnt lgkmcnt(0)")
            k.e("s_barrier")
    finish(k)
    return k


def gen_k2():
    k = K("k2_attn_kernel")
    VQ = 8
    VS = 64
    VO = 128
    VP = 144
    VKF = 176
    VVF = 192
    VPFK = 224
    VPFV = 232
    KB = 10240
    VBS = 8704
    BUF = KB + VBS
    k.e("s_cmp_ge_u32 s2, 256")
    k.e(f"s_cbranch_scc1 {k.name}_end")
    k.e("s_load_dwordx2 s[28:29], s[0:1], 72")
    k.e("v_and_b32 v1, 63, v0")
    k.e("v_lshrrev_b32 v2, 6, v0")
    k.e("s_and_b32 s30, s2, 15")
    k.e("s_lshr_b32 s31, s2, 4")
    k.e("v_readfirstlane_b32 s3, v2")
    k.e("s_lshl_b32 s32, s31, 17")
    k.e("s_waitcnt lgkmcnt(0)")
    k.e("s_add_u32 s8, s28, s32")
    k.e("s_addc_u32 s9, s29, 0")
    k.e(f"s_mov_b32 s10, {hex(0x400000 + 0x20000)}")
    k.e("s_mov_b32 s11, 0x00020000")
    k.srd(16, 28, WS_O, S * D * 2)
    k.e("s_lshl_b32 s34, s30, 2")
    k.e("s_add_u32 s34, s34, s3")
    k.e("s_lshl_b32 s34, s34, 5")
    k.e("v_and_b32 v25, 31, v1")
    k.e("v_lshrrev_b32 v26, 5, v1")
    k.e("v_add_u32 v3, s34, v25")
    k.e("v_lshlrev_b32 v3, 6, v3")
    k.e("v_lshl_add_u32 v3, v26, 4, v3")
    k.e("buffer_load_dwordx4 v[8:11], v3, s[8:11], 0 offen")
    k.e("buffer_load_dwordx4 v[12:15], v3, s[8:11], 0 offen offset:32")
    k.e("v_lshlrev_b32 v4, 4, v0")
    k.e("v_lshrrev_b32 v5, 2, v0")
    k.e("v_mul_u32_u24 v5, 80, v5")
    k.e("v_and_b32 v6, 3, v0")
    k.e("v_lshl_add_u32 v5, v6, 4, v5")
    k.e("v_lshrrev_b32 v6, 4, v0")
    k.e("v_and_b32 v7, 15, v0")
    k.e("v_lshlrev_b32 v16, 12, v6")
    k.e("v_lshl_add_u32 v16, v7, 4, v16")
    k.e("v_mul_u32_u24 v17, 272, v6")
    k.e("v_lshl_add_u32 v17, v7, 4, v17")
    k.e(f"v_add_u32 v17, {KB}, v17")
    k.e("v_mul_u32_u24 v18, 80, v25")
    k.e("v_lshl_add_u32 v18, v26, 4, v18")
    k.e("v_mul_u32_u24 v19, 272, v25")
    k.e("v_lshl_add_u32 v19, v26, 4, v19")
    k.e(f"v_add_u32 v19, {KB}, v19")

    def g_loads(first=False):
        k.e(f"buffer_load_dwordx4 {vr(VPFK,4)}, v4, s[8:11], s35 offen")
        k.e(f"s_add_u32 s37, s35, 4096")
        k.e(f"buffer_load_dwordx4 {vr(VPFK+4,4)}, v4, s[8:11], s37 offen")
        k.e(f"buffer_load_dwordx4 {vr(VPFV,4)}, v16, s[8:11], s36 offen")
        k.e(f"s_add_u32 s37, s36, 0x10000")
        k.e(f"buffer_load_dwordx4 {vr(VPFV+4,4)}, v16, s[8:11], s37 offen")
        k.e("s_add_u32 s35, s35, 8192")
        k.e("s_add_u32 s36, s36, 256")

    def l_writes(buf):
        k.e(f"ds_write_b128 v5, {vr(VPFK,4)} offset:{buf*BUF}")
        k.e(f"ds_write_b128 v5, {vr(VPFK+4,4)} offset:{buf*BUF + 64*80}")
        k.e(f"ds_write_b128 v17, {vr(VPFV,4)} offset:{buf*BUF}")
        k.e(f"ds_write_b128 v17, {vr(VPFV+4,4)} offset:{buf*BUF + 16*272}")

    k.e("s_mov_b32 s35, 0x200000")
    k.e("s_mov_b32 s36, 0x400000")
    g_loads()
    for r in range(16):
        k.e(f"v_mov_b32 v{VO+r}, 0")
    k.e("v_mov_b32 v20, 0xff800000")
    cs = DH ** -0.5 * math.log2(math.e)
    k.e(f"s_mov_b32 s38, {hex(f2u(cs))}")
    k.e("s_waitcnt vmcnt(0)")
    l_writes(0)
    g_loads()
    k.e("s_waitcnt lgkmcnt(0)")
    k.e("s_barrier")
    k.e("s_mov_b32 s39, 0")
    loop = k.newlab("loop")
    k.lab(loop)
    for buf in range(2):
        for kt in range(4):
            kf = VKF + 8 * (kt & 1)
            k.e(f"ds_read_b128 {vr(kf,4)}, v18 offset:{buf*BUF + kt*32*80}")
            k.e(f"ds_read_b128 {vr(kf+4,4)}, v18 offset:{buf*BUF + kt*32*80 + 32}")
            if kt >= 1:
                pk = VKF + 8 * ((kt - 1) & 1)
                k.e("s_waitcnt lgkmcnt(2)")
                k.mfma(VS + 16 * (kt - 1), pk, VQ, "0")
                k.mfma(VS + 16 * (kt - 1), pk + 4, VQ + 4, VS + 16 * (kt - 1))
        k.e("s_waitcnt lgkmcnt(0)")
        k.mfma(VS + 48, VKF + 8, VQ, "0")
        k.mfma(VS + 48, VKF + 12, VQ + 4, VS + 48)
        for kt in range(4):
            for G in range(2):
                k.e(f"ds_read_b128 {vr(VVF+4*(2*kt+G),4)}, v19 offset:{buf*BUF + (kt*32+16*G)*2}")
        k.nop(12)
        k.e(f"v_max3_f32 v21, v{VS}, v{VS+1}, v{VS+2}")
        for i in range(3, 63, 2):
            k.e(f"v_max3_f32 v21, v21, v{VS+i}, v{VS+i+1}")
        k.e(f"v_max_f32 v21, v21, v{VS+63}")
        k.e("s_nop 0")
        k.e("v_mov_b32 v22, v21")
        k.e("s_nop 1")
        k.e("v_permlane32_swap_b32 v21, v22")
        k.e("s_nop 1")
        k.e("v_max3_f32 v21, v21, v22, v20")
        k.e("v_sub_f32 v22, v20, v21")
        k.e("v_mul_f32 v22, s38, v22")
        k.e("v_exp_f32 v22, v22")
        k.e("v_mov_b32 v20, v21")
        k.e("v_mul_f32 v23, s38, v21")
        k.e("v_sub_f32 v23, 0, v23")
        for i in range(64):
            k.e(f"v_fma_f32 v{VS+i}, v{VS+i}, s38, v23")
        for i in range(64):
            k.e(f"v_exp_f32 v{VS+i}, v{VS+i}")
        for r in range(16):
            k.e(f"v_mul_f32 v{VO+r}, v{VO+r}, v22")
        for i in range(32):
            k.e(f"v_cvt_pk_bf16_f32 v{VP+i}, v{VS+2*i}, v{VS+2*i+1}")
        k.e("s_waitcnt lgkmcnt(0)")
        k.e("s_nop 1")
        for kt in range(4):
            for G in range(2):
                j = 2 * kt + G
                k.mfma(VO, VVF + 4 * j, VP + 4 * j, VO)
        k.e("s_waitcnt vmcnt(0)")
        l_writes(buf ^ 1)
        skip = k.newlab("skip")
        k.e(f"s_cmp_ge_u32 s35, {hex(0x200000 + 16*8192)}")
        k.e(f"s_cbranch_scc1 {skip}")
        g_loads()
        k.lab(skip)
        k.e("s_waitcnt lgkmcnt(0)")
        k.e("s_barrier")
    k.e("s_add_u32 s39, s39, 1")
    k.e("s_cmp_lt_u32 s39, 8")
    k.e(f"s_cbranch_scc1 {loop}")
    k.nop(16)
    k.e(f"v_mov_b32 v21, v{VO+12}")
    k.e(f"v_mov_b32 v22, v{VO+12}")
    k.e("s_nop 1")
    k.e("v_permlane32_swap_b32 v21, v22")
    k.e("s_nop 1")
    k.e("v_rcp_f32 v22, v22")
    k.e("s_nop 0")
    for r in range(16):
        k.e(f"v_mul_f32 v{VO+r}, v{VO+r}, v22")
    for g in range(4):
        k.e(f"v_cvt_pk_bf16_f32 v{28+2*g}, v{VO+4*g}, v{VO+4*g+1}")
        k.e(f"v_cvt_pk_bf16_f32 v{29+2*g}, v{VO+4*g+2}, v{VO+4*g+3}")
    k.e("v_add_u32 v3, s34, v25")
    k.e("s_movk_i32 s40, 896")
    k.e("v_mul_u32_u24 v3, s40, v3")
    k.e("v_lshl_add_u32 v3, v26, 3, v3")
    k.e("s_mul_i32 s40, s31, 56")
    for g in range(3):
        k.e(f"buffer_store_dwordx2 v[{28+2*g}:{29+2*g}], v3, s[16:19], s40 offen offset:{16*g}")
    k.e("v_cmp_gt_u32 vcc, 32, v1")
    k.e("s_and_saveexec_b64 s[42:43], vcc")
    k.e(f"buffer_store_dwordx2 v[34:35], v3, s[16:19], s40 offen offset:48")
    finish(k)
    return k


def gen_k3():
    k = K("k3_wo_kernel")
    tmpl_prologue(k, 224, 72, 0, 0)
    k.e("s_load_dwordx2 s[6:7], s[0:1], 16")
    k.e("s_load_dwordx2 s[20:21], s[0:1], 0")
    k.e("s_and_b32 s30, s2, 15")
    k.e("s_lshr_b32 s31, s2, 4")
    k.e("s_waitcnt lgkmcnt(0)")
    k.srd(8, 4, WS_O, S * D * 2)
    k.srd(12, 6, 0, D * D * 2)
    k.srd(16, 28, WS_H, S * D * 2)
    k.srd(24, 20, 0, S * D * 2)
    b_thread_addr(k, 896)
    tr_addr(k)
    k.e("s_lshl_b32 s33, s31, 6")
    b_loads(k, 12, "s33", 896)
    k.e("s_lshl_b32 s41, s30, 2")
    k.e("s_add_u32 s41, s41, s3")
    k.e("s_lshl_b32 s34, s41, 5")
    k.e(f"s_mul_i32 s41, s41, {32*896}")
    a_stage(k, False)
    k.e("s_barrier")
    b_writes(k, 0)
    k.e("v_and_b32 v25, 31, v1")
    k.e("v_lshrrev_b32 v26, 5, v1")
    k.e("v_add_u32 v23, s34, v25")
    k.e("s_movk_i32 s40, 896")
    k.e("v_mul_u32_u24 v23, s40, v23")
    k.e("v_lshl_add_u32 v23, v26, 3, v23")
    for g in range(4):
        k.e(f"buffer_load_dwordx2 v[{28+2*g}:{29+2*g}], v23, s[24:27], s33 offen offset:{16*g}")
    k.e("s_waitcnt lgkmcnt(0)")
    k.e("s_barrier")
    chunk_mfma(k, 0, VACC0, True)
    k.nop(16)
    k.e("s_waitcnt vmcnt(0)")
    for g in range(4):
        for h in range(2):
            src = 28 + 2 * g + h
            k.e(f"v_lshlrev_b32 v36, 16, v{src}")
            k.e(f"v_and_b32 v37, 0xffff0000, v{src}")
            k.e(f"v_add_f32 v36, v36, v{VACC0+4*g+2*h}")
            k.e(f"v_add_f32 v37, v37, v{VACC0+4*g+2*h+1}")
            k.e(f"v_cvt_pk_bf16_f32 v{src}, v36, v37")
    for g in range(4):
        k.e(f"buffer_store_dwordx2 v[{28+2*g}:{29+2*g}], v23, s[16:19], s33 offen offset:{16*g}")
    finish(k)
    return k


def gen_k4():
    k = K("k4_ffn1_kernel")
    tmpl_prologue(k, 224, 72, 0, 0)
    k.e("s_load_dwordx2 s[6:7], s[0:1], 32")
    k.e("s_load_dwordx2 s[20:21], s[0:1], 40")
    k.e("s_and_b32 s30, s2, 15")
    k.e("s_lshr_b32 s31, s2, 4")
    k.e("s_waitcnt lgkmcnt(0)")
    k.srd(8, 4, WS_H, S * D * 2)
    k.srd(12, 6, 0, D * F * 2)
    k.srd(24, 20, 0, D * F * 2)
    k.srd(16, 28, WS_ACT, S * F * 2)
    b_thread_addr(k, 3584)
    tr_addr(k)
    k.e("s_lshl_b32 s33, s31, 8")
    b_loads(k, 12, "s33", 3584)
    k.e("s_lshl_b32 s41, s30, 2")
    k.e("s_add_u32 s41, s41, s3")
    k.e("s_lshl_b32 s34, s41, 5")
    k.e(f"s_mul_i32 s41, s41, {32*896}")
    a_stage(k, True)
    k.e("s_barrier")
    b_writes(k, 0)
    b_loads(k, 24, "s33", 3584)
    a_ln(k)
    k.e("v_and_b32 v25, 31, v1")
    k.e("v_lshrrev_b32 v26, 5, v1")
    k.e("v_add_u32 v23, s34, v25")
    k.e("s_movk_i32 s40, 3584")
    k.e("v_mul_u32_u24 v23, s40, v23")
    k.e("v_lshl_add_u32 v23, v26, 3, v23")
    c0 = -2.0 * math.log2(math.e) * math.sqrt(2.0 / math.pi)
    c1 = c0 * 0.044715
    k.e(f"s_mov_b32 s45, {hex(f2u(c0))}")
    k.e(f"s_mov_b32 s46, {hex(f2u(c1))}")
    k.e("s_waitcnt lgkmcnt(0)")
    k.e("s_barrier")
    nch = 8
    for c in range(nch):
        acc = VACC0 if c % 2 == 0 else VACC1
        chunk_mfma(k, c & 1, acc, True)
        if c + 1 < nch:
            k.e("s_waitcnt vmcnt(0)")
            b_writes(k, (c + 1) & 1)
            if c + 2 < nch:
                j = (c + 2) // 2
                k.e(f"s_add_u32 s35, s33, {64*j}")
                b_loads(k, 12 if (c + 2) % 2 == 0 else 24, "s35", 3584)
        if c % 2 == 1:
            k.nop(16)
            for r in range(16):
                g_, u_ = VACC0 + r, VACC1 + r
                t = 36 + (r & 3)
                k.e(f"v_mul_f32 v{t}, v{g_}, v{g_}")
                k.e(f"v_fma_f32 v{t}, v{t}, s46, v47")
                k.e(f"v_mul_f32 v{t}, v{t}, v{g_}")
                k.e(f"v_exp_f32 v{t}, v{t}")
                k.e("s_nop 0")
                k.e(f"v_add_f32 v{t}, 1.0, v{t}")
                k.e(f"v_rcp_f32 v{t}, v{t}")
                k.e("s_nop 0")
                k.e(f"v_mul_f32 v{t}, v{t}, v{g_}")
                k.e(f"v_mul_f32 v{g_}, v{t}, v{u_}")
            for g in range(4):
                k.e(f"v_cvt_pk_bf16_f32 v{28+2*g}, v{VACC0+4*g}, v{VACC0+4*g+1}")
                k.e(f"v_cvt_pk_bf16_f32 v{29+2*g}, v{VACC0+4*g+2}, v{VACC0+4*g+3}")
            k.e(f"s_add_u32 s37, s33, {64*(c//2)}")
            for g in range(4):
                k.e(f"buffer_store_dwordx2 v[{28+2*g}:{29+2*g}], v23, s[16:19], s37 offen offset:{16*g}")
        if c + 1 < nch:
            k.e("s_waitcnt lgkmcnt(0)")
            k.e("s_barrier")
        if c == 0:
            k.e("v_mov_b32 v47, s45")
    finish(k)
    return k


def gen_k5():
    k = K("k5_down_kernel")
    AST = 464
    ABUF = 64 * AST
    BB = 2 * 224 * 64
    BUF = ABUF + BB
    VPA = 64
    VPB = 96
    VAF = 128
    VBF = 144
    ACC = 160
    k.e("s_cmp_ge_u32 s2, 224")
    k.e(f"s_cbranch_scc1 {k.name}_end")
    k.e("s_load_dwordx2 s[28:29], s[0:1], 72")
    k.e("s_load_dwordx2 s[6:7], s[0:1], 48")
    k.e("s_load_dwordx2 s[20:21], s[0:1], 56")
    k.e("v_and_b32 v1, 63, v0")
    k.e("v_lshrrev_b32 v2, 6, v0")
    k.e("s_and_b32 s30, s2, 31")
    k.e("s_lshr_b32 s31, s2, 5")
    k.e("v_readfirstlane_b32 s3, v2")
    k.e("s_waitcnt lgkmcnt(0)")
    k.srd(8, 28, WS_ACT, S * F * 2)
    k.srd(12, 6, 0, F * D * 2)
    k.srd(16, 20, 0, S * D * 2)
    k.srd(24, 28, WS_H, S * D * 2)
    k.e("s_movk_i32 s44, 2341")
    k.e("s_movk_i32 s44, 4682")
    for i in range(7):
        k.e(f"v_add_u32 v7, {i*256}, v0")
        k.e("v_mul_u32_u24 v8, s44, v7")
        k.e("v_lshrrev_b32 v8, 17, v8")
        k.e("v_mul_u32_u24 v9, 28, v8")
        k.e("v_sub_u32 v9, v7, v9")
        k.e("v_mul_u32_u24 v10, s45, v8") if False else None
        k.e(f"v_lshlrev_b32 v10, 4, v9")
        k.e(f"s_movk_i32 s45, 3584")
        k.e(f"v_mad_u32_u24 v{32+i}, v8, s45, v10")
        k.e(f"s_movk_i32 s45, {AST}")
        k.e(f"v_mad_u32_u24 v{40+i}, v8, s45, v10")
    k.e("v_lshrrev_b32 v7, 3, v0")
    k.e("v_and_b32 v8, 7, v0")
    k.e("s_movk_i32 s45, 896")
    k.e("v_mul_u32_u24 v48, s45, v7")
    k.e("v_lshl_add_u32 v48, v8, 4, v48")
    k.e("v_lshlrev_b32 v49, 6, v7")
    k.e("v_and_b32 v9, 3, v8")
    k.e("v_lshl_add_u32 v49, v9, 4, v49")
    k.e("v_lshrrev_b32 v9, 2, v8")
    k.e(f"s_movk_i32 s45, {224*64}")
    k.e("v_mad_u32_u24 v49, v9, s45, v49")
    k.e(f"v_add_u32 v49, {ABUF}, v49")
    k.e(f"s_mul_i32 s35, s30, {64*3584}")
    k.e("s_lshl_b32 s36, s31, 7")

    def g_loads():
        for i in range(7):
            k.e(f"buffer_load_dwordx4 {vr(VPA+4*i,4)}, v{32+i}, s[8:11], s35 offen")
        k.e("s_mov_b32 s37, s36")
        for i in range(7):
            k.e(f"buffer_load_dwordx4 {vr(VPB+4*i,4)}, v48, s[12:15], s37 offen")
            if i < 6:
                k.e(f"s_add_u32 s37, s37, {32*896}")
        k.e("s_add_u32 s35, s35, 448")
        k.e(f"s_add_u32 s36, s36, {224*896}")

    def l_writes(buf):
        for i in range(7):
            k.e(f"ds_write_b128 v{(50 if buf else 40)+i}, {vr(VPA+4*i,4)}")
        for i in range(7):
            k.e(f"ds_write_b128 v{57 if buf else 49}, {vr(VPB+4*i,4)} offset:{i*32*64}")

    g_loads()
    for i in range(7):
        k.e(f"v_add_u32 v{50+i}, {BUF}, v{40+i}")
    k.e(f"v_add_u32 v57, {BUF}, v49")
    tr_addr(k)
    k.e("s_and_b32 s38, s3, 1")
    k.e(f"s_mul_i32 s38, s38, {224*64}")
    k.e(f"s_add_u32 s38, s38, {ABUF}")
    k.e("v_add_u32 v21, s38, v21")
    k.e("s_lshr_b32 s39, s3, 1")
    k.e("v_and_b32 v25, 31, v1")
    k.e("v_lshrrev_b32 v26, 5, v1")
    k.e("s_lshl_b32 s40, s39, 5")
    k.e("v_add_u32 v20, s40, v25")
    k.e(f"s_movk_i32 s45, {AST}")
    k.e("v_mul_u32_u24 v20, s45, v20")
    k.e("v_lshl_add_u32 v20, v26, 4, v20")
    k.e(f"v_add_u32 v58, {BUF}, v20")
    k.e(f"v_add_u32 v59, {BUF}, v21")
    k.e("s_waitcnt vmcnt(0)")
    l_writes(0)
    g_loads()
    k.e("s_waitcnt lgkmcnt(0)")
    k.e("s_barrier")
    for c in range(8):
        buf = c & 1

        def rd(s_):
            a = VAF + 4 * (s_ % 4)
            b = VBF + 4 * (s_ % 4)
            k.e(f"ds_read_b128 {vr(a,4)}, v{58 if buf else 20} offset:{32*s_}")
            k.e(f"ds_read_b64_tr_b16 v[{b}:{b+1}], v{59 if buf else 21} offset:{1024*s_}")
            k.e(f"ds_read_b64_tr_b16 v[{b+2}:{b+3}], v{59 if buf else 21} offset:{1024*s_ + 256}")
        for s_ in range(3):
            rd(s_)
        for s_ in range(14):
            if s_ + 3 < 14:
                rd(s_ + 3)
                k.e("s_waitcnt lgkmcnt(9)")
            else:
                k.e(f"s_waitcnt lgkmcnt({3*(13-s_)})")
            a = VAF + 4 * (s_ % 4)
            b = VBF + 4 * (s_ % 4)
            k.mfma(ACC, b, a, "0" if (c == 0 and s_ == 0) else ACC)
        if c + 1 < 8:
            k.e("s_waitcnt vmcnt(0)")
            l_writes(buf ^ 1)
            if c + 2 < 8:
                g_loads()
            k.e("s_waitcnt lgkmcnt(0)")
            k.e("s_barrier")
    k.e("s_lshl_b32 s41, s30, 6")
    k.e("s_add_u32 s41, s41, s40")
    k.e("v_add_u32 v23, s41, v25")
    k.e("s_movk_i32 s45, 896")
    k.e("v_mul_u32_u24 v23, s45, v23")
    k.e("v_lshl_add_u32 v23, v26, 3, v23")
    k.e("s_lshl_b32 s42, s31, 7")
    k.e("s_and_b32 s43, s3, 1")
    k.e("s_lshl_b32 s43, s43, 6")
    k.e("s_add_u32 s42, s42, s43")
    for g in range(4):
        k.e(f"buffer_load_dwordx2 v[{28+2*g}:{29+2*g}], v23, s[24:27], s42 offen offset:{16*g}")
    k.nop(16)
    k.e("s_waitcnt vmcnt(0)")
    for g in range(4):
        for h in range(2):
            src = 28 + 2 * g + h
            k.e(f"v_lshlrev_b32 v36, 16, v{src}")
            k.e(f"v_and_b32 v37, 0xffff0000, v{src}")
            k.e(f"v_add_f32 v36, v36, v{ACC+4*g+2*h}")
            k.e(f"v_add_f32 v37, v37, v{ACC+4*g+2*h+1}")
            k.e(f"v_cvt_pk_bf16_f32 v{src}, v36, v37")
    for g in range(4):
        k.e(f"buffer_store_dwordx2 v[{28+2*g}:{29+2*g}], v23, s[16:19], s42 offen offset:{16*g}")
    finish(k)
    return k


HEADER = open("cdna_kernels/" + NAME + ".s.ref").read().split("; Override")[0]


def build(nk=5):
    ks = [(gen_k1(), 256, 4 * A_WAVE), (gen_k2(), 256, 2 * (10240 + 8704)), (gen_k3(), 224, 4 * A_WAVE),
          (gen_k4(), 224, 4 * A_WAVE), (gen_k5(), 224, 2 * (64 * 464 + 28672))][:nk]
    out = [HEADER.rstrip("\n")]
    for k, g, lds in ks:
        out.append(f"; @launch kernel={k.name} grid=({g},1,1) block=(256,1,1) lds={lds}")
    out.append('.amdgcn_target "amdgcn-amd-amdhsa--gfx950"')
    out.append(".text")
    for k, g, lds in ks:
        out.append(f".globl {k.name}")
        out.append(".p2align 8")
        out.append(f".type {k.name},@function")
        out.append(f"{k.name}:")
        out += [l for l in k.L if l is not None]
    out.append('.section .rodata,"a"')
    for k, g, lds in ks:
        out.append(".p2align 6")
        out.append(f".amdhsa_kernel {k.name}")
        out.append("  .amdhsa_next_free_vgpr 256")
        out.append("  .amdhsa_next_free_sgpr 102")
        out.append("  .amdhsa_accum_offset 256")
        out.append("  .amdhsa_group_segment_fixed_size 0")
        out.append("  .amdhsa_kernarg_size 80")
        out.append("  .amdhsa_user_sgpr_count 2")
        out.append("  .amdhsa_user_sgpr_kernarg_segment_ptr 1")
        out.append("  .amdhsa_system_sgpr_workgroup_id_x 1")
        out.append(".end_amdhsa_kernel")
    return "\n".join(out) + "\n"


if __name__ == "__main__":
    txt = build()
    open("cdna_kernels/" + NAME + ".s", "w").write(txt)
    print("written", len(txt))
```

```python
import math, sys, os
STAMP = int(os.environ.get("STAMP", "0"))
EXPT = int(os.environ.get("EXPT", "0"))
OUT = os.environ.get("OUT", "")

NAME = "sequential_preLN__softmax_full_mha__geglu_ffn__prompt"
S, D, H, DH, F = 2048, 448, 16, 28, 1792
WS_Q, WS_K, WS_V, WS_O, WS_H, WS_ACT = 0x0, 0x200000, 0x400000, 0x600000, 0x800000, 0xA00000
WS_SIZE = 268435456


def f2u(x):
    import struct
    return struct.unpack("<I", struct.pack("<f", x))[0]


class K:
    def __init__(s, name):
        s.name = name
        s.L = []
        s.nlab = 0
        s.nst = 0

    def e(s, x):
        s.L.append("    " + x)

    def lab(s, l):
        s.L.append(l + ":")

    def newlab(s, p="L"):
        s.nlab += 1
        return f"{s.name}_{p}{s.nlab}"

    def nop(s, n):
        while n > 0:
            k = min(n, 16)
            s.e(f"s_nop {k-1}")
            n -= k

    def stamp(s):
        if not STAMP:
            return
        i = s.nst
        s.nst += 1
        s.e("s_memtime s[60:61]")
        s.e("s_waitcnt lgkmcnt(0)")
        s.e(f"s_mov_b32 s{64+i}, s60")

    def srd(s, sd, sb, off, nbytes):
        if off:
            s.e(f"s_add_u32 s{sd}, s{sb}, {hex(off)}")
            s.e(f"s_addc_u32 s{sd+1}, s{sb+1}, 0")
        else:
            s.e(f"s_mov_b32 s{sd}, s{sb}")
            s.e(f"s_mov_b32 s{sd+1}, s{sb+1}")
        s.e(f"s_mov_b32 s{sd+2}, {hex(nbytes)}")
        s.e(f"s_mov_b32 s{sd+3}, 0x00020000")

    def mfma(s, d, a, b, c):
        cs = f"v[{c}:{c+15}]" if isinstance(c, int) else c
        s.e(f"v_mfma_f32_32x32x16_bf16 v[{d}:{d+15}], v[{a}:{a+3}], v[{b}:{b+3}], {cs}")


def vr(a, n):
    return f"v[{a}:{a+n-1}]"


VA = 64
VACC0 = 176
VACC1 = 192
VB = 208
VPF = 224
A_STRIDE = 912
A_WAVE = 32 * A_STRIDE
BBUF = 28672


def tmpl_prologue(k, nwg, a_arg, a_off, a_bytes):
    k.e(f"s_cmp_ge_u32 s2, {nwg}")
    k.e(f"s_cbranch_scc1 {k.name}_end")
    k.e(f"s_load_dwordx2 s[4:5], s[0:1], {a_arg}")
    k.e(f"s_load_dwordx2 s[28:29], s[0:1], 72")
    k.e("v_and_b32 v1, 63, v0")
    k.e("v_lshrrev_b32 v2, 6, v0")
    k.e("s_nop 0")
    k.e("v_readfirstlane_b32 s3, v2")
    k.stamp()


def b_loads(k, srd, colbytes_sreg_or_imm, stride):
    if isinstance(colbytes_sreg_or_imm, str):
        k.e(f"s_mov_b32 s40, {colbytes_sreg_or_imm}")
    else:
        k.e(f"s_mov_b32 s40, {hex(colbytes_sreg_or_imm)}")
    for i in range(7):
        k.e(f"buffer_load_dwordx4 {vr(VPF+4*i,4)}, v3, s[{srd}:{srd+3}], s40 offen")
        if i < 6:
            k.e(f"s_add_u32 s40, s40, {hex(64*stride)}")


def b_writes(k, buf):
    for i in range(7):
        k.e(f"ds_write_b128 v4, {vr(VPF+4*i,4)} offset:{buf*BBUF + i*4096}")


def a_stage(k, do_ln):
    k.e("v_lshlrev_b32 v5, 4, v1")
    for i in range(28):
        if i % 4 == 0:
            if i == 0:
                k.e("s_mov_b32 s42, s41")
            else:
                k.e("s_add_u32 s42, s42, 4096")
        k.e(f"buffer_load_dwordx4 {vr(VA+4*i,4)}, v5, s[8:11], s42 offen offset:{(i%4)*1024}")
    k.e(f"s_mul_i32 s43, s3, {A_WAVE}")
    k.e("s_movk_i32 s44, 2341")
    addr_regs = []
    for i in range(28):
        pass
    k.e("s_waitcnt vmcnt(0)")
    k.stamp()
    for i in range(28):
        k.e(f"v_add_u32 v7, {i*64}, v1")
        k.e("v_mul_u32_u24 v8, s44, v7")
        k.e("v_lshrrev_b32 v8, 17, v8")
        k.e("v_add_lshl_u32 v7, v7, v8, 4")
        k.e("v_add_u32 v7, s43, v7")
        k.e(f"ds_write_b128 v7, {vr(VA+4*i,4)}")
    k.e("v_and_b32 v7, 31, v1")
    k.e(f"v_mul_u32_u24 v7, {A_STRIDE}, v7")
    k.e("v_lshrrev_b32 v8, 5, v1")
    k.e("v_lshl_add_u32 v7, v8, 4, v7")
    k.e("v_add_u32 v7, s43, v7")
    k.e("s_waitcnt lgkmcnt(0)")
    for s_ in range(28):
        k.e(f"ds_read_b128 {vr(VA+4*s_,4)}, v7 offset:{32*s_}")
    k.e("s_waitcnt lgkmcnt(0)")
    k.stamp()


def a_ln(k):
    k.e("s_mov_b32 s44, 0x3f803f80")
    for r in (8, 9, 10, 11):
        k.e(f"v_mov_b32 v{r}, 0")
    for r in range(112):
        k.e(f"v_dot2_f32_bf16 v{8+(r&1)}, v{VA+r}, s44, v{8+(r&1)}")
        k.e(f"v_dot2_f32_bf16 v{10+(r&1)}, v{VA+r}, v{VA+r}, v{10+(r&1)}")
    k.e("s_nop 1")
    k.e("v_add_f32 v8, v8, v9")
    k.e("v_add_f32 v10, v10, v11")
    k.e("s_nop 0")
    k.e("v_mov_b32 v9, v8")
    k.e("v_mov_b32 v11, v10")
    k.e("s_nop 1")
    k.e("v_permlane32_swap_b32 v8, v9")
    k.e("v_permlane32_swap_b32 v10, v11")
    k.e("s_nop 1")
    k.e("v_add_f32 v8, v8, v9")
    k.e("v_add_f32 v10, v10, v11")
    k.e(f"s_mov_b32 s44, {hex(f2u(1.0/448))}")
    k.e("v_mul_f32 v8, s44, v8")
    k.e("v_mul_f32 v10, s44, v10")
    k.e("v_fma_f32 v10, -v8, v8, v10")
    k.e("v_max_f32 v10, 0, v10")
    k.e(f"v_add_f32 v10, {hex(f2u(1e-5))}, v10")
    k.e("v_rsq_f32 v12, v10")
    k.e("s_nop 0")
    k.e("v_mov_b32 v13, v12")
    k.e("v_mul_f32 v14, v8, v12")
    k.e("v_sub_f32 v14, 0, v14")
    k.e("v_mov_b32 v15, v14")
    for r in range(112):
        t = 16 + 2 * (r & 1)
        k.e(f"v_lshlrev_b32 v{t}, 16, v{VA+r}")
        k.e(f"v_and_b32 v{t+1}, 0xffff0000, v{VA+r}")
        k.e(f"v_pk_fma_f32 v[{t}:{t+1}], v[{t}:{t+1}], v[12:13], v[14:15]")
        k.e(f"v_cvt_pk_bf16_f32 v{VA+r}, v{t}, v{t+1}")
    k.stamp()


def chunk_mfma(k, buf, acc, w_first):
    def rd(s_):
        b = VB + 4 * (s_ % 4)
        k.e(f"ds_read_b64_tr_b16 v[{b}:{b+1}], v21 offset:{buf*BBUF + 1024*s_}")
        k.e(f"ds_read_b64_tr_b16 v[{b+2}:{b+3}], v21 offset:{buf*BBUF + 1024*s_ + 256}")
    for s_ in range(3):
        rd(s_)
    for s_ in range(28):
        if s_ + 3 < 28:
            rd(s_ + 3)
            k.e("s_waitcnt lgkmcnt(6)")
        else:
            k.e(f"s_waitcnt lgkmcnt({2*(27-s_)})")
        b = VB + 4 * (s_ % 4)
        a = VA + 4 * s_
        c = "0" if s_ == 0 else acc
        if w_first:
            k.mfma(acc, b, a, c)
        else:
            k.mfma(acc, a, b, c)
    k.stamp()


def tr_addr(k):
    k.e("v_lshrrev_b32 v22, 5, v1")
    k.e("v_lshlrev_b32 v21, 9, v22")
    k.e("v_bfe_u32 v22, v1, 2, 2")
    k.e("v_lshl_add_u32 v21, v22, 6, v21")
    k.e("v_bfe_u32 v22, v1, 4, 1")
    k.e("v_lshl_add_u32 v21, v22, 5, v21")
    k.e("v_and_b32 v22, 3, v1")
    k.e("v_lshl_add_u32 v21, v22, 3, v21")


def b_thread_addr(k, stride):
    k.e("v_lshrrev_b32 v3, 2, v0")
    k.e(f"s_movk_i32 s44, {stride}" if stride < 32768 else f"s_mov_b32 s44, {stride}")
    k.e("v_mul_u32_u24 v3, s44, v3")
    k.e("v_and_b32 v4, 3, v0")
    k.e("v_lshl_add_u32 v3, v4, 4, v3")
    k.e("v_lshlrev_b32 v4, 4, v0")


def finish(k):
    if STAMP and k.nst:
        k.stamp()
        k.e("s_cmp_lg_u32 s2, 0")
        k.e(f"s_cbranch_scc1 {k.name}_end")
        k.e("s_cmp_lg_u32 s3, 0")
        k.e(f"s_cbranch_scc1 {k.name}_end")
        k.e("s_load_dwordx2 s[60:61], s[0:1], 64")
        k.e("s_waitcnt lgkmcnt(0)")
        k.srd(56, 60, 0, 256)
        k.e("s_mov_b64 exec, -1")
        k.e("v_mov_b32 v1, 0")
        for i in range(k.nst):
            k.e(f"s_sub_u32 s63, s{64+i}, s64")
            k.e("v_mov_b32 v2, s63")
            k.e(f"buffer_store_dword v2, v1, s[56:59], 0 offen offset:{4*i}")
    k.lab(f"{k.name}_end")
    k.e("s_endpgm")


def gen_k1():
    k = K("k1_qkv_kernel")
    tmpl_prologue(k, 256, 0, 0, 0)
    k.e("s_load_dwordx2 s[6:7], s[0:1], 8")
    k.e("s_and_b32 s30, s2, 15")
    k.e("s_lshr_b32 s31, s2, 4")
    k.e("s_waitcnt lgkmcnt(0)")
    k.srd(8, 4, 0, S * D * 2)
    k.srd(12, 6, 0, D * 3 * D * 2)
    k.e("s_lshl_b32 s32, s31, 17")
    k.e("s_add_u32 s16, s28, s32")
    k.e("s_addc_u32 s17, s29, 0")
    k.e(f"s_mov_b32 s18, {hex(0x400000 + 0x20000)}")
    k.e("s_mov_b32 s19, 0x00020000")
    b_thread_addr(k, 2688)
    tr_addr(k)
    k.e("s_mul_i32 s33, s31, 56")
    b_loads(k, 12, "s33", 2688)
    k.e("s_lshl_b32 s41, s30, 2")
    k.e("s_add_u32 s41, s41, s3")
    k.e("s_lshl_b32 s34, s41, 5")
    k.e(f"s_mul_i32 s41, s41, {32*896}")
    a_stage(k, True)
    k.e("s_barrier")
    b_writes(k, 0)
    k.e("s_add_u32 s35, s33, 896")
    b_loads(k, 12, "s35", 2688)
    a_ln(k)
    k.e("v_and_b32 v25, 31, v1")
    k.e("v_lshrrev_b32 v26, 5, v1")
    k.e("v_add_u32 v23, s34, v25")
    k.e("v_lshlrev_b32 v23, 6, v23")
    k.e("v_lshl_add_u32 v23, v26, 3, v23")
    k.e("v_lshlrev_b32 v24, 12, v25")
    k.e("v_lshl_add_u32 v24, v26, 4, v24")
    k.e("s_lshl_b32 s36, s34, 1")
    k.e("v_add_u32 v24, s36, v24")
    k.e("s_waitcnt lgkmcnt(0)")
    k.e("s_barrier")
    for c in range(3):
        chunk_mfma(k, c & 1, VACC0, w_first=(c < 2))
        if c < 2:
            k.e("s_waitcnt vmcnt(0)")
            b_writes(k, (c + 1) & 1)
            if c == 0:
                k.e("s_add_u32 s35, s33, 1792")
                b_loads(k, 12, "s35", 2688)
        k.nop(16)
        if c < 2:
            k.e("v_cmp_gt_u32 vcc, 32, v1")
            k.e("s_nop 1")
            if c == 0:
                k.e(f"s_mov_b32 s37, {hex(f2u(DH ** -0.5 * math.log2(math.e)))}")
                for r in range(16):
                    k.e(f"v_mul_f32 v{VACC0+r}, s37, v{VACC0+r}")
            for r in range(12, 16):
                pad = "1.0" if (c == 1 and r == 12) else "0"
                k.e(f"v_cndmask_b32 v{VACC0+r}, {pad}, v{VACC0+r}, vcc")
            for g in range(4):
                k.e(f"v_cvt_pk_bf16_f32 v{28+2*g}, v{VACC0+4*g}, v{VACC0+4*g+1}")
                k.e(f"v_cvt_pk_bf16_f32 v{29+2*g}, v{VACC0+4*g+2}, v{VACC0+4*g+3}")
            k.e(f"s_mov_b32 s37, {hex(c*0x200000)}")
            for g in range(4):
                k.e(f"buffer_store_dwordx2 v[{28+2*g}:{29+2*g}], v23, s[16:19], s37 offen offset:{16*g}")
        else:
            k.e("v_cmp_gt_u32 vcc, 28, v25")
            k.e("v_cmp_eq_u32 s[38:39], 28, v25")
            k.e("v_cndmask_b32 v27, 0, 1.0, s[38:39]")
            k.e("s_nop 1")
            for r in range(16):
                k.e(f"v_cndmask_b32 v{VACC0+r}, v27, v{VACC0+r}, vcc")
            for r in range(8):
                k.e(f"v_cvt_pk_bf16_f32 v{28+r}, v{VACC0+2*r}, v{VACC0+2*r+1}")
            k.e("s_mov_b32 s37, 0x400000")
            for G in range(2):
                k.e(f"buffer_store_dwordx4 v[{28+4*G}:{31+4*G}], v24, s[16:19], s37 offen offset:{32*G}")
        if c < 2:
            k.e("s_waitcnt lgkmcnt(0)")
            k.e("s_barrier")
    finish(k)
    return k


def gen_k2():
    k = K("k2_attn_kernel")
    VQ = 8
    VS = 64
    VO = 128
    VP = 144
    VKF = 176
    VVF = 192
    VPFK = 224
    VPFV = 232
    KB = 256 * 80
    VST = 528
    VBS = 32 * VST
    BUF = KB + VBS
    T = 6.0
    k.e("s_cmp_ge_u32 s2, 256")
    k.e(f"s_cbranch_scc1 {k.name}_end")
    k.e("s_load_dwordx2 s[28:29], s[0:1], 72")
    k.e("v_and_b32 v1, 63, v0")
    k.e("v_lshrrev_b32 v2, 6, v0")
    k.e("s_and_b32 s30, s2, 15")
    k.e("s_lshr_b32 s31, s2, 4")
    k.e("v_readfirstlane_b32 s3, v2")
    k.e("s_lshl_b32 s32, s31, 17")
    k.e("s_and_b32 s33, s3, 3")
    k.e("s_lshr_b32 s44, s3, 2")
    k.e("s_waitcnt lgkmcnt(0)")
    k.e("s_add_u32 s8, s28, s32")
    k.e("s_addc_u32 s9, s29, 0")
    k.e(f"s_mov_b32 s10, {hex(0x400000 + 0x20000)}")
    k.e("s_mov_b32 s11, 0x00020000")
    k.srd(16, 28, WS_O, S * D * 2)
    k.e("s_lshl_b32 s34, s30, 2")
    k.e("s_add_u32 s34, s34, s33")
    k.e("s_lshl_b32 s34, s34, 5")
    k.e("v_and_b32 v25, 31, v1")
    k.e("v_lshrrev_b32 v26, 5, v1")
    k.e("v_add_u32 v3, s34, v25")
    k.e("v_lshlrev_b32 v3, 6, v3")
    k.e("v_lshl_add_u32 v3, v26, 4, v3")
    k.e("buffer_load_dwordx4 v[8:11], v3, s[8:11], 0 offen")
    k.e("buffer_load_dwordx4 v[12:15], v3, s[8:11], 0 offen offset:32")
    k.e("v_lshlrev_b32 v4, 4, v0")
    k.e("v_lshrrev_b32 v5, 2, v0")
    k.e("v_mul_u32_u24 v5, 80, v5")
    k.e("v_and_b32 v6, 3, v0")
    k.e("v_lshl_add_u32 v5, v6, 4, v5")
    k.e("v_lshrrev_b32 v6, 5, v0")
    k.e("v_and_b32 v7, 31, v0")
    k.e("v_lshlrev_b32 v16, 12, v6")
    k.e("v_lshl_add_u32 v16, v7, 4, v16")
    k.e(f"v_mul_u32_u24 v17, {VST}, v6")
    k.e("v_lshl_add_u32 v17, v7, 4, v17")
    k.e(f"v_add_u32 v17, {KB}, v17")
    k.e("v_mul_u32_u24 v18, 80, v25")
    k.e("v_lshl_add_u32 v18, v26, 4, v18")
    k.e(f"s_mul_i32 s45, s44, {128*80}")
    k.e("v_add_u32 v18, s45, v18")
    k.e(f"v_mul_u32_u24 v19, {VST}, v25")
    k.e("v_lshl_add_u32 v19, v26, 4, v19")
    k.e("s_lshl_b32 s45, s44, 8")
    k.e(f"s_add_u32 s45, s45, {KB}")
    k.e("v_add_u32 v19, s45, v19")
    k.e("s_mov_b32 s46, 0")
    k.e("s_mov_b32 s47, -1")

    def g_loads():
        k.e(f"buffer_load_dwordx4 {vr(VPFK,4)}, v4, s[8:11], s35 offen")
        k.e(f"s_add_u32 s37, s35, 8192")
        k.e(f"buffer_load_dwordx4 {vr(VPFK+4,4)}, v4, s[8:11], s37 offen")
        k.e(f"buffer_load_dwordx4 {vr(VPFV,4)}, v16, s[8:11], s36 offen")
        k.e(f"s_add_u32 s37, s36, 0x10000")
        k.e(f"buffer_load_dwordx4 {vr(VPFV+4,4)}, v16, s[8:11], s37 offen")
        k.e("s_add_u32 s35, s35, 16384")
        k.e("s_add_u32 s36, s36, 512")

    def l_writes(buf):
        k.e(f"ds_write_b128 v5, {vr(VPFK,4)} offset:{buf*BUF}")
        k.e(f"ds_write_b128 v5, {vr(VPFK+4,4)} offset:{buf*BUF + 128*80}")
        k.e(f"ds_write_b128 v17, {vr(VPFV,4)} offset:{buf*BUF}")
        k.e(f"ds_write_b128 v17, {vr(VPFV+4,4)} offset:{buf*BUF + 16*VST}")

    def chunk(buf, first):
        for kt in range(4):
            kf = VKF + 8 * (kt & 1)
            k.e(f"ds_read_b128 {vr(kf,4)}, v18 offset:{buf*BUF + kt*32*80}")
            k.e(f"ds_read_b128 {vr(kf+4,4)}, v18 offset:{buf*BUF + kt*32*80 + 32}")
            if kt >= 1:
                pk = VKF + 8 * ((kt - 1) & 1)
                k.e("s_waitcnt lgkmcnt(2)")
                k.mfma(VS + 16 * (kt - 1), pk, VQ, "0")
                k.mfma(VS + 16 * (kt - 1), pk + 4, VQ + 4, VS + 16 * (kt - 1))
        k.e("s_waitcnt lgkmcnt(0)")
        k.mfma(VS + 48, VKF + 8, VQ, "0")
        k.mfma(VS + 48, VKF + 12, VQ + 4, VS + 48)
        for kt in range(4):
            for G in range(2):
                k.e(f"ds_read_b128 {vr(VVF+4*(2*kt+G),4)}, v19 offset:{buf*BUF + (kt*32+16*G)*2}")
        k.nop(12)
        k.e(f"v_max3_f32 v21, v{VS}, v{VS+1}, v{VS+2}")
        for i in range(3, 63, 2):
            k.e(f"v_max3_f32 v21, v21, v{VS+i}, v{VS+i+1}")
        k.e(f"v_max_f32 v21, v21, v{VS+63}")
        fast = k.newlab("fast")
        if not first:
            k.e("v_cmp_lt_f32 vcc, s38, v21")
            k.e(f"s_cbranch_vccz {fast}")
        k.e("v_mov_b32 v22, v21")
        k.e("s_nop 1")
        k.e("v_permlane32_swap_b32 v21, v22")
        k.e("s_nop 1")
        k.e("v_max_f32 v21, v21, v22")
        if not first:
            k.e("v_max_f32 v21, 0, v21")
        k.e("v_add_f32 v22, v20, v21")
        k.e("v_cvt_pk_bf16_f32 v23, v22, v22")
        k.e("v_lshlrev_b32 v22, 16, v23")
        k.e("v_sub_f32 v21, v22, v20")
        k.e("v_mov_b32 v20, v22")
        for i in range(64):
            k.e(f"v_sub_f32 v{VS+i}, v{VS+i}, v21")
        if not first:
            k.e("v_exp_f32 v24, -v21")
            k.e("s_nop 0")
            for r in range(16):
                k.e(f"v_mul_f32 v{VO+r}, v{VO+r}, v24")
        k.e("v_xor_b32 v23, 0x8000, v23")
        k.e("v_and_b32 v23, 0xffff, v23")
        k.e(f"v_cndmask_b32 v{VQ+6}, v{VQ+6}, v23, s[46:47]")
        k.lab(fast)
        for i in range(64):
            k.e(f"v_exp_f32 v{VS+i}, v{VS+i}")
        k.e("s_nop 0")
        for i in range(32):
            k.e(f"v_cvt_pk_bf16_f32 v{VP+i}, v{VS+2*i}, v{VS+2*i+1}")
        k.e("s_waitcnt lgkmcnt(0)")
        k.e("s_nop 1")
        for kt in range(4):
            for G in range(2):
                j = 2 * kt + G
                k.mfma(VO, VVF + 4 * j, VP + 4 * j, VO)
        k.e("s_waitcnt vmcnt(0)")
        l_writes(buf ^ 1)
        skip = k.newlab("skip")
        k.e(f"s_cmp_ge_u32 s35, {hex(0x200000 + 8*16384)}")
        k.e(f"s_cbranch_scc1 {skip}")
        g_loads()
        k.lab(skip)
        k.e("s_waitcnt lgkmcnt(0)")
        k.e("s_barrier")

    FS = [64, 80]
    FP = [96, 104]
    FK = [112, 120]
    FV = [128, 136]
    FO = 144
    FPF0 = 160
    FLAG = 3 * BUF

    def fg_loads(c):
        FPF = FPF0 + 16 * (c & 1)
        k.e(f"buffer_load_dwordx4 {vr(FPF,4)}, v4, s[8:11], s35 offen")
        k.e(f"s_add_u32 s37, s35, 8192")
        k.e(f"buffer_load_dwordx4 {vr(FPF+4,4)}, v4, s[8:11], s37 offen")
        k.e(f"buffer_load_dwordx4 {vr(FPF+8,4)}, v16, s[8:11], s36 offen")
        k.e(f"s_add_u32 s37, s36, 0x10000")
        k.e(f"buffer_load_dwordx4 {vr(FPF+12,4)}, v16, s[8:11], s37 offen")
        k.e("s_add_u32 s35, s35, 16384")
        k.e("s_add_u32 s36, s36, 512")

    k.e(f"v_add_u32 v40, {2*BUF}, v5")
    k.e(f"v_add_u32 v41, {2*BUF}, v17")
    k.e(f"v_add_u32 v42, {2*BUF}, v18")
    k.e(f"v_add_u32 v43, {2*BUF}, v19")

    def fl_writes(c):
        buf = c % 3
        FPF = FPF0 + 16 * (c & 1)
        a, b, o = ("v5", "v17", buf * BUF) if buf < 2 else ("v40", "v41", 0)
        k.e(f"ds_write_b128 {a}, {vr(FPF,4)} offset:{o}")
        k.e(f"ds_write_b128 {a}, {vr(FPF+4,4)} offset:{o + 128*80}")
        k.e(f"ds_write_b128 {b}, {vr(FPF+8,4)} offset:{o}")
        k.e(f"ds_write_b128 {b}, {vr(FPF+12,4)} offset:{o + 16*VST}")

    def rdK(t):
        c, kt = t >> 2, t & 3
        kf = FK[t & 1]
        a, o = ("v18", (c % 3) * BUF) if c % 3 < 2 else ("v42", 0)
        k.e(f"ds_read_b128 {vr(kf,4)}, {a} offset:{o + kt*32*80}")
        k.e(f"ds_read_b128 {vr(kf+4,4)}, {a} offset:{o + kt*32*80 + 32}")

    def rdV(t):
        c, kt = t >> 2, t & 3
        vf = FV[t & 1]
        for G in range(2):
            a, o = ("v19", (c % 3) * BUF) if c % 3 < 2 else ("v43", 0)
            k.e(f"ds_read_b128 {vr(vf+4*G,4)}, {a} offset:{o + (kt*32+16*G)*2}")

    k.stamp()
    k.e("s_mov_b32 s35, 0x200000")
    k.e("s_mov_b32 s36, 0x400000")
    fg_loads(0)
    fg_loads(1)
    k.e("s_waitcnt vmcnt(4)")
    k.stamp()
    fl_writes(0)
    fg_loads(2)
    k.e("s_waitcnt vmcnt(4)")
    fl_writes(1)
    fg_loads(3)
    k.e("s_waitcnt lgkmcnt(0)")
    k.e("s_barrier")
    for kt in range(4):
        k.e(f"ds_read_b128 {vr(128+8*kt,4)}, v18 offset:{kt*32*80}")
        k.e(f"ds_read_b128 {vr(132+8*kt,4)}, v18 offset:{kt*32*80 + 32}")
    for kt in range(4):
        k.e(f"s_waitcnt lgkmcnt({6-2*kt})")
        k.mfma(64 + 16 * kt, 128 + 8 * kt, VQ, "0")
        k.mfma(64 + 16 * kt, 132 + 8 * kt, VQ + 4, 64 + 16 * kt)
    rdK(0)
    rdK(1)
    k.nop(12)
    k.e("v_max3_f32 v21, v64, v65, v66")
    for i in range(3, 63, 2):
        k.e(f"v_max3_f32 v21, v21, v{64+i}, v{64+i+1}")
    k.e("v_max_f32 v21, v21, v127")
    k.e("v_mov_b32 v22, v21")
    k.e("s_nop 1")
    k.e("v_permlane32_swap_b32 v21, v22")
    k.e("s_nop 1")
    k.e("v_max_f32 v21, v21, v22")
    k.e("v_cvt_pk_bf16_f32 v23, v21, v21")
    k.e("v_lshlrev_b32 v20, 16, v23")
    k.e("v_xor_b32 v23, 0x8000, v23")
    k.e("v_and_b32 v23, 0xffff, v23")
    k.e(f"v_cndmask_b32 v{VQ+6}, v{VQ+6}, v23, s[46:47]")
    k.e("s_waitcnt lgkmcnt(0)")
    k.e("s_nop 1")
    k.mfma(FS[0], FK[0], VQ, "0")
    k.mfma(FS[0], FK[0] + 4, VQ + 4, FS[0])
    k.nop(16)
    NT = 32
    for t in range(NT):
        c, kt = t >> 2, t & 3
        if kt == 0:
            k.stamp()
        if kt == 1 and EXPT != 6:
            k.e("s_barrier")
        nrd = 0
        if EXPT != 4:
            if t + 2 < NT:
                rdK(t + 2); nrd += 2
            rdV(t); nrd += 2
            k.e(f"s_waitcnt lgkmcnt({nrd})")
        if EXPT == 7:
            sv_mfma = k.mfma
            k.mfma = lambda *a: None
        s = FS[t & 1]
        sn = FS[(t + 1) & 1]
        p = FP[t & 1]
        pp = FP[(t - 1) & 1]
        kf = FK[(t + 1) & 1]
        vf = FV[(t - 1) & 1]
        def ex(a, b):
            for i in range(a, b):
                if EXPT == 1:
                    k.e(f"v_mul_f32 v{s+i}, v{s+i}, v{s+i}")
                elif EXPT in (2, 4, 5, 6):
                    pass
                else:
                    k.e(f"v_exp_f32 v{s+i}, v{s+i}")
        def cv(a, b):
            for i in range(a, b):
                if EXPT not in (3, 5):
                    k.e(f"v_cvt_pk_bf16_f32 v{p+i}, v{s+2*i}, v{s+2*i+1}")
        if t + 1 < NT:
            k.mfma(sn, kf, VQ, "0")
        ex(0, 4)
        if t + 1 < NT:
            k.mfma(sn, kf + 4, VQ + 4, sn)
        ex(4, 8)
        cv(0, 2)
        if t >= 1:
            k.mfma(FO, vf, pp, "0" if t == 1 else FO)
        ex(8, 12)
        cv(2, 4)
        if t >= 1:
            k.mfma(FO, vf + 4, pp + 4, FO)
        ex(12, 16)
        cv(4, 8)
        if EXPT == 7:
            k.mfma = sv_mfma
        if kt == 2 and c + 2 < 8 and EXPT != 6:
            k.e(f"s_waitcnt vmcnt({4 if c + 3 < 8 else 0})")
            fl_writes(c + 2)
            if c + 4 < 8:
                fg_loads(c + 4)
    k.stamp()
    k.e("s_waitcnt lgkmcnt(0)")
    k.e("s_nop 1")
    k.mfma(FO, FV[(NT - 1) & 1], FP[(NT - 1) & 1], FO)
    k.mfma(FO, FV[(NT - 1) & 1] + 4, FP[(NT - 1) & 1] + 4, FO)
    k.nop(16)
    for r in range(16):
        k.e(f"v_mov_b32 v{VO+r}, v{FO+r}") if VO != FO else None
    k.e(f"s_mov_b32 s38, {hex(f2u(2.0**40))}")
    k.e(f"v_cmp_nlt_f32 vcc, v{FO+12}, s38")
    k.e("s_and_b64 vcc, vcc, s[46:47]")
    k.e("s_cmp_lg_u64 vcc, 0")
    k.e("s_cselect_b32 s38, 1, 0")
    k.e("v_mov_b32 v21, s38")
    k.e("v_lshlrev_b32 v22, 2, v2")
    k.e(f"v_add_u32 v22, {FLAG}, v22")
    k.e(f"ds_write_b32 v22, v21")
    k.e("s_waitcnt lgkmcnt(0)")
    k.e("s_barrier")
    k.e("v_and_b32 v22, 7, v1")
    k.e("v_lshlrev_b32 v22, 2, v22")
    k.e(f"v_add_u32 v22, {FLAG}, v22")
    k.e(f"ds_read_b32 v21, v22")
    k.e("s_waitcnt lgkmcnt(0)")
    k.e("v_cmp_ne_u32 vcc, 0, v21")
    combine = k.newlab("combine")
    k.e(f"s_cbranch_vccz {combine}")
    k.e(f"v_cndmask_b32 v{VQ+6}, v{VQ+6}, 0, s[46:47]")
    k.e("s_barrier")
    k.e("s_mov_b32 s35, 0x200000")
    k.e("s_mov_b32 s36, 0x400000")
    g_loads()
    for r in range(16):
        k.e(f"v_mov_b32 v{VO+r}, 0")
    k.e("v_mov_b32 v20, 0")
    k.e(f"s_mov_b32 s38, {hex(f2u(T))}")
    k.e("s_waitcnt vmcnt(0)")
    l_writes(0)
    g_loads()
    k.e("s_waitcnt lgkmcnt(0)")
    k.e("s_barrier")
    chunk(0, True)
    chunk(1, False)
    k.e("s_mov_b32 s39, 0")
    loop = k.newlab("loop")
    k.lab(loop)
    chunk(0, False)
    chunk(1, False)
    k.e("s_add_u32 s39, s39, 1")
    k.e("s_cmp_lt_u32 s39, 3")
    k.e(f"s_cbranch_scc1 {loop}")
    k.nop(16)
    k.lab(combine)
    k.e("v_lshlrev_b32 v3, 2, v1")
    k.e(f"s_mul_i32 s45, s33, {17*256}")
    k.e("v_add_u32 v3, s45, v3")
    up = k.newlab("up")
    k.e("s_cmp_eq_u32 s44, 0")
    k.e(f"s_cbranch_scc1 {up}")
    for r in range(16):
        k.e(f"ds_write_b32 v3, v{VO+r} offset:{256*r}")
    k.e(f"ds_write_b32 v3, v20 offset:{256*16}")
    k.e("s_waitcnt lgkmcnt(0)")
    k.e("s_barrier")
    k.e("s_endpgm")
    k.lab(up)
    k.e("s_barrier")
    for r in range(16):
        k.e(f"ds_read_b32 v{VS+r}, v3 offset:{256*r}")
    k.e(f"ds_read_b32 v{VS+16}, v3 offset:{256*16}")
    k.e("s_waitcnt lgkmcnt(0)")
    k.e(f"v_max_f32 v21, v20, v{VS+16}")
    k.e("v_sub_f32 v22, v20, v21")
    k.e(f"v_sub_f32 v23, v{VS+16}, v21")
    k.e("v_exp_f32 v22, v22")
    k.e("v_exp_f32 v23, v23")
    k.e("s_nop 0")
    for r in range(16):
        k.e(f"v_mul_f32 v{VO+r}, v{VO+r}, v22")
        k.e(f"v_fma_f32 v{VO+r}, v{VS+r}, v23, v{VO+r}")
    k.e("s_nop 0")
    k.e(f"v_mov_b32 v21, v{VO+12}")
    k.e(f"v_mov_b32 v22, v{VO+12}")
    k.e("s_nop 1")
    k.e("v_permlane32_swap_b32 v21, v22")
    k.e("s_nop 1")
    k.e("v_rcp_f32 v22, v22")
    k.e("s_nop 0")
    for r in range(16):
        k.e(f"v_mul_f32 v{VO+r}, v{VO+r}, v22")
    for g in range(4):
        k.e(f"v_cvt_pk_bf16_f32 v{28+2*g}, v{VO+4*g}, v{VO+4*g+1}")
        k.e(f"v_cvt_pk_bf16_f32 v{29+2*g}, v{VO+4*g+2}, v{VO+4*g+3}")
    k.e("v_add_u32 v3, s34, v25")
    k.e("s_movk_i32 s40, 896")
    k.e("v_mul_u32_u24 v3, s40, v3")
    k.e("v_lshl_add_u32 v3, v26, 3, v3")
    k.e("s_mul_i32 s40, s31, 56")
    for g in range(3):
        k.e(f"buffer_store_dwordx2 v[{28+2*g}:{29+2*g}], v3, s[16:19], s40 offen offset:{16*g}")
    k.e("v_cmp_gt_u32 vcc, 32, v1")
    k.e("s_and_saveexec_b64 s[42:43], vcc")
    k.e(f"buffer_store_dwordx2 v[34:35], v3, s[16:19], s40 offen offset:48")
    finish(k)
    return k


def gen_k3():
    k = K("k3_wo_kernel")
    tmpl_prologue(k, 224, 72, 0, 0)
    k.e("s_load_dwordx2 s[6:7], s[0:1], 16")
    k.e("s_load_dwordx2 s[20:21], s[0:1], 0")
    k.e("s_and_b32 s30, s2, 15")
    k.e("s_lshr_b32 s31, s2, 4")
    k.e("s_waitcnt lgkmcnt(0)")
    k.srd(8, 4, WS_O, S * D * 2)
    k.srd(12, 6, 0, D * D * 2)
    k.srd(16, 28, WS_H, S * D * 2)
    k.srd(24, 20, 0, S * D * 2)
    b_thread_addr(k, 896)
    tr_addr(k)
    k.e("s_lshl_b32 s33, s31, 6")
    b_loads(k, 12, "s33", 896)
    k.e("s_lshl_b32 s41, s30, 2")
    k.e("s_add_u32 s41, s41, s3")
    k.e("s_lshl_b32 s34, s41, 5")
    k.e(f"s_mul_i32 s41, s41, {32*896}")
    a_stage(k, False)
    k.e("s_barrier")
    b_writes(k, 0)
    k.e("v_and_b32 v25, 31, v1")
    k.e("v_lshrrev_b32 v26, 5, v1")
    k.e("v_add_u32 v23, s34, v25")
    k.e("s_movk_i32 s40, 896")
    k.e("v_mul_u32_u24 v23, s40, v23")
    k.e("v_lshl_add_u32 v23, v26, 3, v23")
    for g in range(4):
        k.e(f"buffer_load_dwordx2 v[{28+2*g}:{29+2*g}], v23, s[24:27], s33 offen offset:{16*g}")
    k.e("s_waitcnt lgkmcnt(0)")
    k.e("s_barrier")
    chunk_mfma(k, 0, VACC0, True)
    k.nop(16)
    k.e("s_waitcnt vmcnt(0)")
    for g in range(4):
        for h in range(2):
            src = 28 + 2 * g + h
            k.e(f"v_lshlrev_b32 v36, 16, v{src}")
            k.e(f"v_and_b32 v37, 0xffff0000, v{src}")
            k.e(f"v_add_f32 v36, v36, v{VACC0+4*g+2*h}")
            k.e(f"v_add_f32 v37, v37, v{VACC0+4*g+2*h+1}")
            k.e(f"v_cvt_pk_bf16_f32 v{src}, v36, v37")
    for g in range(4):
        k.e(f"buffer_store_dwordx2 v[{28+2*g}:{29+2*g}], v23, s[16:19], s33 offen offset:{16*g}")
    finish(k)
    return k


def gen_k4():
    k = K("k4_ffn1_kernel")
    tmpl_prologue(k, 224, 72, 0, 0)
    k.e("s_load_dwordx2 s[6:7], s[0:1], 32")
    k.e("s_load_dwordx2 s[20:21], s[0:1], 40")
    k.e("s_and_b32 s30, s2, 15")
    k.e("s_lshr_b32 s31, s2, 4")
    k.e("s_waitcnt lgkmcnt(0)")
    k.srd(8, 4, WS_H, S * D * 2)
    k.srd(12, 6, 0, D * F * 2)
    k.srd(24, 20, 0, D * F * 2)
    k.srd(16, 28, WS_ACT, S * F * 2)
    b_thread_addr(k, 3584)
    tr_addr(k)
    k.e("s_lshl_b32 s33, s31, 8")
    b_loads(k, 12, "s33", 3584)
    k.e("s_lshl_b32 s41, s30, 2")
    k.e("s_add_u32 s41, s41, s3")
    k.e("s_lshl_b32 s34, s41, 5")
    k.e(f"s_mul_i32 s41, s41, {32*896}")
    a_stage(k, True)
    k.e("s_barrier")
    b_writes(k, 0)
    b_loads(k, 24, "s33", 3584)
    a_ln(k)
    k.e("v_and_b32 v25, 31, v1")
    k.e("v_lshrrev_b32 v26, 5, v1")
    k.e("v_add_u32 v23, s34, v25")
    k.e("s_movk_i32 s40, 3584")
    k.e("v_mul_u32_u24 v23, s40, v23")
    k.e("v_lshl_add_u32 v23, v26, 3, v23")
    c0 = -2.0 * math.log2(math.e) * math.sqrt(2.0 / math.pi)
    c1 = c0 * 0.044715
    k.e(f"s_mov_b32 s45, {hex(f2u(c0))}")
    k.e(f"s_mov_b32 s46, {hex(f2u(c1))}")
    k.e("s_waitcnt lgkmcnt(0)")
    k.e("s_barrier")
    nch = 8
    for c in range(nch):
        acc = VACC0 if c % 2 == 0 else VACC1
        chunk_mfma(k, c & 1, acc, True)
        if c + 1 < nch:
            k.e("s_waitcnt vmcnt(0)")
            b_writes(k, (c + 1) & 1)
            if c + 2 < nch:
                j = (c + 2) // 2
                k.e(f"s_add_u32 s35, s33, {64*j}")
                b_loads(k, 12 if (c + 2) % 2 == 0 else 24, "s35", 3584)
        if c % 2 == 1:
            k.nop(16)
            for r in range(16):
                g_, u_ = VACC0 + r, VACC1 + r
                t = 36 + (r & 3)
                k.e(f"v_mul_f32 v{t}, v{g_}, v{g_}")
                k.e(f"v_fma_f32 v{t}, v{t}, s46, v47")
                k.e(f"v_mul_f32 v{t}, v{t}, v{g_}")
                k.e(f"v_exp_f32 v{t}, v{t}")
                k.e("s_nop 0")
                k.e(f"v_add_f32 v{t}, 1.0, v{t}")
                k.e(f"v_rcp_f32 v{t}, v{t}")
                k.e("s_nop 0")
                k.e(f"v_mul_f32 v{t}, v{t}, v{g_}")
                k.e(f"v_mul_f32 v{g_}, v{t}, v{u_}")
            for g in range(4):
                k.e(f"v_cvt_pk_bf16_f32 v{28+2*g}, v{VACC0+4*g}, v{VACC0+4*g+1}")
                k.e(f"v_cvt_pk_bf16_f32 v{29+2*g}, v{VACC0+4*g+2}, v{VACC0+4*g+3}")
            k.e(f"s_add_u32 s37, s33, {64*(c//2)}")
            for g in range(4):
                k.e(f"buffer_store_dwordx2 v[{28+2*g}:{29+2*g}], v23, s[16:19], s37 offen offset:{16*g}")
        if c + 1 < nch:
            k.e("s_waitcnt lgkmcnt(0)")
            k.e("s_barrier")
        if c == 0:
            k.e("v_mov_b32 v47, s45")
    finish(k)
    return k


def gen_k5():
    k = K("k5_down_kernel")
    AST = 464
    ABUF = 64 * AST
    BB = 2 * 224 * 64
    BUF = ABUF + BB
    VPA = 64
    VPB = 96
    VAF = 128
    VBF = 144
    ACC = 160
    k.e("s_cmp_ge_u32 s2, 224")
    k.e(f"s_cbranch_scc1 {k.name}_end")
    k.e("s_load_dwordx2 s[28:29], s[0:1], 72")
    k.e("s_load_dwordx2 s[6:7], s[0:1], 48")
    k.e("s_load_dwordx2 s[20:21], s[0:1], 56")
    k.e("v_and_b32 v1, 63, v0")
    k.e("v_lshrrev_b32 v2, 6, v0")
    k.e("s_and_b32 s30, s2, 31")
    k.e("s_lshr_b32 s31, s2, 5")
    k.e("v_readfirstlane_b32 s3, v2")
    k.e("s_waitcnt lgkmcnt(0)")
    k.srd(8, 28, WS_ACT, S * F * 2)
    k.srd(12, 6, 0, F * D * 2)
    k.srd(16, 20, 0, S * D * 2)
    k.srd(24, 28, WS_H, S * D * 2)
    k.e("s_movk_i32 s44, 2341")
    k.e("s_movk_i32 s44, 4682")
    for i in range(7):
        k.e(f"v_add_u32 v7, {i*256}, v0")
        k.e("v_mul_u32_u24 v8, s44, v7")
        k.e("v_lshrrev_b32 v8, 17, v8")
        k.e("v_mul_u32_u24 v9, 28, v8")
        k.e("v_sub_u32 v9, v7, v9")
        k.e("v_mul_u32_u24 v10, s45, v8") if False else None
        k.e(f"v_lshlrev_b32 v10, 4, v9")
        k.e(f"s_movk_i32 s45, 3584")
        k.e(f"v_mad_u32_u24 v{32+i}, v8, s45, v10")
        k.e(f"s_movk_i32 s45, {AST}")
        k.e(f"v_mad_u32_u24 v{40+i}, v8, s45, v10")
    k.e("v_lshrrev_b32 v7, 3, v0")
    k.e("v_and_b32 v8, 7, v0")
    k.e("s_movk_i32 s45, 896")
    k.e("v_mul_u32_u24 v48, s45, v7")
    k.e("v_lshl_add_u32 v48, v8, 4, v48")
    k.e("v_lshlrev_b32 v49, 6, v7")
    k.e("v_and_b32 v9, 3, v8")
    k.e("v_lshl_add_u32 v49, v9, 4, v49")
    k.e("v_lshrrev_b32 v9, 2, v8")
    k.e(f"s_movk_i32 s45, {224*64}")
    k.e("v_mad_u32_u24 v49, v9, s45, v49")
    k.e(f"v_add_u32 v49, {ABUF}, v49")
    k.e(f"s_mul_i32 s35, s30, {64*3584}")
    k.e("s_lshl_b32 s36, s31, 7")

    def g_loads():
        for i in range(7):
            k.e(f"buffer_load_dwordx4 {vr(VPA+4*i,4)}, v{32+i}, s[8:11], s35 offen")
        k.e("s_mov_b32 s37, s36")
        for i in range(7):
            k.e(f"buffer_load_dwordx4 {vr(VPB+4*i,4)}, v48, s[12:15], s37 offen")
            if i < 6:
                k.e(f"s_add_u32 s37, s37, {32*896}")
        k.e("s_add_u32 s35, s35, 448")
        k.e(f"s_add_u32 s36, s36, {224*896}")

    def l_writes(buf):
        for i in range(7):
            k.e(f"ds_write_b128 v{(50 if buf else 40)+i}, {vr(VPA+4*i,4)}")
        for i in range(7):
            k.e(f"ds_write_b128 v{57 if buf else 49}, {vr(VPB+4*i,4)} offset:{i*32*64}")

    g_loads()
    for i in range(7):
        k.e(f"v_add_u32 v{50+i}, {BUF}, v{40+i}")
    k.e(f"v_add_u32 v57, {BUF}, v49")
    tr_addr(k)
    k.e("s_and_b32 s38, s3, 1")
    k.e(f"s_mul_i32 s38, s38, {224*64}")
    k.e(f"s_add_u32 s38, s38, {ABUF}")
    k.e("v_add_u32 v21, s38, v21")
    k.e("s_lshr_b32 s39, s3, 1")
    k.e("v_and_b32 v25, 31, v1")
    k.e("v_lshrrev_b32 v26, 5, v1")
    k.e("s_lshl_b32 s40, s39, 5")
    k.e("v_add_u32 v20, s40, v25")
    k.e(f"s_movk_i32 s45, {AST}")
    k.e("v_mul_u32_u24 v20, s45, v20")
    k.e("v_lshl_add_u32 v20, v26, 4, v20")
    k.e(f"v_add_u32 v58, {BUF}, v20")
    k.e(f"v_add_u32 v59, {BUF}, v21")
    k.e("s_waitcnt vmcnt(0)")
    l_writes(0)
    g_loads()
    k.e("s_waitcnt lgkmcnt(0)")
    k.e("s_barrier")
    for c in range(8):
        buf = c & 1

        def rd(s_):
            a = VAF + 4 * (s_ % 4)
            b = VBF + 4 * (s_ % 4)
            k.e(f"ds_read_b128 {vr(a,4)}, v{58 if buf else 20} offset:{32*s_}")
            k.e(f"ds_read_b64_tr_b16 v[{b}:{b+1}], v{59 if buf else 21} offset:{1024*s_}")
            k.e(f"ds_read_b64_tr_b16 v[{b+2}:{b+3}], v{59 if buf else 21} offset:{1024*s_ + 256}")
        for s_ in range(3):
            rd(s_)
        for s_ in range(14):
            if s_ + 3 < 14:
                rd(s_ + 3)
                k.e("s_waitcnt lgkmcnt(9)")
            else:
                k.e(f"s_waitcnt lgkmcnt({3*(13-s_)})")
            a = VAF + 4 * (s_ % 4)
            b = VBF + 4 * (s_ % 4)
            k.mfma(ACC, b, a, "0" if (c == 0 and s_ == 0) else ACC)
        if c + 1 < 8:
            k.e("s_waitcnt vmcnt(0)")
            l_writes(buf ^ 1)
            if c + 2 < 8:
                g_loads()
            k.e("s_waitcnt lgkmcnt(0)")
            k.e("s_barrier")
    k.e("s_lshl_b32 s41, s30, 6")
    k.e("s_add_u32 s41, s41, s40")
    k.e("v_add_u32 v23, s41, v25")
    k.e("s_movk_i32 s45, 896")
    k.e("v_mul_u32_u24 v23, s45, v23")
    k.e("v_lshl_add_u32 v23, v26, 3, v23")
    k.e("s_lshl_b32 s42, s31, 7")
    k.e("s_and_b32 s43, s3, 1")
    k.e("s_lshl_b32 s43, s43, 6")
    k.e("s_add_u32 s42, s42, s43")
    for g in range(4):
        k.e(f"buffer_load_dwordx2 v[{28+2*g}:{29+2*g}], v23, s[24:27], s42 offen offset:{16*g}")
    k.nop(16)
    k.e("s_waitcnt vmcnt(0)")
    for g in range(4):
        for h in range(2):
            src = 28 + 2 * g + h
            k.e(f"v_lshlrev_b32 v36, 16, v{src}")
            k.e(f"v_and_b32 v37, 0xffff0000, v{src}")
            k.e(f"v_add_f32 v36, v36, v{ACC+4*g+2*h}")
            k.e(f"v_add_f32 v37, v37, v{ACC+4*g+2*h+1}")
            k.e(f"v_cvt_pk_bf16_f32 v{src}, v36, v37")
    for g in range(4):
        k.e(f"buffer_store_dwordx2 v[{28+2*g}:{29+2*g}], v23, s[16:19], s42 offen offset:{16*g}")
    finish(k)
    return k


HEADER = open("cdna_kernels/" + NAME + ".s.ref").read().split("; Override")[0]


def build(nk=5):
    ks = [(gen_k1(), 256, 4 * A_WAVE, 256), (gen_k2(), 256, 3 * (256 * 80 + 32 * 528) + 64, 512), (gen_k3(), 224, 4 * A_WAVE, 256),
          (gen_k4(), 224, 4 * A_WAVE, 256), (gen_k5(), 224, 2 * (64 * 464 + 28672), 256)][:nk]
    out = [HEADER.rstrip("\n")]
    for k, g, lds, blk in ks:
        out.append(f"; @launch kernel={k.name} grid=({g},1,1) block=({blk},1,1) lds={lds}")
    out.append('.amdgcn_target "amdgcn-amd-amdhsa--gfx950"')
    out.append(".text")
    for k, g, lds, blk in ks:
        out.append(f".globl {k.name}")
        out.append(".p2align 8")
        out.append(f".type {k.name},@function")
        out.append(f"{k.name}:")
        out += [l for l in k.L if l is not None]
    out.append('.section .rodata,"a"')
    for k, g, lds, blk in ks:
        out.append(".p2align 6")
        out.append(f".amdhsa_kernel {k.name}")
        out.append("  .amdhsa_next_free_vgpr 256")
        out.append("  .amdhsa_next_free_sgpr 102")
        out.append("  .amdhsa_accum_offset 256")
        out.append("  .amdhsa_group_segment_fixed_size 0")
        out.append("  .amdhsa_kernarg_size 80")
        out.append("  .amdhsa_user_sgpr_count 2")
        out.append("  .amdhsa_user_sgpr_kernarg_segment_ptr 1")
        out.append("  .amdhsa_system_sgpr_workgroup_id_x 1")
        out.append(".end_amdhsa_kernel")
    return "\n".join(out) + "\n"


if __name__ == "__main__":
    txt = build()
    open(OUT or ("cdna_kernels/" + NAME + ".s"), "w").write(txt)
    print("written", len(txt))
```

```python
import math, sys, os
STAMP = int(os.environ.get("STAMP", "0"))
EXPT = int(os.environ.get("EXPT", "0"))
OFRAG = False
OUT = os.environ.get("OUT", "")

NAME = "sequential_preLN__softmax_full_mha__geglu_ffn__prompt"
S, D, H, DH, F = 2048, 448, 16, 28, 1792
WS_Q, WS_K, WS_V, WS_O, WS_H, WS_ACT = 0x0, 0x200000, 0x400000, 0x600000, 0x800000, 0xA00000
WS_SIZE = 268435456


def f2u(x):
    import struct
    return struct.unpack("<I", struct.pack("<f", x))[0]


class K:
    def __init__(s, name):
        s.name = name
        s.L = []
        s.nlab = 0
        s.nst = 0

    def e(s, x):
        s.L.append("    " + x)

    def lab(s, l):
        s.L.append(l + ":")

    def newlab(s, p="L"):
        s.nlab += 1
        return f"{s.name}_{p}{s.nlab}"

    def nop(s, n):
        while n > 0:
            k = min(n, 16)
            s.e(f"s_nop {k-1}")
            n -= k

    def stamp(s):
        if not STAMP:
            return
        i = s.nst
        s.nst += 1
        s.e("s_memtime s[60:61]")
        s.e("s_waitcnt lgkmcnt(0)")
        s.e(f"s_mov_b32 s{64+i}, s60")

    def srd(s, sd, sb, off, nbytes):
        if off:
            s.e(f"s_add_u32 s{sd}, s{sb}, {hex(off)}")
            s.e(f"s_addc_u32 s{sd+1}, s{sb+1}, 0")
        else:
            s.e(f"s_mov_b32 s{sd}, s{sb}")
            s.e(f"s_mov_b32 s{sd+1}, s{sb+1}")
        s.e(f"s_mov_b32 s{sd+2}, {hex(nbytes)}")
        s.e(f"s_mov_b32 s{sd+3}, 0x00020000")

    def mfma(s, d, a, b, c):
        cs = f"v[{c}:{c+15}]" if isinstance(c, int) else c
        s.e(f"v_mfma_f32_32x32x16_bf16 v[{d}:{d+15}], v[{a}:{a+3}], v[{b}:{b+3}], {cs}")


def vr(a, n):
    return f"v[{a}:{a+n-1}]"


VA = 64
VACC0 = 176
VACC1 = 192
VB = 208
VPF = 224
A_STRIDE = 912
A_WAVE = 32 * A_STRIDE
BBUF = 28672


def tmpl_prologue(k, nwg, a_arg, a_off, a_bytes):
    k.e(f"s_cmp_ge_u32 s2, {nwg}")
    k.e(f"s_cbranch_scc1 {k.name}_end")
    k.e(f"s_load_dwordx2 s[4:5], s[0:1], {a_arg}")
    k.e(f"s_load_dwordx2 s[28:29], s[0:1], 72")
    k.e("v_and_b32 v1, 63, v0")
    k.e("v_lshrrev_b32 v2, 6, v0")
    k.e("s_nop 0")
    k.e("v_readfirstlane_b32 s3, v2")
    k.stamp()


def b_loads(k, srd, colbytes_sreg_or_imm, stride):
    if isinstance(colbytes_sreg_or_imm, str):
        k.e(f"s_mov_b32 s40, {colbytes_sreg_or_imm}")
    else:
        k.e(f"s_mov_b32 s40, {hex(colbytes_sreg_or_imm)}")
    for i in range(7):
        k.e(f"buffer_load_dwordx4 {vr(VPF+4*i,4)}, v3, s[{srd}:{srd+3}], s40 offen")
        if i < 6:
            k.e(f"s_add_u32 s40, s40, {hex(64*stride)}")


def b_writes(k, buf):
    for i in range(7):
        k.e(f"ds_write_b128 v4, {vr(VPF+4*i,4)} offset:{buf*BBUF + i*4096}")


def a_stage(k, do_ln):
    k.e("v_lshlrev_b32 v5, 4, v1")
    for i in range(28):
        if i % 4 == 0:
            if i == 0:
                k.e("s_mov_b32 s42, s41")
            else:
                k.e("s_add_u32 s42, s42, 4096")
        k.e(f"buffer_load_dwordx4 {vr(VA+4*i,4)}, v5, s[8:11], s42 offen offset:{(i%4)*1024}")
    k.e(f"s_mul_i32 s43, s3, {A_WAVE}")
    k.e("s_movk_i32 s44, 2341")
    addr_regs = []
    for i in range(28):
        pass
    k.e("s_waitcnt vmcnt(0)")
    k.stamp()
    for i in range(28):
        k.e(f"v_add_u32 v7, {i*64}, v1")
        k.e("v_mul_u32_u24 v8, s44, v7")
        k.e("v_lshrrev_b32 v8, 17, v8")
        k.e("v_add_lshl_u32 v7, v7, v8, 4")
        k.e("v_add_u32 v7, s43, v7")
        k.e(f"ds_write_b128 v7, {vr(VA+4*i,4)}")
    k.e("v_and_b32 v7, 31, v1")
    k.e(f"v_mul_u32_u24 v7, {A_STRIDE}, v7")
    k.e("v_lshrrev_b32 v8, 5, v1")
    k.e("v_lshl_add_u32 v7, v8, 4, v7")
    k.e("v_add_u32 v7, s43, v7")
    k.e("s_waitcnt lgkmcnt(0)")
    for s_ in range(28):
        k.e(f"ds_read_b128 {vr(VA+4*s_,4)}, v7 offset:{32*s_}")
    k.e("s_waitcnt lgkmcnt(0)")
    k.stamp()


def a_ln(k):
    k.e("s_mov_b32 s44, 0x3f803f80")
    for r in (8, 9, 10, 11):
        k.e(f"v_mov_b32 v{r}, 0")
    for r in range(112):
        k.e(f"v_dot2_f32_bf16 v{8+(r&1)}, v{VA+r}, s44, v{8+(r&1)}")
        k.e(f"v_dot2_f32_bf16 v{10+(r&1)}, v{VA+r}, v{VA+r}, v{10+(r&1)}")
    k.e("s_nop 1")
    k.e("v_add_f32 v8, v8, v9")
    k.e("v_add_f32 v10, v10, v11")
    k.e("s_nop 0")
    k.e("v_mov_b32 v9, v8")
    k.e("v_mov_b32 v11, v10")
    k.e("s_nop 1")
    k.e("v_permlane32_swap_b32 v8, v9")
    k.e("v_permlane32_swap_b32 v10, v11")
    k.e("s_nop 1")
    k.e("v_add_f32 v8, v8, v9")
    k.e("v_add_f32 v10, v10, v11")
    k.e(f"s_mov_b32 s44, {hex(f2u(1.0/448))}")
    k.e("v_mul_f32 v8, s44, v8")
    k.e("v_mul_f32 v10, s44, v10")
    k.e("v_fma_f32 v10, -v8, v8, v10")
    k.e("v_max_f32 v10, 0, v10")
    k.e(f"v_add_f32 v10, {hex(f2u(1e-5))}, v10")
    k.e("v_rsq_f32 v12, v10")
    k.e("s_nop 0")
    k.e("v_mov_b32 v13, v12")
    k.e("v_mul_f32 v14, v8, v12")
    k.e("v_sub_f32 v14, 0, v14")
    k.e("v_mov_b32 v15, v14")
    for r in range(112):
        t = 16 + 2 * (r & 1)
        k.e(f"v_lshlrev_b32 v{t}, 16, v{VA+r}")
        k.e(f"v_and_b32 v{t+1}, 0xffff0000, v{VA+r}")
        k.e(f"v_pk_fma_f32 v[{t}:{t+1}], v[{t}:{t+1}], v[12:13], v[14:15]")
        k.e(f"v_cvt_pk_bf16_f32 v{VA+r}, v{t}, v{t+1}")
    k.stamp()


def chunk_mfma(k, buf, acc, w_first):
    def rd(s_):
        b = VB + 4 * (s_ % 4)
        k.e(f"ds_read_b64_tr_b16 v[{b}:{b+1}], v21 offset:{buf*BBUF + 1024*s_}")
        k.e(f"ds_read_b64_tr_b16 v[{b+2}:{b+3}], v21 offset:{buf*BBUF + 1024*s_ + 256}")
    for s_ in range(3):
        rd(s_)
    for s_ in range(28):
        if s_ + 3 < 28:
            rd(s_ + 3)
            k.e("s_waitcnt lgkmcnt(6)")
        else:
            k.e(f"s_waitcnt lgkmcnt({2*(27-s_)})")
        b = VB + 4 * (s_ % 4)
        a = VA + 4 * s_
        c = "0" if s_ == 0 else acc
        if w_first:
            k.mfma(acc, b, a, c)
        else:
            k.mfma(acc, a, b, c)
    k.stamp()


def tr_addr(k):
    k.e("v_lshrrev_b32 v22, 5, v1")
    k.e("v_lshlrev_b32 v21, 9, v22")
    k.e("v_bfe_u32 v22, v1, 2, 2")
    k.e("v_lshl_add_u32 v21, v22, 6, v21")
    k.e("v_bfe_u32 v22, v1, 4, 1")
    k.e("v_lshl_add_u32 v21, v22, 5, v21")
    k.e("v_and_b32 v22, 3, v1")
    k.e("v_lshl_add_u32 v21, v22, 3, v21")


def b_thread_addr(k, stride):
    k.e("v_lshrrev_b32 v3, 2, v0")
    k.e(f"s_movk_i32 s44, {stride}" if stride < 32768 else f"s_mov_b32 s44, {stride}")
    k.e("v_mul_u32_u24 v3, s44, v3")
    k.e("v_and_b32 v4, 3, v0")
    k.e("v_lshl_add_u32 v3, v4, 4, v3")
    k.e("v_lshlrev_b32 v4, 4, v0")


def finish(k):
    if STAMP and k.nst:
        k.stamp()
        k.e("s_cmp_lg_u32 s2, 0")
        k.e(f"s_cbranch_scc1 {k.name}_end")
        k.e("s_cmp_lg_u32 s3, 0")
        k.e(f"s_cbranch_scc1 {k.name}_end")
        k.e("s_load_dwordx2 s[60:61], s[0:1], 64")
        k.e("s_waitcnt lgkmcnt(0)")
        k.srd(56, 60, 0, 256)
        k.e("s_mov_b64 exec, -1")
        k.e("v_mov_b32 v1, 0")
        for i in range(k.nst):
            k.e(f"s_sub_u32 s63, s{64+i}, s64")
            k.e("v_mov_b32 v2, s63")
            k.e(f"buffer_store_dword v2, v1, s[56:59], 0 offen offset:{4*i}")
    k.lab(f"{k.name}_end")
    k.e("s_endpgm")


def gen_k1():
    k = K("k1_qkv_kernel")
    tmpl_prologue(k, 256, 0, 0, 0)
    k.e("s_load_dwordx2 s[6:7], s[0:1], 8")
    k.e("s_and_b32 s30, s2, 15")
    k.e("s_lshr_b32 s31, s2, 4")
    k.e("s_waitcnt lgkmcnt(0)")
    k.srd(8, 4, 0, S * D * 2)
    k.srd(12, 6, 0, D * 3 * D * 2)
    k.e("s_lshl_b32 s32, s31, 17")
    k.e("s_add_u32 s16, s28, s32")
    k.e("s_addc_u32 s17, s29, 0")
    k.e(f"s_mov_b32 s18, {hex(0x400000 + 0x20000)}")
    k.e("s_mov_b32 s19, 0x00020000")
    b_thread_addr(k, 2688)
    tr_addr(k)
    k.e("s_mul_i32 s33, s31, 56")
    b_loads(k, 12, "s33", 2688)
    k.e("s_lshl_b32 s41, s30, 2")
    k.e("s_add_u32 s41, s41, s3")
    k.e("s_lshl_b32 s34, s41, 5")
    k.e(f"s_mul_i32 s41, s41, {32*896}")
    a_stage(k, True)
    k.e("s_barrier")
    b_writes(k, 0)
    k.e("s_add_u32 s35, s33, 896")
    b_loads(k, 12, "s35", 2688)
    a_ln(k)
    k.e("v_and_b32 v25, 31, v1")
    k.e("v_lshrrev_b32 v26, 5, v1")
    k.e("v_add_u32 v23, s34, v25")
    k.e("v_lshlrev_b32 v23, 6, v23")
    k.e("v_lshl_add_u32 v23, v26, 3, v23")
    k.e("v_lshlrev_b32 v24, 12, v25")
    k.e("v_lshl_add_u32 v24, v26, 4, v24")
    k.e("s_lshl_b32 s36, s34, 1")
    k.e("v_add_u32 v24, s36, v24")
    k.e("s_waitcnt lgkmcnt(0)")
    k.e("s_barrier")
    for c in range(3):
        chunk_mfma(k, c & 1, VACC0, w_first=(c < 2))
        if c < 2:
            k.e("s_waitcnt vmcnt(0)")
            b_writes(k, (c + 1) & 1)
            if c == 0:
                k.e("s_add_u32 s35, s33, 1792")
                b_loads(k, 12, "s35", 2688)
        k.nop(16)
        if c < 2:
            k.e("v_cmp_gt_u32 vcc, 32, v1")
            k.e("s_nop 1")
            if c == 0:
                k.e(f"s_mov_b32 s37, {hex(f2u(DH ** -0.5 * math.log2(math.e)))}")
                for r in range(16):
                    k.e(f"v_mul_f32 v{VACC0+r}, s37, v{VACC0+r}")
            for r in range(12, 16):
                pad = "1.0" if (c == 1 and r == 12) else "0"
                k.e(f"v_cndmask_b32 v{VACC0+r}, {pad}, v{VACC0+r}, vcc")
            for g in range(4):
                k.e(f"v_cvt_pk_bf16_f32 v{28+2*g}, v{VACC0+4*g}, v{VACC0+4*g+1}")
                k.e(f"v_cvt_pk_bf16_f32 v{29+2*g}, v{VACC0+4*g+2}, v{VACC0+4*g+3}")
            k.e(f"s_mov_b32 s37, {hex(c*0x200000)}")
            for g in range(4):
                k.e(f"buffer_store_dwordx2 v[{28+2*g}:{29+2*g}], v23, s[16:19], s37 offen offset:{16*g}")
        else:
            k.e("v_cmp_gt_u32 vcc, 28, v25")
            k.e("v_cmp_eq_u32 s[38:39], 28, v25")
            k.e("v_cndmask_b32 v27, 0, 1.0, s[38:39]")
            k.e("s_nop 1")
            for r in range(16):
                k.e(f"v_cndmask_b32 v{VACC0+r}, v27, v{VACC0+r}, vcc")
            for r in range(8):
                k.e(f"v_cvt_pk_bf16_f32 v{28+r}, v{VACC0+2*r}, v{VACC0+2*r+1}")
            k.e("s_mov_b32 s37, 0x400000")
            for G in range(2):
                k.e(f"buffer_store_dwordx4 v[{28+4*G}:{31+4*G}], v24, s[16:19], s37 offen offset:{32*G}")
        if c < 2:
            k.e("s_waitcnt lgkmcnt(0)")
            k.e("s_barrier")
    finish(k)
    return k


def gen_k2():
    k = K("k2_attn_kernel")
    VQ = 8
    VS = 64
    VO = 128
    VP = 144
    VKF = 176
    VVF = 192
    VPFK = 224
    VPFV = 232
    KB = 256 * 80
    VST = 528
    VBS = 32 * VST
    BUF = KB + VBS
    T = 6.0
    k.e("s_cmp_ge_u32 s2, 256")
    k.e(f"s_cbranch_scc1 {k.name}_end")
    k.e("s_load_dwordx2 s[28:29], s[0:1], 72")
    k.e("v_and_b32 v1, 63, v0")
    k.e("v_lshrrev_b32 v2, 6, v0")
    k.e("s_and_b32 s30, s2, 15")
    k.e("s_lshr_b32 s31, s2, 4")
    k.e("v_readfirstlane_b32 s3, v2")
    k.e("s_lshl_b32 s32, s31, 17")
    k.e("s_and_b32 s33, s3, 3")
    k.e("s_lshr_b32 s44, s3, 2")
    k.e("s_waitcnt lgkmcnt(0)")
    k.e("s_add_u32 s8, s28, s32")
    k.e("s_addc_u32 s9, s29, 0")
    k.e(f"s_mov_b32 s10, {hex(0x400000 + 0x20000)}")
    k.e("s_mov_b32 s11, 0x00020000")
    k.srd(16, 28, WS_O, 64 * 32 * 1024 if OFRAG else S * D * 2)
    k.e("s_lshl_b32 s34, s30, 2")
    k.e("s_add_u32 s34, s34, s33")
    k.e("s_lshl_b32 s34, s34, 5")
    k.e("v_and_b32 v25, 31, v1")
    k.e("v_lshrrev_b32 v26, 5, v1")
    k.e("v_add_u32 v3, s34, v25")
    k.e("v_lshlrev_b32 v3, 6, v3")
    k.e("v_lshl_add_u32 v3, v26, 4, v3")
    k.e("buffer_load_dwordx4 v[8:11], v3, s[8:11], 0 offen")
    k.e("buffer_load_dwordx4 v[12:15], v3, s[8:11], 0 offen offset:32")
    k.e("v_lshlrev_b32 v4, 4, v0")
    k.e("v_lshrrev_b32 v5, 2, v0")
    k.e("v_mul_u32_u24 v5, 80, v5")
    k.e("v_and_b32 v6, 3, v0")
    k.e("v_lshl_add_u32 v5, v6, 4, v5")
    k.e("v_lshrrev_b32 v6, 5, v0")
    k.e("v_and_b32 v7, 31, v0")
    k.e("v_lshlrev_b32 v16, 12, v6")
    k.e("v_lshl_add_u32 v16, v7, 4, v16")
    k.e(f"v_mul_u32_u24 v17, {VST}, v6")
    k.e("v_lshl_add_u32 v17, v7, 4, v17")
    k.e(f"v_add_u32 v17, {KB}, v17")
    k.e("v_mul_u32_u24 v18, 80, v25")
    k.e("v_lshl_add_u32 v18, v26, 4, v18")
    k.e(f"s_mul_i32 s45, s44, {128*80}")
    k.e("v_add_u32 v18, s45, v18")
    k.e(f"v_mul_u32_u24 v19, {VST}, v25")
    k.e("v_lshl_add_u32 v19, v26, 4, v19")
    k.e("s_lshl_b32 s45, s44, 8")
    k.e(f"s_add_u32 s45, s45, {KB}")
    k.e("v_add_u32 v19, s45, v19")
    k.e("s_mov_b32 s46, 0")
    k.e("s_mov_b32 s47, -1")

    def g_loads():
        k.e(f"buffer_load_dwordx4 {vr(VPFK,4)}, v4, s[8:11], s35 offen")
        k.e(f"s_add_u32 s37, s35, 8192")
        k.e(f"buffer_load_dwordx4 {vr(VPFK+4,4)}, v4, s[8:11], s37 offen")
        k.e(f"buffer_load_dwordx4 {vr(VPFV,4)}, v16, s[8:11], s36 offen")
        k.e(f"s_add_u32 s37, s36, 0x10000")
        k.e(f"buffer_load_dwordx4 {vr(VPFV+4,4)}, v16, s[8:11], s37 offen")
        k.e("s_add_u32 s35, s35, 16384")
        k.e("s_add_u32 s36, s36, 512")

    def l_writes(buf):
        k.e(f"ds_write_b128 v5, {vr(VPFK,4)} offset:{buf*BUF}")
        k.e(f"ds_write_b128 v5, {vr(VPFK+4,4)} offset:{buf*BUF + 128*80}")
        k.e(f"ds_write_b128 v17, {vr(VPFV,4)} offset:{buf*BUF}")
        k.e(f"ds_write_b128 v17, {vr(VPFV+4,4)} offset:{buf*BUF + 16*VST}")

    def chunk(buf, first):
        for kt in range(4):
            kf = VKF + 8 * (kt & 1)
            k.e(f"ds_read_b128 {vr(kf,4)}, v18 offset:{buf*BUF + kt*32*80}")
            k.e(f"ds_read_b128 {vr(kf+4,4)}, v18 offset:{buf*BUF + kt*32*80 + 32}")
            if kt >= 1:
                pk = VKF + 8 * ((kt - 1) & 1)
                k.e("s_waitcnt lgkmcnt(2)")
                k.mfma(VS + 16 * (kt - 1), pk, VQ, "0")
                k.mfma(VS + 16 * (kt - 1), pk + 4, VQ + 4, VS + 16 * (kt - 1))
        k.e("s_waitcnt lgkmcnt(0)")
        k.mfma(VS + 48, VKF + 8, VQ, "0")
        k.mfma(VS + 48, VKF + 12, VQ + 4, VS + 48)
        for kt in range(4):
            for G in range(2):
                k.e(f"ds_read_b128 {vr(VVF+4*(2*kt+G),4)}, v19 offset:{buf*BUF + (kt*32+16*G)*2}")
        k.nop(12)
        k.e(f"v_max3_f32 v21, v{VS}, v{VS+1}, v{VS+2}")
        for i in range(3, 63, 2):
            k.e(f"v_max3_f32 v21, v21, v{VS+i}, v{VS+i+1}")
        k.e(f"v_max_f32 v21, v21, v{VS+63}")
        fast = k.newlab("fast")
        if not first:
            k.e("v_cmp_lt_f32 vcc, s38, v21")
            k.e(f"s_cbranch_vccz {fast}")
        k.e("v_mov_b32 v22, v21")
        k.e("s_nop 1")
        k.e("v_permlane32_swap_b32 v21, v22")
        k.e("s_nop 1")
        k.e("v_max_f32 v21, v21, v22")
        if not first:
            k.e("v_max_f32 v21, 0, v21")
        k.e("v_add_f32 v22, v20, v21")
        k.e("v_cvt_pk_bf16_f32 v23, v22, v22")
        k.e("v_lshlrev_b32 v22, 16, v23")
        k.e("v_sub_f32 v21, v22, v20")
        k.e("v_mov_b32 v20, v22")
        for i in range(64):
            k.e(f"v_sub_f32 v{VS+i}, v{VS+i}, v21")
        if not first:
            k.e("v_exp_f32 v24, -v21")
            k.e("s_nop 0")
            for r in range(16):
                k.e(f"v_mul_f32 v{VO+r}, v{VO+r}, v24")
        k.e("v_xor_b32 v23, 0x8000, v23")
        k.e("v_and_b32 v23, 0xffff, v23")
        k.e(f"v_cndmask_b32 v{VQ+6}, v{VQ+6}, v23, s[46:47]")
        k.lab(fast)
        for i in range(64):
            k.e(f"v_exp_f32 v{VS+i}, v{VS+i}")
        k.e("s_nop 0")
        for i in range(32):
            k.e(f"v_cvt_pk_bf16_f32 v{VP+i}, v{VS+2*i}, v{VS+2*i+1}")
        k.e("s_waitcnt lgkmcnt(0)")
        k.e("s_nop 1")
        for kt in range(4):
            for G in range(2):
                j = 2 * kt + G
                k.mfma(VO, VVF + 4 * j, VP + 4 * j, VO)
        k.e("s_waitcnt vmcnt(0)")
        l_writes(buf ^ 1)
        skip = k.newlab("skip")
        k.e(f"s_cmp_ge_u32 s35, {hex(0x200000 + 8*16384)}")
        k.e(f"s_cbranch_scc1 {skip}")
        g_loads()
        k.lab(skip)
        k.e("s_waitcnt lgkmcnt(0)")
        k.e("s_barrier")

    FS = [64, 80]
    FP = [96, 104]
    FK = [112, 120]
    FV = [128, 136]
    FO = 144
    FPF0 = 160
    FLAG = 3 * BUF

    def fg_loads(c):
        FPF = FPF0 + 16 * (c & 1)
        k.e(f"buffer_load_dwordx4 {vr(FPF,4)}, v4, s[8:11], s35 offen")
        k.e(f"s_add_u32 s37, s35, 8192")
        k.e(f"buffer_load_dwordx4 {vr(FPF+4,4)}, v4, s[8:11], s37 offen")
        k.e(f"buffer_load_dwordx4 {vr(FPF+8,4)}, v16, s[8:11], s36 offen")
        k.e(f"s_add_u32 s37, s36, 0x10000")
        k.e(f"buffer_load_dwordx4 {vr(FPF+12,4)}, v16, s[8:11], s37 offen")
        k.e("s_add_u32 s35, s35, 16384")
        k.e("s_add_u32 s36, s36, 512")

    k.e(f"v_add_u32 v40, {2*BUF}, v5")
    k.e(f"v_add_u32 v41, {2*BUF}, v17")
    k.e(f"v_add_u32 v42, {2*BUF}, v18")
    k.e(f"v_add_u32 v43, {2*BUF}, v19")

    def fl_writes(c):
        buf = c % 3
        FPF = FPF0 + 16 * (c & 1)
        a, b, o = ("v5", "v17", buf * BUF) if buf < 2 else ("v40", "v41", 0)
        k.e(f"ds_write_b128 {a}, {vr(FPF,4)} offset:{o}")
        k.e(f"ds_write_b128 {a}, {vr(FPF+4,4)} offset:{o + 128*80}")
        k.e(f"ds_write_b128 {b}, {vr(FPF+8,4)} offset:{o}")
        k.e(f"ds_write_b128 {b}, {vr(FPF+12,4)} offset:{o + 16*VST}")

    def rdK(t):
        c, kt = t >> 2, t & 3
        kf = FK[t & 1]
        a, o = ("v18", (c % 3) * BUF) if c % 3 < 2 else ("v42", 0)
        k.e(f"ds_read_b128 {vr(kf,4)}, {a} offset:{o + kt*32*80}")
        k.e(f"ds_read_b128 {vr(kf+4,4)}, {a} offset:{o + kt*32*80 + 32}")

    def rdV(t):
        c, kt = t >> 2, t & 3
        vf = FV[t & 1]
        for G in range(2):
            a, o = ("v19", (c % 3) * BUF) if c % 3 < 2 else ("v43", 0)
            k.e(f"ds_read_b128 {vr(vf+4*G,4)}, {a} offset:{o + (kt*32+16*G)*2}")

    k.stamp()
    k.e("s_mov_b32 s35, 0x200000")
    k.e("s_mov_b32 s36, 0x400000")
    fg_loads(0)
    fg_loads(1)
    k.e("s_waitcnt vmcnt(4)")
    k.stamp()
    fl_writes(0)
    fg_loads(2)
    k.e("s_waitcnt vmcnt(4)")
    fl_writes(1)
    fg_loads(3)
    k.e("s_waitcnt lgkmcnt(0)")
    k.e("s_barrier")
    for kt in range(4):
        k.e(f"ds_read_b128 {vr(128+8*kt,4)}, v18 offset:{kt*32*80}")
        k.e(f"ds_read_b128 {vr(132+8*kt,4)}, v18 offset:{kt*32*80 + 32}")
    for kt in range(4):
        k.e(f"s_waitcnt lgkmcnt({6-2*kt})")
        k.mfma(64 + 16 * kt, 128 + 8 * kt, VQ, "0")
        k.mfma(64 + 16 * kt, 132 + 8 * kt, VQ + 4, 64 + 16 * kt)
    rdK(0)
    rdK(1)
    k.nop(12)
    k.e("v_max3_f32 v21, v64, v65, v66")
    for i in range(3, 63, 2):
        k.e(f"v_max3_f32 v21, v21, v{64+i}, v{64+i+1}")
    k.e("v_max_f32 v21, v21, v127")
    k.e("v_mov_b32 v22, v21")
    k.e("s_nop 1")
    k.e("v_permlane32_swap_b32 v21, v22")
    k.e("s_nop 1")
    k.e("v_max_f32 v21, v21, v22")
    k.e("v_cvt_pk_bf16_f32 v23, v21, v21")
    k.e("v_lshlrev_b32 v20, 16, v23")
    k.e("v_xor_b32 v23, 0x8000, v23")
    k.e("v_and_b32 v23, 0xffff, v23")
    k.e(f"v_cndmask_b32 v{VQ+6}, v{VQ+6}, v23, s[46:47]")
    k.e("s_waitcnt lgkmcnt(0)")
    k.e("s_nop 1")
    k.mfma(FS[0], FK[0], VQ, "0")
    k.mfma(FS[0], FK[0] + 4, VQ + 4, FS[0])
    k.nop(16)
    NT = 32
    for t in range(NT):
        c, kt = t >> 2, t & 3
        if kt == 0:
            k.stamp()
        if kt == 1 and EXPT != 6:
            k.e("s_barrier")
        nrd = 0
        if EXPT != 4:
            if t + 2 < NT:
                rdK(t + 2); nrd += 2
            rdV(t); nrd += 2
            k.e(f"s_waitcnt lgkmcnt({nrd})")
        if EXPT == 7:
            sv_mfma = k.mfma
            k.mfma = lambda *a: None
        s = FS[t & 1]
        sn = FS[(t + 1) & 1]
        p = FP[t & 1]
        pp = FP[(t - 1) & 1]
        kf = FK[(t + 1) & 1]
        vf = FV[(t - 1) & 1]
        def ex(a, b):
            for i in range(a, b):
                if EXPT == 1:
                    k.e(f"v_mul_f32 v{s+i}, v{s+i}, v{s+i}")
                elif EXPT in (2, 4, 5, 6):
                    pass
                else:
                    k.e(f"v_exp_f32 v{s+i}, v{s+i}")
        def cv(a, b):
            for i in range(a, b):
                if EXPT not in (3, 5):
                    k.e(f"v_cvt_pk_bf16_f32 v{p+i}, v{s+2*i}, v{s+2*i+1}")
        if t + 1 < NT:
            k.mfma(sn, kf, VQ, "0")
        ex(0, 4)
        if t + 1 < NT:
            k.mfma(sn, kf + 4, VQ + 4, sn)
        ex(4, 8)
        cv(0, 2)
        if t >= 1:
            k.mfma(FO, vf, pp, "0" if t == 1 else FO)
        ex(8, 12)
        cv(2, 4)
        if t >= 1:
            k.mfma(FO, vf + 4, pp + 4, FO)
        ex(12, 16)
        cv(4, 8)
        if EXPT == 7:
            k.mfma = sv_mfma
        if kt == 2 and c + 2 < 8 and EXPT != 6:
            k.e(f"s_waitcnt vmcnt({4 if c + 3 < 8 else 0})")
            fl_writes(c + 2)
            if c + 4 < 8:
                fg_loads(c + 4)
    k.stamp()
    k.e("s_waitcnt lgkmcnt(0)")
    k.e("s_nop 1")
    k.mfma(FO, FV[(NT - 1) & 1], FP[(NT - 1) & 1], FO)
    k.mfma(FO, FV[(NT - 1) & 1] + 4, FP[(NT - 1) & 1] + 4, FO)
    k.nop(16)
    for r in range(16):
        k.e(f"v_mov_b32 v{VO+r}, v{FO+r}") if VO != FO else None
    k.e(f"s_mov_b32 s38, {hex(f2u(2.0**40))}")
    k.e(f"v_cmp_nlt_f32 vcc, v{FO+12}, s38")
    k.e("s_and_b64 vcc, vcc, s[46:47]")
    k.e("s_cmp_lg_u64 vcc, 0")
    k.e("s_cselect_b32 s38, 1, 0")
    k.e("v_mov_b32 v21, s38")
    k.e("v_lshlrev_b32 v22, 2, v2")
    k.e(f"v_add_u32 v22, {FLAG}, v22")
    k.e(f"ds_write_b32 v22, v21")
    k.e("s_waitcnt lgkmcnt(0)")
    k.e("s_barrier")
    k.e("v_and_b32 v22, 7, v1")
    k.e("v_lshlrev_b32 v22, 2, v22")
    k.e(f"v_add_u32 v22, {FLAG}, v22")
    k.e(f"ds_read_b32 v21, v22")
    k.e("s_waitcnt lgkmcnt(0)")
    k.e("v_cmp_ne_u32 vcc, 0, v21")
    combine = k.newlab("combine")
    k.e(f"s_cbranch_vccz {combine}")
    k.e(f"v_cndmask_b32 v{VQ+6}, v{VQ+6}, 0, s[46:47]")
    k.e("s_barrier")
    k.e("s_mov_b32 s35, 0x200000")
    k.e("s_mov_b32 s36, 0x400000")
    g_loads()
    for r in range(16):
        k.e(f"v_mov_b32 v{VO+r}, 0")
    k.e("v_mov_b32 v20, 0")
    k.e(f"s_mov_b32 s38, {hex(f2u(T))}")
    k.e("s_waitcnt vmcnt(0)")
    l_writes(0)
    g_loads()
    k.e("s_waitcnt lgkmcnt(0)")
    k.e("s_barrier")
    chunk(0, True)
    chunk(1, False)
    k.e("s_mov_b32 s39, 0")
    loop = k.newlab("loop")
    k.lab(loop)
    chunk(0, False)
    chunk(1, False)
    k.e("s_add_u32 s39, s39, 1")
    k.e("s_cmp_lt_u32 s39, 3")
    k.e(f"s_cbranch_scc1 {loop}")
    k.nop(16)
    k.lab(combine)
    k.e("v_lshlrev_b32 v3, 2, v1")
    k.e(f"s_mul_i32 s45, s33, {17*256}")
    k.e("v_add_u32 v3, s45, v3")
    up = k.newlab("up")
    k.e("s_cmp_eq_u32 s44, 0")
    k.e(f"s_cbranch_scc1 {up}")
    for r in range(16):
        k.e(f"ds_write_b32 v3, v{VO+r} offset:{256*r}")
    k.e(f"ds_write_b32 v3, v20 offset:{256*16}")
    k.e("s_waitcnt lgkmcnt(0)")
    k.e("s_barrier")
    k.e("s_endpgm")
    k.lab(up)
    k.e("s_barrier")
    for r in range(16):
        k.e(f"ds_read_b32 v{VS+r}, v3 offset:{256*r}")
    k.e(f"ds_read_b32 v{VS+16}, v3 offset:{256*16}")
    k.e("s_waitcnt lgkmcnt(0)")
    k.e(f"v_max_f32 v21, v20, v{VS+16}")
    k.e("v_sub_f32 v22, v20, v21")
    k.e(f"v_sub_f32 v23, v{VS+16}, v21")
    k.e("v_exp_f32 v22, v22")
    k.e("v_exp_f32 v23, v23")
    k.e("s_nop 0")
    for r in range(16):
        k.e(f"v_mul_f32 v{VO+r}, v{VO+r}, v22")
        k.e(f"v_fma_f32 v{VO+r}, v{VS+r}, v23, v{VO+r}")
    k.e("s_nop 0")
    k.e(f"v_mov_b32 v21, v{VO+12}")
    k.e(f"v_mov_b32 v22, v{VO+12}")
    k.e("s_nop 1")
    k.e("v_permlane32_swap_b32 v21, v22")
    k.e("s_nop 1")
    k.e("v_rcp_f32 v22, v22")
    k.e("s_nop 0")
    for r in range(16):
        k.e(f"v_mul_f32 v{VO+r}, v{VO+r}, v22")
    if OFRAG:
        for r in range(12, 16):
            k.e(f"v_cndmask_b32 v{VO+r}, v{VO+r}, 0, s[46:47]")
    for g in range(4):
        k.e(f"v_cvt_pk_bf16_f32 v{28+2*g}, v{VO+4*g}, v{VO+4*g+1}")
        k.e(f"v_cvt_pk_bf16_f32 v{29+2*g}, v{VO+4*g+2}, v{VO+4*g+3}")
    if OFRAG:
        k.e("v_lshlrev_b32 v3, 4, v1")
        k.e("s_lshr_b32 s40, s34, 5")
        k.e("s_lshl_b32 s40, s40, 5")
        k.e("s_lshl_b32 s41, s31, 1")
        k.e("s_add_u32 s40, s40, s41")
        k.e("s_lshl_b32 s40, s40, 10")
        for g in range(2):
            k.e(f"buffer_store_dwordx4 v[{28+4*g}:{31+4*g}], v3, s[16:19], s40 offen offset:{1024*g}")
        finish(k)
        return k
    k.e("v_add_u32 v3, s34, v25")
    k.e("s_movk_i32 s40, 896")
    k.e("v_mul_u32_u24 v3, s40, v3")
    k.e("v_lshl_add_u32 v3, v26, 3, v3")
    k.e("s_mul_i32 s40, s31, 56")
    for g in range(3):
        k.e(f"buffer_store_dwordx2 v[{28+2*g}:{29+2*g}], v3, s[16:19], s40 offen offset:{16*g}")
    k.e("v_cmp_gt_u32 vcc, 32, v1")
    k.e("s_and_saveexec_b64 s[42:43], vcc")
    k.e(f"buffer_store_dwordx2 v[34:35], v3, s[16:19], s40 offen offset:48")
    finish(k)
    return k


def gen_k3():
    k = K("k3_wo_kernel")
    tmpl_prologue(k, 224, 72, 0, 0)
    k.e("s_load_dwordx2 s[6:7], s[0:1], 16")
    k.e("s_load_dwordx2 s[20:21], s[0:1], 0")
    k.e("s_and_b32 s30, s2, 15")
    k.e("s_lshr_b32 s31, s2, 4")
    k.e("s_waitcnt lgkmcnt(0)")
    k.srd(8, 4, WS_O, S * D * 2)
    k.srd(12, 6, 0, D * D * 2)
    k.srd(16, 28, WS_H, S * D * 2)
    k.srd(24, 20, 0, S * D * 2)
    b_thread_addr(k, 896)
    tr_addr(k)
    k.e("s_lshl_b32 s33, s31, 6")
    b_loads(k, 12, "s33", 896)
    k.e("s_lshl_b32 s41, s30, 2")
    k.e("s_add_u32 s41, s41, s3")
    k.e("s_lshl_b32 s34, s41, 5")
    k.e(f"s_mul_i32 s41, s41, {32*896}")
    a_stage(k, False)
    k.e("s_barrier")
    b_writes(k, 0)
    k.e("v_and_b32 v25, 31, v1")
    k.e("v_lshrrev_b32 v26, 5, v1")
    k.e("v_add_u32 v23, s34, v25")
    k.e("s_movk_i32 s40, 896")
    k.e("v_mul_u32_u24 v23, s40, v23")
    k.e("v_lshl_add_u32 v23, v26, 3, v23")
    for g in range(4):
        k.e(f"buffer_load_dwordx2 v[{28+2*g}:{29+2*g}], v23, s[24:27], s33 offen offset:{16*g}")
    k.e("s_waitcnt lgkmcnt(0)")
    k.e("s_barrier")
    chunk_mfma(k, 0, VACC0, True)
    k.nop(16)
    k.e("s_waitcnt vmcnt(0)")
    for g in range(4):
        for h in range(2):
            src = 28 + 2 * g + h
            k.e(f"v_lshlrev_b32 v36, 16, v{src}")
            k.e(f"v_and_b32 v37, 0xffff0000, v{src}")
            k.e(f"v_add_f32 v36, v36, v{VACC0+4*g+2*h}")
            k.e(f"v_add_f32 v37, v37, v{VACC0+4*g+2*h+1}")
            k.e(f"v_cvt_pk_bf16_f32 v{src}, v36, v37")
    for g in range(4):
        k.e(f"buffer_store_dwordx2 v[{28+2*g}:{29+2*g}], v23, s[16:19], s33 offen offset:{16*g}")
    finish(k)
    return k


def gen_k4():
    k = K("k4_ffn1_kernel")
    tmpl_prologue(k, 224, 72, 0, 0)
    k.e("s_load_dwordx2 s[6:7], s[0:1], 32")
    k.e("s_load_dwordx2 s[20:21], s[0:1], 40")
    k.e("s_and_b32 s30, s2, 15")
    k.e("s_lshr_b32 s31, s2, 4")
    k.e("s_waitcnt lgkmcnt(0)")
    k.srd(8, 4, WS_H, S * D * 2)
    k.srd(12, 6, 0, D * F * 2)
    k.srd(24, 20, 0, D * F * 2)
    k.srd(16, 28, WS_ACT, S * F * 2)
    b_thread_addr(k, 3584)
    tr_addr(k)
    k.e("s_lshl_b32 s33, s31, 8")
    b_loads(k, 12, "s33", 3584)
    k.e("s_lshl_b32 s41, s30, 2")
    k.e("s_add_u32 s41, s41, s3")
    k.e("s_lshl_b32 s34, s41, 5")
    k.e(f"s_mul_i32 s41, s41, {32*896}")
    a_stage(k, True)
    k.e("s_barrier")
    b_writes(k, 0)
    b_loads(k, 24, "s33", 3584)
    a_ln(k)
    k.e("v_and_b32 v25, 31, v1")
    k.e("v_lshrrev_b32 v26, 5, v1")
    k.e("v_add_u32 v23, s34, v25")
    k.e("s_movk_i32 s40, 3584")
    k.e("v_mul_u32_u24 v23, s40, v23")
    k.e("v_lshl_add_u32 v23, v26, 3, v23")
    c0 = -2.0 * math.log2(math.e) * math.sqrt(2.0 / math.pi)
    c1 = c0 * 0.044715
    k.e(f"s_mov_b32 s45, {hex(f2u(c0))}")
    k.e(f"s_mov_b32 s46, {hex(f2u(c1))}")
    k.e("s_waitcnt lgkmcnt(0)")
    k.e("s_barrier")
    nch = 8
    for c in range(nch):
        acc = VACC0 if c % 2 == 0 else VACC1
        chunk_mfma(k, c & 1, acc, True)
        if c + 1 < nch:
            k.e("s_waitcnt vmcnt(0)")
            b_writes(k, (c + 1) & 1)
            if c + 2 < nch:
                j = (c + 2) // 2
                k.e(f"s_add_u32 s35, s33, {64*j}")
                b_loads(k, 12 if (c + 2) % 2 == 0 else 24, "s35", 3584)
        if c % 2 == 1:
            k.nop(16)
            for r in range(16):
                g_, u_ = VACC0 + r, VACC1 + r
                t = 36 + (r & 3)
                k.e(f"v_mul_f32 v{t}, v{g_}, v{g_}")
                k.e(f"v_fma_f32 v{t}, v{t}, s46, v47")
                k.e(f"v_mul_f32 v{t}, v{t}, v{g_}")
                k.e(f"v_exp_f32 v{t}, v{t}")
                k.e("s_nop 0")
                k.e(f"v_add_f32 v{t}, 1.0, v{t}")
                k.e(f"v_rcp_f32 v{t}, v{t}")
                k.e("s_nop 0")
                k.e(f"v_mul_f32 v{t}, v{t}, v{g_}")
                k.e(f"v_mul_f32 v{g_}, v{t}, v{u_}")
            for g in range(4):
                k.e(f"v_cvt_pk_bf16_f32 v{28+2*g}, v{VACC0+4*g}, v{VACC0+4*g+1}")
                k.e(f"v_cvt_pk_bf16_f32 v{29+2*g}, v{VACC0+4*g+2}, v{VACC0+4*g+3}")
            k.e(f"s_add_u32 s37, s33, {64*(c//2)}")
            for g in range(4):
                k.e(f"buffer_store_dwordx2 v[{28+2*g}:{29+2*g}], v23, s[16:19], s37 offen offset:{16*g}")
        if c + 1 < nch:
            k.e("s_waitcnt lgkmcnt(0)")
            k.e("s_barrier")
        if c == 0:
            k.e("v_mov_b32 v47, s45")
    finish(k)
    return k


def gen_k5():
    k = K("k5_down_kernel")
    AST = 464
    ABUF = 64 * AST
    BB = 2 * 224 * 64
    BUF = ABUF + BB
    VPA = 64
    VPB = 96
    VAF = 128
    VBF = 144
    ACC = 160
    k.e("s_cmp_ge_u32 s2, 224")
    k.e(f"s_cbranch_scc1 {k.name}_end")
    k.e("s_load_dwordx2 s[28:29], s[0:1], 72")
    k.e("s_load_dwordx2 s[6:7], s[0:1], 48")
    k.e("s_load_dwordx2 s[20:21], s[0:1], 56")
    k.e("v_and_b32 v1, 63, v0")
    k.e("v_lshrrev_b32 v2, 6, v0")
    k.e("s_and_b32 s30, s2, 31")
    k.e("s_lshr_b32 s31, s2, 5")
    k.e("v_readfirstlane_b32 s3, v2")
    k.e("s_waitcnt lgkmcnt(0)")
    k.srd(8, 28, WS_ACT, S * F * 2)
    k.srd(12, 6, 0, F * D * 2)
    k.srd(16, 20, 0, S * D * 2)
    k.srd(24, 28, WS_H, S * D * 2)
    k.e("s_movk_i32 s44, 2341")
    k.e("s_movk_i32 s44, 4682")
    for i in range(7):
        k.e(f"v_add_u32 v7, {i*256}, v0")
        k.e("v_mul_u32_u24 v8, s44, v7")
        k.e("v_lshrrev_b32 v8, 17, v8")
        k.e("v_mul_u32_u24 v9, 28, v8")
        k.e("v_sub_u32 v9, v7, v9")
        k.e("v_mul_u32_u24 v10, s45, v8") if False else None
        k.e(f"v_lshlrev_b32 v10, 4, v9")
        k.e(f"s_movk_i32 s45, 3584")
        k.e(f"v_mad_u32_u24 v{32+i}, v8, s45, v10")
        k.e(f"s_movk_i32 s45, {AST}")
        k.e(f"v_mad_u32_u24 v{40+i}, v8, s45, v10")
    k.e("v_lshrrev_b32 v7, 3, v0")
    k.e("v_and_b32 v8, 7, v0")
    k.e("s_movk_i32 s45, 896")
    k.e("v_mul_u32_u24 v48, s45, v7")
    k.e("v_lshl_add_u32 v48, v8, 4, v48")
    k.e("v_lshlrev_b32 v49, 6, v7")
    k.e("v_and_b32 v9, 3, v8")
    k.e("v_lshl_add_u32 v49, v9, 4, v49")
    k.e("v_lshrrev_b32 v9, 2, v8")
    k.e(f"s_movk_i32 s45, {224*64}")
    k.e("v_mad_u32_u24 v49, v9, s45, v49")
    k.e(f"v_add_u32 v49, {ABUF}, v49")
    k.e(f"s_mul_i32 s35, s30, {64*3584}")
    k.e("s_lshl_b32 s36, s31, 7")

    def g_loads():
        for i in range(7):
            k.e(f"buffer_load_dwordx4 {vr(VPA+4*i,4)}, v{32+i}, s[8:11], s35 offen")
        k.e("s_mov_b32 s37, s36")
        for i in range(7):
            k.e(f"buffer_load_dwordx4 {vr(VPB+4*i,4)}, v48, s[12:15], s37 offen")
            if i < 6:
                k.e(f"s_add_u32 s37, s37, {32*896}")
        k.e("s_add_u32 s35, s35, 448")
        k.e(f"s_add_u32 s36, s36, {224*896}")

    def l_writes(buf):
        for i in range(7):
            k.e(f"ds_write_b128 v{(50 if buf else 40)+i}, {vr(VPA+4*i,4)}")
        for i in range(7):
            k.e(f"ds_write_b128 v{57 if buf else 49}, {vr(VPB+4*i,4)} offset:{i*32*64}")

    g_loads()
    for i in range(7):
        k.e(f"v_add_u32 v{50+i}, {BUF}, v{40+i}")
    k.e(f"v_add_u32 v57, {BUF}, v49")
    tr_addr(k)
    k.e("s_and_b32 s38, s3, 1")
    k.e(f"s_mul_i32 s38, s38, {224*64}")
    k.e(f"s_add_u32 s38, s38, {ABUF}")
    k.e("v_add_u32 v21, s38, v21")
    k.e("s_lshr_b32 s39, s3, 1")
    k.e("v_and_b32 v25, 31, v1")
    k.e("v_lshrrev_b32 v26, 5, v1")
    k.e("s_lshl_b32 s40, s39, 5")
    k.e("v_add_u32 v20, s40, v25")
    k.e(f"s_movk_i32 s45, {AST}")
    k.e("v_mul_u32_u24 v20, s45, v20")
    k.e("v_lshl_add_u32 v20, v26, 4, v20")
    k.e(f"v_add_u32 v58, {BUF}, v20")
    k.e(f"v_add_u32 v59, {BUF}, v21")
    k.e("s_waitcnt vmcnt(0)")
    l_writes(0)
    g_loads()
    k.e("s_waitcnt lgkmcnt(0)")
    k.e("s_barrier")
    for c in range(8):
        buf = c & 1

        def rd(s_):
            a = VAF + 4 * (s_ % 4)
            b = VBF + 4 * (s_ % 4)
            k.e(f"ds_read_b128 {vr(a,4)}, v{58 if buf else 20} offset:{32*s_}")
            k.e(f"ds_read_b64_tr_b16 v[{b}:{b+1}], v{59 if buf else 21} offset:{1024*s_}")
            k.e(f"ds_read_b64_tr_b16 v[{b+2}:{b+3}], v{59 if buf else 21} offset:{1024*s_ + 256}")
        for s_ in range(3):
            rd(s_)
        for s_ in range(14):
            if s_ + 3 < 14:
                rd(s_ + 3)
                k.e("s_waitcnt lgkmcnt(9)")
            else:
                k.e(f"s_waitcnt lgkmcnt({3*(13-s_)})")
            a = VAF + 4 * (s_ % 4)
            b = VBF + 4 * (s_ % 4)
            k.mfma(ACC, b, a, "0" if (c == 0 and s_ == 0) else ACC)
        if c + 1 < 8:
            k.e("s_waitcnt vmcnt(0)")
            l_writes(buf ^ 1)
            if c + 2 < 8:
                g_loads()
            k.e("s_waitcnt lgkmcnt(0)")
            k.e("s_barrier")
    k.e("s_lshl_b32 s41, s30, 6")
    k.e("s_add_u32 s41, s41, s40")
    k.e("v_add_u32 v23, s41, v25")
    k.e("s_movk_i32 s45, 896")
    k.e("v_mul_u32_u24 v23, s45, v23")
    k.e("v_lshl_add_u32 v23, v26, 3, v23")
    k.e("s_lshl_b32 s42, s31, 7")
    k.e("s_and_b32 s43, s3, 1")
    k.e("s_lshl_b32 s43, s43, 6")
    k.e("s_add_u32 s42, s42, s43")
    for g in range(4):
        k.e(f"buffer_load_dwordx2 v[{28+2*g}:{29+2*g}], v23, s[24:27], s42 offen offset:{16*g}")
    k.nop(16)
    k.e("s_waitcnt vmcnt(0)")
    for g in range(4):
        for h in range(2):
            src = 28 + 2 * g + h
            k.e(f"v_lshlrev_b32 v36, 16, v{src}")
            k.e(f"v_and_b32 v37, 0xffff0000, v{src}")
            k.e(f"v_add_f32 v36, v36, v{ACC+4*g+2*h}")
            k.e(f"v_add_f32 v37, v37, v{ACC+4*g+2*h+1}")
            k.e(f"v_cvt_pk_bf16_f32 v{src}, v36, v37")
    for g in range(4):
        k.e(f"buffer_store_dwordx2 v[{28+2*g}:{29+2*g}], v23, s[16:19], s42 offen offset:{16*g}")
    finish(k)
    return k


HEADER = open("cdna_kernels/" + NAME + ".s.ref").read().split("; Override")[0]


def build(nk=5):
    ks = [(gen_k1(), 256, 4 * A_WAVE, 256), (gen_k2(), 256, 3 * (256 * 80 + 32 * 528) + 64, 512), (gen_k3(), 224, 4 * A_WAVE, 256),
          (gen_k4(), 224, 4 * A_WAVE, 256), (gen_k5(), 224, 2 * (64 * 464 + 28672), 256)][:nk]
    out = [HEADER.rstrip("\n")]
    for k, g, lds, blk in ks:
        out.append(f"; @launch kernel={k.name} grid=({g},1,1) block=({blk},1,1) lds={lds}")
    out.append('.amdgcn_target "amdgcn-amd-amdhsa--gfx950"')
    out.append(".text")
    for k, g, lds, blk in ks:
        out.append(f".globl {k.name}")
        out.append(".p2align 8")
        out.append(f".type {k.name},@function")
        out.append(f"{k.name}:")
        out += [l for l in k.L if l is not None]
    out.append('.section .rodata,"a"')
    for k, g, lds, blk in ks:
        out.append(".p2align 6")
        out.append(f".amdhsa_kernel {k.name}")
        out.append("  .amdhsa_next_free_vgpr 256")
        out.append("  .amdhsa_next_free_sgpr 102")
        out.append("  .amdhsa_accum_offset 256")
        out.append("  .amdhsa_group_segment_fixed_size 0")
        out.append("  .amdhsa_kernarg_size 80")
        out.append("  .amdhsa_user_sgpr_count 2")
        out.append("  .amdhsa_user_sgpr_kernarg_segment_ptr 1")
        out.append("  .amdhsa_system_sgpr_workgroup_id_x 1")
        out.append(".end_amdhsa_kernel")
    return "\n".join(out) + "\n"


if __name__ == "__main__":
    txt = build()
    open(OUT or ("cdna_kernels/" + NAME + ".s"), "w").write(txt)
    print("written", len(txt))
```

```python
import math, sys, os
import gen as G
from gen import K, vr, f2u, finish, NAME, S, D, H, DH, F, HEADER

STAMP = G.STAMP
OUT = os.environ.get("OUT", "")
WS_Q, WS_K, WS_V = 0x0, 0x200000, 0x400000
WS_O = 0x600000
WS_H = 0x800000
WS_ACT = 0xA00000
WS_ST = 0x1200000


def dma(k, voff, srd, soff, m0expr):
    k.e(f"buffer_load_dwordx4 {voff}, s[{srd}:{srd+3}], {soff} offen lds")


def gen_sk(which):
    is3 = which == 3
    name = "k3_wo_kernel" if is3 else "k5_down_kernel"
    k = K(name)
    NKS = 32 if is3 else 112
    NST = NKS // 4
    DEP = 8
    ACC = 64
    VAF = 128
    VBF = 192
    k.e("s_cmp_ge_u32 s2, 224")
    k.e(f"s_cbranch_scc1 {k.name}_end")
    k.e("s_load_dwordx2 s[28:29], s[0:1], 72")
    k.e(f"s_load_dwordx2 s[6:7], s[0:1], {16 if is3 else 48}")
    if is3:
        k.e("s_load_dwordx2 s[20:21], s[0:1], 0")
    else:
        k.e("s_load_dwordx2 s[20:21], s[0:1], 56")
    k.e("v_and_b32 v1, 63, v0")
    k.e("v_lshrrev_b32 v2, 6, v0")
    k.e("s_and_b32 s30, s2, 7")
    k.e("s_lshr_b32 s31, s2, 3")
    k.e("v_readfirstlane_b32 s3, v2")
    k.e("s_and_b32 s32, s31, 3")
    k.e("s_lshl_b32 s30, s30, 2")
    k.e("s_add_u32 s30, s30, s32")
    k.e("s_lshr_b32 s31, s31, 2")
    k.stamp()
    k.e("v_lshlrev_b32 v3, 4, v1")
    k.e("v_lshrrev_b32 v4, 3, v1")
    k.e("v_and_b32 v5, 7, v1")
    k.e("v_bfe_u32 v6, v1, 4, 1")
    k.e("v_lshlrev_b32 v6, 2, v6")
    k.e("v_xor_b32 v5, v5, v6")
    k.e("s_movk_i32 s44, 896")
    if is3:
        k.e("s_and_b32 s33, s3, 1")
        k.e("s_lshl_b32 s33, s33, 4")
        k.e("v_add_u32 v6, s33, v4")
        k.e("v_add_u32 v7, 8, v6")
        k.e("v_min_u32 v7, 27, v7")
        k.e("v_mul_u32_u24 v6, s44, v6")
        k.e("v_mul_u32_u24 v7, s44, v7")
        k.e("v_lshl_add_u32 v6, v5, 4, v6")
        k.e("v_lshl_add_u32 v7, v5, 4, v7")
    else:
        k.e("v_mul_u32_u24 v6, s44, v4")
        k.e("v_lshl_add_u32 v6, v5, 4, v6")
        k.e(f"v_add_u32 v7, {8*896}, v6")
    k.e("s_waitcnt lgkmcnt(0)")
    k.srd(8, 28, WS_O if is3 else WS_ACT, 64 * NKS * 1024)
    k.srd(12, 6, 0, (D if is3 else F) * D * 2)
    k.e(f"s_mul_i32 s34, s30, {2*NKS*1024}")
    k.e("s_lshl_b32 s35, s3, 10")
    k.e("s_add_u32 s34, s34, s35")
    k.e("s_lshl_b32 s36, s31, 7")
    if is3:
        k.e("s_lshr_b32 s37, s3, 1")
        k.e(f"s_mul_i32 s37, s37, {28*896}")
        bstep = 2 * 28 * 896
    else:
        k.e(f"s_mul_i32 s37, s3, {16*896}")
        bstep = 64 * 896
    k.e("s_add_u32 s36, s36, s37")
    k.e(f"s_mul_i32 s38, s3, {DEP*2048}")

    def issue(t):
        sl = t % DEP
        a = VAF + 8 * sl
        k.e(f"buffer_load_dwordx4 {vr(a,4)}, v3, s[8:11], s34 offen")
        k.e(f"s_add_u32 s39, s34, {NKS*1024}")
        k.e(f"buffer_load_dwordx4 {vr(a+4,4)}, v3, s[8:11], s39 offen")
        k.e(f"s_add_u32 m0, s38, {sl*2048}")
        k.e("s_add_u32 s34, s34, 4096")
        k.e("buffer_load_dwordx4 v6, s[12:15], s36 offen lds")
        k.e(f"s_add_u32 m0, s38, {sl*2048+1024}")
        k.e("s_nop 0")
        k.e("buffer_load_dwordx4 v7, s[12:15], s36 offen lds")
        k.e(f"s_add_u32 s36, s36, {bstep}")

    for t in range(min(DEP, NST)):
        issue(t)
    k.e("v_lshrrev_b32 v8, 5, v1")
    k.e("v_bfe_u32 v9, v1, 2, 2")
    k.e("v_lshl_add_u32 v10, v8, 2, v9")
    k.e("v_lshlrev_b32 v10, 7, v10")
    k.e("v_lshrrev_b32 v11, 1, v9")
    k.e("v_lshl_add_u32 v10, v11, 6, v10")
    k.e("v_bfe_u32 v11, v1, 4, 1")
    k.e("v_lshl_add_u32 v10, v11, 5, v10")
    k.e("v_and_b32 v11, 3, v1")
    k.e("v_lshl_add_u32 v10, v11, 3, v10")
    k.e("v_add_u32 v10, s38, v10")
    k.e("v_xor_b32 v11, 64, v10")

    def rdB(t):
        sl = t % DEP
        b = VBF + 8 * (t & 1)
        for ct in range(2):
            for i in range(2):
                k.e(f"ds_read_b64_tr_b16 v[{b+4*ct+2*i}:{b+4*ct+2*i+1}], v{10+ct} offset:{sl*2048+1024*i}")

    def outstanding_after(t):
        return None

    issued = min(DEP, NST)
    k.e(f"s_waitcnt vmcnt({4*(issued-1)})")
    k.stamp()
    rdB(0)
    for t in range(NST):
        if t + 1 < NST:
            k.e(f"s_waitcnt vmcnt({4*(issued-(t+2))})")
            rdB(t + 1)
            k.e("s_waitcnt lgkmcnt(4)")
        else:
            k.e("s_waitcnt lgkmcnt(0)")
        a = VAF + 8 * (t % DEP)
        b = VBF + 8 * (t & 1)
        for rt in range(2):
            for ct in range(2):
                acc = ACC + 16 * (2 * rt + ct)
                k.mfma(acc, b + 4 * ct, a + 4 * rt, "0" if t == 0 else acc)
        if issued < NST:
            issue(issued)
            issued += 1
    k.stamp()
    k.e("s_lshr_b32 s40, s3, 1")
    k.e("s_and_b32 s41, s3, 1")
    k.e("s_lshl_b32 s42, s30, 1")
    k.e("s_add_u32 s42, s42, s40")
    k.e("s_lshl_b32 s43, s31, 1")
    k.e("s_add_u32 s43, s43, s41")
    k.e("v_and_b32 v12, 31, v1")
    if is3:
        k.srd(16, 20, 0, S * D * 2)
        k.srd(24, 28, WS_H, 64 * 28 * 1024)
        k.e("s_lshl_b32 s45, s42, 5")
        k.e("v_add_u32 v13, s45, v12")
        k.e("v_mul_u32_u24 v13, s44, v13")
        k.e("v_lshl_add_u32 v13, v8, 3, v13")
        k.e("s_lshl_b32 s45, s43, 6")
        for g in range(4):
            k.e(f"buffer_load_dwordx2 v[{208+2*g}:{209+2*g}], v13, s[16:19], s45 offen offset:{16*g}")
    else:
        k.srd(16, 28, WS_H, 64 * 28 * 1024)
        k.srd(24, 20, 0, S * D * 2)
        k.e("s_mul_i32 s45, s42, 28")
        k.e("s_lshl_b32 s46, s43, 1")
        k.e("s_add_u32 s45, s45, s46")
        k.e("s_lshl_b32 s45, s45, 10")
        for g in range(2):
            k.e(f"buffer_load_dwordx4 v[{208+4*g}:{211+4*g}], v3, s[16:19], s45 offen offset:{1024*g}")
    k.e("s_barrier")
    k.nop(8)
    for o in range(4):
        skip = k.newlab("own")
        k.e(f"s_cmp_eq_u32 s3, {o}")
        k.e(f"s_cbranch_scc1 {skip}")
        k.e(f"s_sub_u32 s45, s3, {o+1}")
        k.e("s_and_b32 s45, s45, 3")
        k.e("s_lshl_b32 s45, s45, 12")
        k.e(f"s_add_u32 s45, s45, {o*3*4096}")
        k.e("v_add_u32 v14, s45, v3")
        for q in range(4):
            k.e(f"ds_write_b128 v14, {vr(ACC+16*o+4*q,4)} offset:{1024*q}")
        k.lab(skip)
    for o in range(4):
        skip = k.newlab("mv")
        k.e(f"s_cmp_lg_u32 s3, {o}")
        k.e(f"s_cbranch_scc1 {skip}")
        for r in range(16):
            k.e(f"v_mov_b32 v{128+r}, v{ACC+16*o+r}")
        k.lab(skip)
    k.e("s_waitcnt lgkmcnt(0)")
    k.e("s_barrier")
    k.e(f"s_mul_i32 s45, s3, {3*4096}")
    k.e("v_add_u32 v14, s45, v3")
    for sl in range(3):
        for q in range(4):
            k.e(f"ds_read_b128 {vr(144+16*sl+4*q,4)}, v14 offset:{4096*sl+1024*q}")
    for sl in range(3):
        k.e(f"s_waitcnt lgkmcnt({8-4*sl})")
        for r in range(16):
            k.e(f"v_add_f32 v{128+r}, v{128+r}, v{144+16*sl+r}")
    k.e("s_waitcnt vmcnt(0)")
    k.stamp()
    for p in range(8):
        src = 208 + p
        k.e(f"v_lshlrev_b32 v14, 16, v{src}")
        k.e(f"v_and_b32 v15, 0xffff0000, v{src}")
        k.e(f"v_add_f32 v14, v14, v{128+2*p}")
        k.e(f"v_add_f32 v15, v15, v{128+2*p+1}")
        k.e(f"v_cvt_pk_bf16_f32 v{src}, v14, v15")
    if is3:
        k.e("s_mul_i32 s45, s42, 28")
        k.e("s_lshl_b32 s46, s43, 1")
        k.e("s_add_u32 s45, s45, s46")
        k.e("s_lshl_b32 s45, s45, 10")
        for g in range(2):
            k.e(f"buffer_store_dwordx4 v[{208+4*g}:{211+4*g}], v3, s[24:27], s45 offen offset:{1024*g}")
        k.e("v_mov_b32 v16, 0")
        k.e("v_mov_b32 v17, 0")
        k.e("s_mov_b32 s46, 0x3f803f80")
        for p in range(8):
            k.e(f"v_dot2_f32_bf16 v16, v{208+p}, s46, v16")
            k.e(f"v_dot2_f32_bf16 v17, v{208+p}, v{208+p}, v17")
        k.e("s_nop 1")
        k.e("v_mov_b32 v18, v16")
        k.e("v_mov_b32 v19, v17")
        k.e("s_nop 1")
        k.e("v_permlane32_swap_b32 v16, v18")
        k.e("v_permlane32_swap_b32 v17, v19")
        k.e("s_nop 1")
        k.e("v_add_f32 v16, v16, v18")
        k.e("v_add_f32 v17, v17, v19")
        k.srd(16, 28, WS_ST, S * 14 * 8)
        k.e("s_lshl_b32 s45, s42, 5")
        k.e("v_add_u32 v13, s45, v12")
        k.e("v_mul_u32_u24 v13, 112, v13")
        k.e("s_lshl_b32 s45, s43, 3")
        k.e("v_cmp_gt_u32 vcc, 32, v1")
        k.e("s_and_saveexec_b64 s[46:47], vcc")
        k.e("buffer_store_dwordx2 v[16:17], v13, s[16:19], s45 offen")
    else:
        k.e("s_nop 1")
        for g in (0, 2):
            k.e(f"v_permlane32_swap_b32 v{208+2*g}, v{208+2*g+2}")
            k.e(f"v_permlane32_swap_b32 v{208+2*g+1}, v{208+2*g+3}")
        k.e("s_lshl_b32 s45, s42, 5")
        k.e("v_add_u32 v13, s45, v12")
        k.e("v_mul_u32_u24 v13, s44, v13")
        k.e("v_lshl_add_u32 v13, v8, 4, v13")
        k.e("s_lshl_b32 s45, s43, 6")
        k.e("s_nop 0")
        for g in range(2):
            k.e(f"buffer_store_dwordx4 v[{208+4*g}:{211+4*g}], v13, s[24:27], s45 offen offset:{32*g}")
    finish(k)
    return k, 224, 4 * DEP * 2048 if 4 * DEP * 2048 > 48 * 1024 else 48 * 1024 + 0, 256


def gen_k4():
    k = K("k4_ffn_kernel")
    SLOT = 49152
    R = 3
    NSL = 7
    ACC = 0
    ACC = 192
    FR = [64, 128]
    SCR = R * SLOT
    k.e("s_cmp_ge_u32 s2, 224")
    k.e(f"s_cbranch_scc1 {k.name}_end")
    k.e("s_load_dwordx2 s[28:29], s[0:1], 72")
    k.e("s_load_dwordx2 s[4:5], s[0:1], 32")
    k.e("s_load_dwordx2 s[6:7], s[0:1], 40")
    k.e("v_and_b32 v1, 63, v0")
    k.e("v_lshrrev_b32 v2, 6, v0")
    k.e("s_and_b32 s30, s2, 7")
    k.e("s_lshr_b32 s31, s2, 3")
    k.e("v_readfirstlane_b32 s3, v2")
    k.e("s_and_b32 s32, s30, 3")
    k.e("s_lshl_b32 s32, s32, 2")
    k.e("s_and_b32 s33, s31, 3")
    k.e("s_add_u32 s32, s32, s33")
    k.e("s_lshr_b32 s30, s30, 2")
    k.e("s_mul_i32 s30, s30, 7")
    k.e("s_lshr_b32 s31, s31, 2")
    k.e("s_add_u32 s31, s31, s30")
    k.e("s_mov_b32 s30, s32")
    k.e("s_lshr_b32 s32, s3, 2")
    k.e("s_and_b32 s33, s3, 3")
    k.stamp()
    k.e("v_lshlrev_b32 v3, 4, v1")
    k.e("v_and_b32 v12, 31, v1")
    k.e("v_lshrrev_b32 v8, 5, v1")
    k.e("v_lshrrev_b32 v4, 4, v1")
    k.e("v_and_b32 v5, 15, v1")
    k.e("v_lshlrev_b32 v6, 2, v4")
    k.e("v_xor_b32 v5, v5, v6")
    k.e("s_movk_i32 s44, 3584")
    k.e("v_mul_u32_u24 v4, s44, v4")
    k.e("v_lshl_add_u32 v4, v5, 4, v4")
    k.e("s_waitcnt lgkmcnt(0)")
    k.srd(8, 28, WS_H, 64 * 28 * 1024)
    k.srd(12, 4, 0, D * F * 2)
    k.srd(16, 6, 0, D * F * 2)
    k.srd(20, 28, WS_ST, S * 14 * 8)
    k.srd(24, 28, WS_ACT, 64 * 112 * 1024)
    k.e("s_lshl_b32 s34, s30, 7")
    k.e("s_lshl_b32 s35, s32, 6")
    k.e("s_add_u32 s34, s34, s35")
    k.e("v_add_u32 v5, s34, v12")
    k.e("v_mul_u32_u24 v5, 112, v5")
    for i in range(2):
        for q in range(7):
            k.e(f"buffer_load_dwordx4 {vr(64+28*i+4*q,4)}, v5, s[20:23], 0 offen offset:{32*112*i+16*q}")
    k.e("s_lshl_b32 s36, s3, 10")
    k.e("s_lshl_b32 s37, s30, 2")
    k.e("s_add_u32 s37, s37, s32")
    k.e("s_mul_i32 s37, s37, 28")
    k.e("s_add_u32 s37, s37, s33")
    k.e("s_lshl_b32 s37, s37, 10")
    k.e(f"s_mul_i32 s38, s3, {4*3584}")
    k.e("s_lshl_b32 s39, s31, 8")
    k.e("s_add_u32 s38, s38, s39")

    def issue(sl):
        sb = (sl % R) * SLOT
        k.e(f"s_add_u32 m0, s36, {sb}")
        k.e(f"s_add_u32 s39, s37, {56*1024}")
        k.e("buffer_load_dwordx4 v3, s[8:11], s37 offen lds")
        k.e(f"s_add_u32 m0, s36, {sb+8192}")
        k.e("s_add_u32 s37, s37, 4096")
        k.e("buffer_load_dwordx4 v3, s[8:11], s39 offen lds")
        for u in range(2):
            k.e(f"s_add_u32 m0, s36, {sb+16384*(1+u)}")
            k.e(f"s_add_u32 s39, s38, {32*3584}")
            k.e(f"buffer_load_dwordx4 v4, s[{12+4*u}:{15+4*u}], s38 offen lds")
            k.e(f"s_add_u32 m0, s36, {sb+16384*(1+u)+8192}")
            k.e("s_nop 0")
            k.e(f"buffer_load_dwordx4 v4, s[{12+4*u}:{15+4*u}], s39 offen lds")
        k.e(f"s_add_u32 s38, s38, {64*3584}")

    issue(0)
    issue(1)
    k.e("s_lshl_b32 s40, s32, 13")
    k.e("v_add_u32 v20, s40, v3")
    k.e(f"v_add_u32 v21, {SLOT}, v20")
    k.e(f"v_add_u32 v22, {2*SLOT}, v20")
    k.e("v_bfe_u32 v9, v1, 2, 2")
    k.e("v_lshl_add_u32 v10, v8, 2, v9")
    k.e("v_lshlrev_b32 v10, 8, v10")
    k.e("v_xor_b32 v11, s33, v9")
    k.e("v_lshl_add_u32 v10, v11, 6, v10")
    k.e("v_bfe_u32 v11, v1, 4, 1")
    k.e("v_lshl_add_u32 v10, v11, 5, v10")
    k.e("v_and_b32 v11, 3, v1")
    k.e("v_lshl_add_u32 v24, v11, 3, v10")
    k.e(f"v_add_u32 v25, {SLOT}, v24")
    k.e(f"v_add_u32 v26, {2*SLOT}, v24")
    k.e("s_waitcnt vmcnt(12)")
    k1 = -2.0 * math.sqrt(2.0 / math.pi) * math.log2(math.e)
    k3 = k1 * 0.044715
    for i in range(2):
        b = 64 + 28 * i
        k.e(f"v_add_f32 v13, v{b}, v{b+2}")
        k.e(f"v_add_f32 v14, v{b+1}, v{b+3}")
        for q in range(2, 14):
            k.e(f"v_add_f32 v13, v13, v{b+2*q}")
            k.e(f"v_add_f32 v14, v14, v{b+2*q+1}")
        k.e(f"s_mov_b32 s40, {hex(f2u(1.0/448))}")
        k.e(f"v_mul_f32 v{28+i}, s40, v13")
        k.e("v_mul_f32 v14, s40, v14")
        k.e(f"v_fma_f32 v14, -v{28+i}, v{28+i}, v14")
        k.e("v_max_f32 v14, 0, v14")
        k.e(f"v_add_f32 v{34+i}, {hex(f2u(1e-5))}, v14")
        k.e(f"v_rsq_f32 v15, v{34+i}")
        k.e("s_nop 0")
        k.e("v_mul_f32 v16, v15, v15")
        k.e("v_mul_f32 v16, v16, v15")
        k.e(f"v_mul_f32 v{30+i}, {hex(f2u(k1))}, v15")
        k.e(f"v_mul_f32 v{32+i}, {hex(f2u(k3))}, v16")
    for r in range(36, 44):
        k.e(f"v_mov_b32 v{r}, 0")
    k.e("s_mov_b32 s46, 0x3f803f80")

    def reads(sl):
        fr = FR[sl & 1]
        s_ = sl % R
        for ks in range(4):
            for i in range(2):
                k.e(f"ds_read_b128 {vr(fr+16*ks+4*i,4)}, v{20+s_} offset:{4096*i+1024*ks}")
            for u in range(2):
                for h in range(2):
                    r0 = fr + 16 * ks + 8 + 4 * u + 2 * h
                    k.e(f"ds_read_b64_tr_b16 v[{r0}:{r0+1}], v{24+s_} offset:{16384*(1+u)+4096*ks+2048*h}")

    def mfmas(sl):
        fr = FR[sl & 1]
        for ks in range(4):
            for i in range(2):
                for u in range(2):
                    acc = ACC + 16 * (2 * i + u)
                    k.mfma(acc, fr + 16 * ks + 8 + 4 * u, fr + 16 * ks + 4 * i, "0" if (sl == 0 and ks == 0) else acc)
        lab = k.newlab("cs")
        lab2 = k.newlab("cs")
        k.e("s_cmp_eq_u32 s32, 0")
        k.e(f"s_cbranch_scc0 {lab}")
        for ks in (0, 2):
            for u in range(2):
                for j in range(4):
                    k.e(f"v_dot2_f32_bf16 v{36+4*u+j}, v{fr+16*ks+8+4*u+j}, s46, v{36+4*u+j}")
        k.e(f"s_branch {lab2}")
        k.lab(lab)
        for ks in (1, 3):
            for u in range(2):
                for j in range(4):
                    k.e(f"v_dot2_f32_bf16 v{36+4*u+j}, v{fr+16*ks+8+4*u+j}, s46, v{36+4*u+j}")
        k.lab(lab2)

    for sl in range(NSL):
        pend = min(R - 2, NSL - 1 - sl)
        k.e(f"s_waitcnt vmcnt({6*pend}) lgkmcnt(0)")
        k.e("s_barrier")
        k.stamp()
        if sl + R - 1 < NSL:
            issue(sl + R - 1)
        reads(sl)
        if sl >= 1:
            mfmas(sl - 1)
    k.e("s_waitcnt lgkmcnt(0)")
    mfmas(NSL - 1)
    k.stamp()
    k.e("s_nop 1")
    for u in range(2):
        k.e(f"v_add_f32 v{36+4*u}, v{36+4*u}, v{37+4*u}")
        k.e(f"v_add_f32 v{38+4*u}, v{38+4*u}, v{39+4*u}")
        k.e(f"v_add_f32 v{36+4*u}, v{36+4*u}, v{38+4*u}")
    k.e("s_lshl_b32 s40, s33, 10")
    k.e("s_lshl_b32 s41, s32, 3")
    k.e("s_add_u32 s40, s40, s41")
    k.e(f"s_add_u32 s40, s40, {SCR}")
    k.e("v_lshlrev_b32 v13, 4, v12")
    k.e("v_lshl_add_u32 v13, v8, 2, v13")
    k.e("v_add_u32 v13, s40, v13")
    k.e("ds_write_b32 v13, v36")
    k.e("ds_write_b32 v13, v40 offset:512")
    k.e("s_waitcnt lgkmcnt(0)")
    k.e("s_barrier")
    k.e("s_lshl_b32 s40, s33, 10")
    k.e(f"s_add_u32 s40, s40, {SCR}")
    k.e("v_add_u32 v13, s40, v3")
    k.e("ds_read_b128 v[16:19], v13")
    k.e("s_waitcnt lgkmcnt(0)")
    k.e("v_add_f32 v16, v16, v17")
    k.e("v_add_f32 v18, v18, v19")
    k.e("v_add_f32 v16, v16, v18")
    k.e("s_lshl_b32 s40, s3, 8")
    k.e(f"s_add_u32 s40, s40, {SCR+4096}")
    k.e("v_lshlrev_b32 v13, 2, v1")
    k.e("v_add_u32 v13, s40, v13")
    k.e("ds_write_b32 v13, v16")
    k.e("v_lshlrev_b32 v13, 4, v8")
    k.e("v_add_u32 v13, s40, v13")
    k.e("s_waitcnt lgkmcnt(0)")
    for u in range(2):
        for g in range(4):
            k.e(f"ds_read_b128 {vr(64+16*u+4*g,4)}, v13 offset:{128*u+32*g}")
    k.e("s_waitcnt lgkmcnt(0)")
    k.e("s_lshl_b32 s40, s30, 2")
    k.e("s_lshl_b32 s41, s32, 1")
    k.e("s_add_u32 s40, s40, s41")
    k.e("s_mul_i32 s40, s40, 112")
    k.e("s_lshl_b32 s41, s31, 2")
    k.e("s_add_u32 s41, s41, s33")
    k.e("s_lshl_b32 s41, s41, 1")
    k.e("s_add_u32 s40, s40, s41")
    k.e("s_lshl_b32 s40, s40, 10")
    for i in range(2):
        ag = ACC + 16 * (2 * i)
        au = ACC + 16 * (2 * i + 1)
        T = 96
        for r in range(16):
            k.e(f"v_fma_f32 v{ag+r}, -v{28+i}, v{64+r}, v{ag+r}")
            k.e(f"v_fma_f32 v{au+r}, -v{28+i}, v{80+r}, v{au+r}")
        for r in range(16):
            k.e(f"v_mul_f32 v{T+r}, v{ag+r}, v{ag+r}")
        for r in range(16):
            k.e(f"v_fma_f32 v{T+r}, v{T+r}, v{32+i}, v{30+i}")
        for r in range(16):
            k.e(f"v_mul_f32 v{T+r}, v{T+r}, v{ag+r}")
        for r in range(16):
            k.e(f"v_exp_f32 v{T+r}, v{T+r}")
        for r in range(16):
            k.e(f"v_mul_f32 v{au+r}, v{au+r}, v{ag+r}")
        for r in range(16):
            k.e(f"v_fma_f32 v{T+r}, v{T+r}, v{34+i}, v{34+i}")
        for r in range(16):
            k.e(f"v_rcp_f32 v{T+r}, v{T+r}")
        k.e("s_nop 0")
        for r in range(16):
            k.e(f"v_mul_f32 v{au+r}, v{au+r}, v{T+r}")
        for p in range(8):
            k.e(f"v_cvt_pk_bf16_f32 v{T+16+p}, v{au+2*p}, v{au+2*p+1}")
        if i == 1:
            k.e(f"s_add_u32 s40, s40, {112*1024}")
        for g in range(2):
            k.e(f"buffer_store_dwordx4 {vr(T+16+4*g,4)}, v3, s[24:27], s40 offen offset:{1024*g}")
    finish(k)
    return k, 224, SCR + 4096 + 2048, 512


def gen_k1():
    k = K("k1_qkv_kernel")
    SLOT = 28672
    R = 5
    NSL = 7
    ACC = 192
    FR = [64, 128]
    SCR = R * SLOT
    k.e("s_cmp_ge_u32 s2, 256")
    k.e(f"s_cbranch_scc1 {k.name}_end")
    k.e("s_load_dwordx2 s[28:29], s[0:1], 72")
    k.e("s_load_dwordx2 s[4:5], s[0:1], 0")
    k.e("s_load_dwordx2 s[6:7], s[0:1], 8")
    k.e("v_and_b32 v1, 63, v0")
    k.e("v_lshrrev_b32 v2, 6, v0")
    k.e("s_and_b32 s30, s2, 7")
    k.e("s_lshr_b32 s31, s2, 3")
    k.e("v_readfirstlane_b32 s3, v2")
    k.e("s_and_b32 s32, s30, 3")
    k.e("s_lshl_b32 s32, s32, 2")
    k.e("s_and_b32 s33, s31, 3")
    k.e("s_add_u32 s32, s32, s33")
    k.e("s_lshr_b32 s30, s30, 2")
    k.e("s_lshl_b32 s30, s30, 3")
    k.e("s_lshr_b32 s31, s31, 2")
    k.e("s_add_u32 s31, s31, s30")
    k.e("s_mov_b32 s30, s32")
    k.stamp()
    k.e("v_lshlrev_b32 v3, 4, v1")
    k.e("v_and_b32 v12, 31, v1")
    k.e("v_lshrrev_b32 v8, 5, v1")
    k.e("v_lshrrev_b32 v4, 3, v1")
    k.e("v_and_b32 v5, 7, v1")
    k.e("v_lshrrev_b32 v6, 4, v1")
    k.e("s_and_b32 s33, s3, 1")
    k.e("s_lshl_b32 s33, s33, 2")
    k.e("v_or_b32 v6, s33, v6")
    k.e("v_xor_b32 v5, v5, v6")
    k.e("s_movk_i32 s44, 896")
    k.e("v_mul_u32_u24 v4, s44, v4")
    k.e("v_lshl_add_u32 v4, v5, 4, v4")
    k.e("v_lshrrev_b32 v5, 2, v1")
    k.e("s_movk_i32 s45, 2688")
    k.e("v_mul_u32_u24 v5, s45, v5")
    k.e("v_and_b32 v6, 3, v1")
    k.e("v_lshl_add_u32 v5, v6, 4, v5")
    k.e("s_waitcnt lgkmcnt(0)")
    k.srd(8, 4, 0, S * D * 2)
    k.srd(12, 6, 0, D * 3 * D * 2)
    k.e("s_lshl_b32 s33, s31, 17")
    k.e("s_add_u32 s16, s28, s33")
    k.e("s_addc_u32 s17, s29, 0")
    k.e(f"s_mov_b32 s18, {hex(0x400000 + 0x20000)}")
    k.e("s_mov_b32 s19, 0x00020000")
    k.e("s_lshl_b32 s36, s3, 10")
    k.e("s_lshl_b32 s37, s30, 7")
    k.e("s_lshl_b32 s38, s3, 3")
    k.e("s_add_u32 s37, s37, s38")
    k.e("s_mul_i32 s37, s37, 896")
    k.e(f"s_mul_i32 s38, s3, {16*2688}")
    k.e("s_mul_i32 s39, s31, 56")
    k.e("s_add_u32 s38, s38, s39")

    def issue(sl):
        sb = (sl % R) * SLOT
        for i in range(4):
            k.e(f"s_add_u32 m0, s36, {sb+4096*i}")
            k.e(f"s_add_u32 s39, s37, {32*896*i}")
            k.e("buffer_load_dwordx4 v4, s[8:11], s39 offen lds")
        for sg in range(3):
            k.e(f"s_add_u32 m0, s36, {sb+16384+4096*sg}")
            k.e(f"s_add_u32 s39, s38, {896*sg}")
            k.e("buffer_load_dwordx4 v5, s[12:15], s39 offen lds")
        k.e("s_add_u32 s37, s37, 128")
        k.e(f"s_add_u32 s38, s38, {64*2688}")

    for sl in range(R - 1):
        issue(sl)
    k.e("v_bfe_u32 v9, v1, 1, 3")
    k.e("v_xor_b32 v9, v9, v8")
    k.e("v_lshlrev_b32 v9, 4, v9")
    k.e("v_lshl_add_u32 v9, v12, 7, v9")
    k.e("s_lshl_b32 s40, s3, 12")
    k.e("v_add_u32 v9, s40, v9")
    for grp in range(3):
        for ks in range(4):
            r = 16 + 4 * grp + ks
            k.e(f"v_xor_b32 v{r}, {ks<<5}, v9")
            if grp:
                k.e(f"v_add_u32 v{r}, {2*grp*SLOT}, v{r}")
    k.e("v_lshlrev_b32 v10, 9, v8")
    k.e("v_bfe_u32 v11, v1, 2, 2")
    k.e("v_lshl_add_u32 v10, v11, 6, v10")
    k.e("v_bfe_u32 v11, v1, 4, 1")
    k.e("v_lshl_add_u32 v10, v11, 5, v10")
    k.e("v_and_b32 v11, 3, v1")
    k.e("v_lshl_add_u32 v28, v11, 3, v10")
    k.e(f"v_add_u32 v29, {2*SLOT}, v28")
    k.e(f"v_add_u32 v30, {4*SLOT}, v28")
    for r in range(32, 52):
        k.e(f"v_mov_b32 v{r}, 0")
    k.e("s_mov_b32 s46, 0x3f803f80")

    def reads(sl):
        fr = FR[sl & 1]
        s_ = sl % R
        grp, o = s_ >> 1, (s_ & 1) * SLOT
        for ks in range(4):
            k.e(f"ds_read_b128 {vr(fr+16*ks,4)}, v{16+4*grp+ks} offset:{o}")
            for sg in range(3):
                for h in range(2):
                    r0 = fr + 16 * ks + 4 + 4 * sg + 2 * h
                    k.e(f"ds_read_b64_tr_b16 v[{r0}:{r0+1}], v{28+grp} offset:{o+16384+4096*sg+1024*ks+256*h}")

    def mfmas(sl):
        fr = FR[sl & 1]
        for ks in range(4):
            a = fr + 16 * ks
            c0 = (sl == 0 and ks == 0)
            k.mfma(ACC, a + 4, a, "0" if c0 else ACC)
            for j in range(2):
                k.e(f"v_dot2_f32_bf16 v{32+j}, v{a+j}, s46, v{32+j}")
                k.e(f"v_dot2_f32_bf16 v{36+j}, v{a+j}, v{a+j}, v{36+j}")
            k.mfma(ACC + 16, a + 8, a, "0" if c0 else ACC + 16)
            for j in range(2, 4):
                k.e(f"v_dot2_f32_bf16 v{32+j}, v{a+j}, s46, v{32+j}")
                k.e(f"v_dot2_f32_bf16 v{36+j}, v{a+j}, v{a+j}, v{36+j}")
            k.mfma(ACC + 32, a, a + 12, "0" if c0 else ACC + 32)
        done = k.newlab("csd")
        for w in range(4):
            nx = k.newlab("cs")
            if w < 3:
                k.e(f"s_cmp_eq_u32 s3, {w}")
                k.e(f"s_cbranch_scc0 {nx}")
            for j in range(12):
                k.e(f"v_dot2_f32_bf16 v{40+j}, v{fr+16*w+4+j}, s46, v{40+j}")
            if w < 3:
                k.e(f"s_branch {done}")
                k.lab(nx)
        k.lab(done)

    issued = R - 1
    for sl in range(NSL):
        pend = issued - 1 - sl
        k.e(f"s_waitcnt vmcnt({7*pend}) lgkmcnt(0)")
        k.e("s_barrier")
        k.stamp()
        if issued < NSL:
            issue(issued)
            issued += 1
        reads(sl)
        if sl >= 1:
            mfmas(sl - 1)
    k.e("s_waitcnt lgkmcnt(0)")
    mfmas(NSL - 1)
    k.stamp()
    k.e("s_nop 1")
    k.e("v_add_f32 v32, v32, v33")
    k.e("v_add_f32 v34, v34, v35")
    k.e("v_add_f32 v36, v36, v37")
    k.e("v_add_f32 v38, v38, v39")
    k.e("v_add_f32 v32, v32, v34")
    k.e("v_add_f32 v36, v36, v38")
    for t in range(3):
        k.e(f"v_add_f32 v{40+4*t}, v{40+4*t}, v{41+4*t}")
        k.e(f"v_add_f32 v{42+4*t}, v{42+4*t}, v{43+4*t}")
        k.e(f"v_add_f32 v{40+4*t}, v{40+4*t}, v{42+4*t}")
    k.e("v_mov_b32 v33, v32")
    k.e("v_mov_b32 v37, v36")
    k.e("s_lshl_b32 s40, s3, 3")
    k.e(f"s_add_u32 s40, s40, {SCR}")
    k.e("v_lshlrev_b32 v13, 5, v12")
    k.e("v_lshl_add_u32 v13, v8, 2, v13")
    k.e("v_add_u32 v13, s40, v13")
    for t in range(3):
        k.e(f"ds_write_b32 v13, v{40+4*t} offset:{1024*t}")
    k.e("v_permlane32_swap_b32 v32, v33")
    k.e("v_permlane32_swap_b32 v36, v37")
    k.e("s_nop 1")
    k.e("v_add_f32 v32, v32, v33")
    k.e("v_add_f32 v36, v36, v37")
    k.e(f"s_mov_b32 s40, {hex(f2u(1.0/448))}")
    k.e("v_mul_f32 v32, s40, v32")
    k.e("v_mul_f32 v36, s40, v36")
    k.e("v_fma_f32 v36, -v32, v32, v36")
    k.e("v_max_f32 v36, 0, v36")
    k.e(f"v_add_f32 v36, {hex(f2u(1e-5))}, v36")
    k.e("v_rsq_f32 v33, v36")
    k.e("s_nop 0")
    k.e("v_mov_b32 v34, v32")
    k.e("v_mov_b32 v35, v33")
    k.e("s_lshl_b32 s40, s3, 8")
    k.e(f"s_add_u32 s40, s40, {SCR+4096}")
    k.e("v_lshl_add_u32 v14, v12, 3, s40")
    k.e("ds_write_b64 v14, v[34:35]")
    k.e("s_waitcnt lgkmcnt(0)")
    k.e("s_barrier")
    k.e("v_lshlrev_b32 v13, 5, v1")
    k.e(f"v_add_u32 v13, {SCR}, v13")
    k.e("ds_read_b128 v[40:43], v13")
    k.e("ds_read_b128 v[44:47], v13 offset:16")
    k.e("v_lshlrev_b32 v13, 5, v12")
    k.e(f"v_add_u32 v13, {SCR+2048}, v13")
    k.e("ds_read_b128 v[48:51], v13")
    k.e("ds_read_b128 v[52:55], v13 offset:16")
    k.e("v_lshlrev_b32 v14, 5, v8")
    k.e("v_add_u32 v14, s40, v14")
    for g in range(4):
        k.e(f"ds_read_b128 {vr(128+8*g,4)}, v14 offset:{64*g}")
        k.e(f"ds_read_b128 {vr(132+8*g,4)}, v14 offset:{64*g+16}")
    k.e("s_waitcnt lgkmcnt(8)")
    for b in (40, 48):
        k.e(f"v_add_f32 v{b}, v{b}, v{b+1}")
        k.e(f"v_add_f32 v{b+2}, v{b+2}, v{b+3}")
        k.e(f"v_add_f32 v{b+4}, v{b+4}, v{b+5}")
        k.e(f"v_add_f32 v{b+6}, v{b+6}, v{b+7}")
        k.e(f"v_add_f32 v{b}, v{b}, v{b+2}")
        k.e(f"v_add_f32 v{b+4}, v{b+4}, v{b+6}")
        k.e(f"v_add_f32 v{b}, v{b}, v{b+4}")
    k.e("s_lshl_b32 s41, s3, 8")
    k.e(f"s_add_u32 s41, s41, {SCR+3072}")
    k.e("v_lshlrev_b32 v13, 2, v1")
    k.e("v_add_u32 v13, s41, v13")
    k.e("ds_write_b32 v13, v40")
    k.e("v_lshlrev_b32 v13, 4, v8")
    k.e("v_add_u32 v13, s41, v13")
    k.e("s_waitcnt lgkmcnt(0)")
    for u in range(2):
        for g in range(4):
            k.e(f"ds_read_b128 {vr(64+16*u+4*g,4)}, v13 offset:{128*u+32*g}")
    k.e("s_lshl_b32 s34, s30, 7")
    k.e("s_lshl_b32 s35, s3, 5")
    k.e("s_add_u32 s34, s34, s35")
    k.e("v_add_u32 v23, s34, v12")
    k.e("v_lshlrev_b32 v23, 6, v23")
    k.e("v_lshl_add_u32 v23, v8, 3, v23")
    k.e("v_lshlrev_b32 v24, 12, v12")
    k.e("v_lshl_add_u32 v24, v8, 4, v24")
    k.e("s_lshl_b32 s36, s34, 1")
    k.e("v_add_u32 v24, s36, v24")
    k.e(f"v_mul_f32 v34, {hex(f2u(DH ** -0.5 * math.log2(math.e)))}, v33")
    k.e("s_waitcnt lgkmcnt(0)")
    for c in range(2):
        a = ACC + 16 * c
        rs = "v34" if c == 0 else "v33"
        for r in range(16):
            k.e(f"v_fma_f32 v{a+r}, -v32, v{64+16*c+r}, v{a+r}")
            k.e(f"v_mul_f32 v{a+r}, {rs}, v{a+r}")
        k.e("v_cmp_gt_u32 vcc, 32, v1")
        k.e("s_nop 1")
        for r in range(12, 16):
            pad = "1.0" if (c == 1 and r == 12) else "0"
            k.e(f"v_cndmask_b32 v{a+r}, {pad}, v{a+r}, vcc")
        for g in range(4):
            k.e(f"v_cvt_pk_bf16_f32 v{96+8*c+2*g}, v{a+4*g}, v{a+4*g+1}")
            k.e(f"v_cvt_pk_bf16_f32 v{97+8*c+2*g}, v{a+4*g+2}, v{a+4*g+3}")
        k.e(f"s_mov_b32 s37, {hex(c*0x200000)}")
        for g in range(4):
            k.e(f"buffer_store_dwordx2 v[{96+8*c+2*g}:{97+8*c+2*g}], v23, s[16:19], s37 offen offset:{16*g}")
    a = ACC + 32
    for r in range(16):
        g, j = r >> 2, r & 3
        mreg = 128 + 8 * g + 2 * j
        k.e(f"v_fma_f32 v{a+r}, -v{mreg}, v48, v{a+r}")
        k.e(f"v_mul_f32 v{a+r}, v{mreg+1}, v{a+r}")
    k.e("v_cmp_gt_u32 vcc, 28, v12")
    k.e("v_cmp_eq_u32 s[38:39], 28, v12")
    k.e("v_cndmask_b32 v27, 0, 1.0, s[38:39]")
    k.e("s_nop 1")
    for r in range(16):
        k.e(f"v_cndmask_b32 v{a+r}, v27, v{a+r}, vcc")
    for r in range(8):
        k.e(f"v_cvt_pk_bf16_f32 v{112+r}, v{a+2*r}, v{a+2*r+1}")
    k.e("s_mov_b32 s37, 0x400000")
    for g_ in range(2):
        k.e(f"buffer_store_dwordx4 v[{112+4*g_}:{115+4*g_}], v24, s[16:19], s37 offen offset:{32*g_}")
    finish(k)
    return k, 256, SCR + 4096 + 1024, 256


def gen_k2():
    G.OFRAG = True
    k = G.gen_k2()
    return k, 256, 3 * (256 * 80 + 32 * 528) + 64, 512


def build():
    ks = [gen_k1(), gen_k2(), gen_sk(3), gen_k4(), gen_sk(5)]
    out = [HEADER.rstrip("\n")]
    for k, g, lds, blk in ks:
        out.append(f"; @launch kernel={k.name} grid=({g},1,1) block=({blk},1,1) lds={lds}")
    out.append('.amdgcn_target "amdgcn-amd-amdhsa--gfx950"')
    out.append(".text")
    for k, g, lds, blk in ks:
        out.append(f".globl {k.name}")
        out.append(".p2align 8")
        out.append(f".type {k.name},@function")
        out.append(f"{k.name}:")
        out += [l for l in k.L if l is not None]
    out.append('.section .rodata,"a"')
    for k, g, lds, blk in ks:
        out.append(".p2align 6")
        out.append(f".amdhsa_kernel {k.name}")
        out.append("  .amdhsa_next_free_vgpr 256")
        out.append("  .amdhsa_next_free_sgpr 102")
        out.append("  .amdhsa_accum_offset 256")
        out.append("  .amdhsa_group_segment_fixed_size 0")
        out.append("  .amdhsa_kernarg_size 80")
        out.append("  .amdhsa_user_sgpr_count 2")
        out.append("  .amdhsa_user_sgpr_kernarg_segment_ptr 1")
        out.append("  .amdhsa_system_sgpr_workgroup_id_x 1")
        out.append(".end_amdhsa_kernel")
    return "\n".join(out) + "\n"


if __name__ == "__main__":
    txt = build()
    open(OUT or ("cdna_kernels/" + NAME + ".s"), "w").write(txt)
    print("written", len(txt))
```

```python
import math, sys, os
STAMP = int(os.environ.get("STAMP", "0"))
EXPT = int(os.environ.get("EXPT", "0"))
OFRAG = False
OUT = os.environ.get("OUT", "")

NAME = "sequential_preLN__softmax_full_mha__geglu_ffn__prompt"
S, D, H, DH, F = 2048, 448, 16, 28, 1792
WS_Q, WS_K, WS_V, WS_O, WS_H, WS_ACT = 0x0, 0x200000, 0x400000, 0x600000, 0x800000, 0xA00000
WS_SIZE = 268435456


def f2u(x):
    import struct
    return struct.unpack("<I", struct.pack("<f", x))[0]


class K:
    def __init__(s, name):
        s.name = name
        s.L = []
        s.nlab = 0
        s.nst = 0

    def e(s, x):
        s.L.append("    " + x)

    def lab(s, l):
        s.L.append(l + ":")

    def newlab(s, p="L"):
        s.nlab += 1
        return f"{s.name}_{p}{s.nlab}"

    def nop(s, n):
        while n > 0:
            k = min(n, 16)
            s.e(f"s_nop {k-1}")
            n -= k

    def stamp(s):
        if STAMP == 2:
            if s.nst == 0:
                s.e("s_memrealtime s[90:91]")
                s.nst = 1
            return
        if not STAMP:
            return
        i = s.nst
        s.nst += 1
        s.e("s_memtime s[60:61]")
        s.e("s_waitcnt lgkmcnt(0)")
        s.e(f"s_mov_b32 s{64+i}, s60")

    def srd(s, sd, sb, off, nbytes):
        if off:
            s.e(f"s_add_u32 s{sd}, s{sb}, {hex(off)}")
            s.e(f"s_addc_u32 s{sd+1}, s{sb+1}, 0")
        else:
            s.e(f"s_mov_b32 s{sd}, s{sb}")
            s.e(f"s_mov_b32 s{sd+1}, s{sb+1}")
        s.e(f"s_mov_b32 s{sd+2}, {hex(nbytes)}")
        s.e(f"s_mov_b32 s{sd+3}, 0x00020000")

    def mfma(s, d, a, b, c):
        cs = f"v[{c}:{c+15}]" if isinstance(c, int) else c
        s.e(f"v_mfma_f32_32x32x16_bf16 v[{d}:{d+15}], v[{a}:{a+3}], v[{b}:{b+3}], {cs}")


def vr(a, n):
    return f"v[{a}:{a+n-1}]"


VA = 64
VACC0 = 176
VACC1 = 192
VB = 208
VPF = 224
A_STRIDE = 912
A_WAVE = 32 * A_STRIDE
BBUF = 28672


def tmpl_prologue(k, nwg, a_arg, a_off, a_bytes):
    k.e(f"s_cmp_ge_u32 s2, {nwg}")
    k.e(f"s_cbranch_scc1 {k.name}_end")
    k.e(f"s_load_dwordx2 s[4:5], s[0:1], {a_arg}")
    k.e(f"s_load_dwordx2 s[28:29], s[0:1], 72")
    k.e("v_and_b32 v1, 63, v0")
    k.e("v_lshrrev_b32 v2, 6, v0")
    k.e("s_nop 0")
    k.e("v_readfirstlane_b32 s3, v2")
    k.stamp()


def b_loads(k, srd, colbytes_sreg_or_imm, stride):
    if isinstance(colbytes_sreg_or_imm, str):
        k.e(f"s_mov_b32 s40, {colbytes_sreg_or_imm}")
    else:
        k.e(f"s_mov_b32 s40, {hex(colbytes_sreg_or_imm)}")
    for i in range(7):
        k.e(f"buffer_load_dwordx4 {vr(VPF+4*i,4)}, v3, s[{srd}:{srd+3}], s40 offen")
        if i < 6:
            k.e(f"s_add_u32 s40, s40, {hex(64*stride)}")


def b_writes(k, buf):
    for i in range(7):
        k.e(f"ds_write_b128 v4, {vr(VPF+4*i,4)} offset:{buf*BBUF + i*4096}")


def a_stage(k, do_ln):
    k.e("v_lshlrev_b32 v5, 4, v1")
    for i in range(28):
        if i % 4 == 0:
            if i == 0:
                k.e("s_mov_b32 s42, s41")
            else:
                k.e("s_add_u32 s42, s42, 4096")
        k.e(f"buffer_load_dwordx4 {vr(VA+4*i,4)}, v5, s[8:11], s42 offen offset:{(i%4)*1024}")
    k.e(f"s_mul_i32 s43, s3, {A_WAVE}")
    k.e("s_movk_i32 s44, 2341")
    addr_regs = []
    for i in range(28):
        pass
    k.e("s_waitcnt vmcnt(0)")
    k.stamp()
    for i in range(28):
        k.e(f"v_add_u32 v7, {i*64}, v1")
        k.e("v_mul_u32_u24 v8, s44, v7")
        k.e("v_lshrrev_b32 v8, 17, v8")
        k.e("v_add_lshl_u32 v7, v7, v8, 4")
        k.e("v_add_u32 v7, s43, v7")
        k.e(f"ds_write_b128 v7, {vr(VA+4*i,4)}")
    k.e("v_and_b32 v7, 31, v1")
    k.e(f"v_mul_u32_u24 v7, {A_STRIDE}, v7")
    k.e("v_lshrrev_b32 v8, 5, v1")
    k.e("v_lshl_add_u32 v7, v8, 4, v7")
    k.e("v_add_u32 v7, s43, v7")
    k.e("s_waitcnt lgkmcnt(0)")
    for s_ in range(28):
        k.e(f"ds_read_b128 {vr(VA+4*s_,4)}, v7 offset:{32*s_}")
    k.e("s_waitcnt lgkmcnt(0)")
    k.stamp()


def a_ln(k):
    k.e("s_mov_b32 s44, 0x3f803f80")
    for r in (8, 9, 10, 11):
        k.e(f"v_mov_b32 v{r}, 0")
    for r in range(112):
        k.e(f"v_dot2_f32_bf16 v{8+(r&1)}, v{VA+r}, s44, v{8+(r&1)}")
        k.e(f"v_dot2_f32_bf16 v{10+(r&1)}, v{VA+r}, v{VA+r}, v{10+(r&1)}")
    k.e("s_nop 1")
    k.e("v_add_f32 v8, v8, v9")
    k.e("v_add_f32 v10, v10, v11")
    k.e("s_nop 0")
    k.e("v_mov_b32 v9, v8")
    k.e("v_mov_b32 v11, v10")
    k.e("s_nop 1")
    k.e("v_permlane32_swap_b32 v8, v9")
    k.e("v_permlane32_swap_b32 v10, v11")
    k.e("s_nop 1")
    k.e("v_add_f32 v8, v8, v9")
    k.e("v_add_f32 v10, v10, v11")
    k.e(f"s_mov_b32 s44, {hex(f2u(1.0/448))}")
    k.e("v_mul_f32 v8, s44, v8")
    k.e("v_mul_f32 v10, s44, v10")
    k.e("v_fma_f32 v10, -v8, v8, v10")
    k.e("v_max_f32 v10, 0, v10")
    k.e(f"v_add_f32 v10, {hex(f2u(1e-5))}, v10")
    k.e("v_rsq_f32 v12, v10")
    k.e("s_nop 0")
    k.e("v_mov_b32 v13, v12")
    k.e("v_mul_f32 v14, v8, v12")
    k.e("v_sub_f32 v14, 0, v14")
    k.e("v_mov_b32 v15, v14")
    for r in range(112):
        t = 16 + 2 * (r & 1)
        k.e(f"v_lshlrev_b32 v{t}, 16, v{VA+r}")
        k.e(f"v_and_b32 v{t+1}, 0xffff0000, v{VA+r}")
        k.e(f"v_pk_fma_f32 v[{t}:{t+1}], v[{t}:{t+1}], v[12:13], v[14:15]")
        k.e(f"v_cvt_pk_bf16_f32 v{VA+r}, v{t}, v{t+1}")
    k.stamp()


def chunk_mfma(k, buf, acc, w_first):
    def rd(s_):
        b = VB + 4 * (s_ % 4)
        k.e(f"ds_read_b64_tr_b16 v[{b}:{b+1}], v21 offset:{buf*BBUF + 1024*s_}")
        k.e(f"ds_read_b64_tr_b16 v[{b+2}:{b+3}], v21 offset:{buf*BBUF + 1024*s_ + 256}")
    for s_ in range(3):
        rd(s_)
    for s_ in range(28):
        if s_ + 3 < 28:
            rd(s_ + 3)
            k.e("s_waitcnt lgkmcnt(6)")
        else:
            k.e(f"s_waitcnt lgkmcnt({2*(27-s_)})")
        b = VB + 4 * (s_ % 4)
        a = VA + 4 * s_
        c = "0" if s_ == 0 else acc
        if w_first:
            k.mfma(acc, b, a, c)
        else:
            k.mfma(acc, a, b, c)
    k.stamp()


def tr_addr(k):
    k.e("v_lshrrev_b32 v22, 5, v1")
    k.e("v_lshlrev_b32 v21, 9, v22")
    k.e("v_bfe_u32 v22, v1, 2, 2")
    k.e("v_lshl_add_u32 v21, v22, 6, v21")
    k.e("v_bfe_u32 v22, v1, 4, 1")
    k.e("v_lshl_add_u32 v21, v22, 5, v21")
    k.e("v_and_b32 v22, 3, v1")
    k.e("v_lshl_add_u32 v21, v22, 3, v21")


def b_thread_addr(k, stride):
    k.e("v_lshrrev_b32 v3, 2, v0")
    k.e(f"s_movk_i32 s44, {stride}" if stride < 32768 else f"s_mov_b32 s44, {stride}")
    k.e("v_mul_u32_u24 v3, s44, v3")
    k.e("v_and_b32 v4, 3, v0")
    k.e("v_lshl_add_u32 v3, v4, 4, v3")
    k.e("v_lshlrev_b32 v4, 4, v0")


KIDX = {"k1": 0, "k2": 1, "k3": 2, "k4": 3, "k5": 4}
def finish(k):
    if STAMP == 2:
        k.e("s_cmp_lg_u32 s3, 0")
        k.e(f"s_cbranch_scc1 {k.name}_end")
        k.e("s_waitcnt vmcnt(0)")
        k.e("s_memrealtime s[92:93]")
        k.srd(56, 28, 0x1F00000 + 8192 * KIDX[k.name[:2]], 8192)
        k.e("s_mov_b64 exec, -1")
        k.e("s_waitcnt lgkmcnt(0)")
        k.e("s_lshl_b32 s63, s2, 4")
        k.e("v_mov_b32 v1, s63")
        k.e("v_mov_b32 v4, s90")
        k.e("v_mov_b32 v5, s92")
        k.e("buffer_store_dwordx2 v[4:5], v1, s[56:59], 0 offen")
    elif STAMP and k.nst:
        k.stamp()
        k.e("s_cmp_lg_u32 s2, 0")
        k.e(f"s_cbranch_scc1 {k.name}_end")
        k.e("s_cmp_lg_u32 s3, 0")
        k.e(f"s_cbranch_scc1 {k.name}_end")
        k.e("s_load_dwordx2 s[60:61], s[0:1], 64")
        k.e("s_waitcnt lgkmcnt(0)")
        k.srd(56, 60, 0, 256)
        k.e("s_mov_b64 exec, -1")
        k.e("v_mov_b32 v1, 0")
        for i in range(k.nst):
            k.e(f"s_sub_u32 s63, s{64+i}, s64")
            k.e("v_mov_b32 v2, s63")
            k.e(f"buffer_store_dword v2, v1, s[56:59], 0 offen offset:{4*i}")
    k.lab(f"{k.name}_end")
    k.e("s_endpgm")


def gen_k1():
    k = K("k1_qkv_kernel")
    tmpl_prologue(k, 256, 0, 0, 0)
    k.e("s_load_dwordx2 s[6:7], s[0:1], 8")
    k.e("s_and_b32 s30, s2, 15")
    k.e("s_lshr_b32 s31, s2, 4")
    k.e("s_waitcnt lgkmcnt(0)")
    k.srd(8, 4, 0, S * D * 2)
    k.srd(12, 6, 0, D * 3 * D * 2)
    k.e("s_lshl_b32 s32, s31, 17")
    k.e("s_add_u32 s16, s28, s32")
    k.e("s_addc_u32 s17, s29, 0")
    k.e(f"s_mov_b32 s18, {hex(0x400000 + 0x20000)}")
    k.e("s_mov_b32 s19, 0x00020000")
    b_thread_addr(k, 2688)
    tr_addr(k)
    k.e("s_mul_i32 s33, s31, 56")
    b_loads(k, 12, "s33", 2688)
    k.e("s_lshl_b32 s41, s30, 2")
    k.e("s_add_u32 s41, s41, s3")
    k.e("s_lshl_b32 s34, s41, 5")
    k.e(f"s_mul_i32 s41, s41, {32*896}")
    a_stage(k, True)
    k.e("s_barrier")
    b_writes(k, 0)
    k.e("s_add_u32 s35, s33, 896")
    b_loads(k, 12, "s35", 2688)
    a_ln(k)
    k.e("v_and_b32 v25, 31, v1")
    k.e("v_lshrrev_b32 v26, 5, v1")
    k.e("v_add_u32 v23, s34, v25")
    k.e("v_lshlrev_b32 v23, 6, v23")
    k.e("v_lshl_add_u32 v23, v26, 3, v23")
    k.e("v_lshlrev_b32 v24, 12, v25")
    k.e("v_lshl_add_u32 v24, v26, 4, v24")
    k.e("s_lshl_b32 s36, s34, 1")
    k.e("v_add_u32 v24, s36, v24")
    k.e("s_waitcnt lgkmcnt(0)")
    k.e("s_barrier")
    for c in range(3):
        chunk_mfma(k, c & 1, VACC0, w_first=(c < 2))
        if c < 2:
            k.e("s_waitcnt vmcnt(0)")
            b_writes(k, (c + 1) & 1)
            if c == 0:
                k.e("s_add_u32 s35, s33, 1792")
                b_loads(k, 12, "s35", 2688)
        k.nop(16)
        if c < 2:
            k.e("v_cmp_gt_u32 vcc, 32, v1")
            k.e("s_nop 1")
            if c == 0:
                k.e(f"s_mov_b32 s37, {hex(f2u(DH ** -0.5 * math.log2(math.e)))}")
                for r in range(16):
                    k.e(f"v_mul_f32 v{VACC0+r}, s37, v{VACC0+r}")
            for r in range(12, 16):
                pad = "1.0" if (c == 1 and r == 12) else "0"
                k.e(f"v_cndmask_b32 v{VACC0+r}, {pad}, v{VACC0+r}, vcc")
            for g in range(4):
                k.e(f"v_cvt_pk_bf16_f32 v{28+2*g}, v{VACC0+4*g}, v{VACC0+4*g+1}")
                k.e(f"v_cvt_pk_bf16_f32 v{29+2*g}, v{VACC0+4*g+2}, v{VACC0+4*g+3}")
            k.e(f"s_mov_b32 s37, {hex(c*0x200000)}")
            for g in range(4):
                k.e(f"buffer_store_dwordx2 v[{28+2*g}:{29+2*g}], v23, s[16:19], s37 offen offset:{16*g}")
        else:
            k.e("v_cmp_gt_u32 vcc, 28, v25")
            k.e("v_cmp_eq_u32 s[38:39], 28, v25")
            k.e("v_cndmask_b32 v27, 0, 1.0, s[38:39]")
            k.e("s_nop 1")
            for r in range(16):
                k.e(f"v_cndmask_b32 v{VACC0+r}, v27, v{VACC0+r}, vcc")
            for r in range(8):
                k.e(f"v_cvt_pk_bf16_f32 v{28+r}, v{VACC0+2*r}, v{VACC0+2*r+1}")
            k.e("s_mov_b32 s37, 0x400000")
            for G in range(2):
                k.e(f"buffer_store_dwordx4 v[{28+4*G}:{31+4*G}], v24, s[16:19], s37 offen offset:{32*G}")
        if c < 2:
            k.e("s_waitcnt lgkmcnt(0)")
            k.e("s_barrier")
    finish(k)
    return k


def gen_k2():
    k = K("k2_attn_kernel")
    VQ = 8
    VS = 64
    VO = 128
    VP = 144
    VKF = 176
    VVF = 192
    VPFK = 224
    VPFV = 232
    KB = 256 * 80
    VST = 528
    VBS = 32 * VST
    BUF = KB + VBS
    T = 6.0
    k.e("s_cmp_ge_u32 s2, 256")
    k.e(f"s_cbranch_scc1 {k.name}_end")
    k.e("s_load_dwordx2 s[28:29], s[0:1], 72")
    k.e("v_and_b32 v1, 63, v0")
    k.e("v_lshrrev_b32 v2, 6, v0")
    K2M = int(os.environ.get("K2M", "1"))
    PF = int(os.environ.get("PF", "3"))
    PFC = int(os.environ.get("PFC", "5"))
    if PF:
        k.e("s_load_dwordx2 s[48:49], s[0:1], 16")
        k.e("s_load_dwordx2 s[50:51], s[0:1], 32")
        k.e("s_load_dwordx2 s[52:53], s[0:1], 40")
        k.e("s_load_dwordx2 s[54:55], s[0:1], 48")
    if K2M:
        k.e("s_and_b32 s31, s2, 7")
        k.e("s_lshl_b32 s31, s31, 1")
        k.e("s_lshr_b32 s30, s2, 7")
        k.e("s_add_u32 s31, s31, s30")
        k.e("s_bfe_u32 s30, s2, 0x40003")
    else:
        k.e("s_and_b32 s30, s2, 15")
        k.e("s_lshr_b32 s31, s2, 4")
    k.e("v_readfirstlane_b32 s3, v2")
    k.e("s_lshl_b32 s32, s31, 17")
    k.e("s_and_b32 s33, s3, 3")
    k.e("s_lshr_b32 s44, s3, 2")
    k.e("s_waitcnt lgkmcnt(0)")
    k.e("s_add_u32 s8, s28, s32")
    k.e("s_addc_u32 s9, s29, 0")
    k.e(f"s_mov_b32 s10, {hex(0x400000 + 0x20000)}")
    k.e("s_mov_b32 s11, 0x00020000")
    k.srd(16, 28, WS_O, 64 * 32 * 1024 if OFRAG else S * D * 2)
    k.e("s_lshl_b32 s34, s30, 2")
    k.e("s_add_u32 s34, s34, s33")
    k.e("s_lshl_b32 s34, s34, 5")
    k.e("v_and_b32 v25, 31, v1")
    k.e("v_lshrrev_b32 v26, 5, v1")
    k.e("v_add_u32 v3, s34, v25")
    k.e("v_lshlrev_b32 v3, 6, v3")
    k.e("v_lshl_add_u32 v3, v26, 4, v3")
    k.e("buffer_load_dwordx4 v[8:11], v3, s[8:11], 0 offen")
    k.e("buffer_load_dwordx4 v[12:15], v3, s[8:11], 0 offen offset:32")
    k.e("v_lshlrev_b32 v4, 4, v0")
    k.e("v_lshrrev_b32 v5, 2, v0")
    k.e("v_mul_u32_u24 v5, 80, v5")
    k.e("v_and_b32 v6, 3, v0")
    k.e("v_lshl_add_u32 v5, v6, 4, v5")
    k.e("v_lshrrev_b32 v6, 5, v0")
    k.e("v_and_b32 v7, 31, v0")
    k.e("v_lshlrev_b32 v16, 12, v6")
    k.e("v_lshl_add_u32 v16, v7, 4, v16")
    k.e(f"v_mul_u32_u24 v17, {VST}, v6")
    k.e("v_lshl_add_u32 v17, v7, 4, v17")
    k.e(f"v_add_u32 v17, {KB}, v17")
    k.e("v_mul_u32_u24 v18, 80, v25")
    k.e("v_lshl_add_u32 v18, v26, 4, v18")
    k.e(f"s_mul_i32 s45, s44, {128*80}")
    k.e("v_add_u32 v18, s45, v18")
    k.e(f"v_mul_u32_u24 v19, {VST}, v25")
    k.e("v_lshl_add_u32 v19, v26, 4, v19")
    k.e("s_lshl_b32 s45, s44, 8")
    k.e(f"s_add_u32 s45, s45, {KB}")
    k.e("v_add_u32 v19, s45, v19")
    k.e("s_mov_b32 s46, 0")
    k.e("s_mov_b32 s47, -1")

    def g_loads():
        k.e(f"buffer_load_dwordx4 {vr(VPFK,4)}, v4, s[8:11], s35 offen")
        k.e(f"s_add_u32 s37, s35, 8192")
        k.e(f"buffer_load_dwordx4 {vr(VPFK+4,4)}, v4, s[8:11], s37 offen")
        k.e(f"buffer_load_dwordx4 {vr(VPFV,4)}, v16, s[8:11], s36 offen")
        k.e(f"s_add_u32 s37, s36, 0x10000")
        k.e(f"buffer_load_dwordx4 {vr(VPFV+4,4)}, v16, s[8:11], s37 offen")
        k.e("s_add_u32 s35, s35, 16384")
        k.e("s_add_u32 s36, s36, 512")

    def l_writes(buf):
        k.e(f"ds_write_b128 v5, {vr(VPFK,4)} offset:{buf*BUF}")
        k.e(f"ds_write_b128 v5, {vr(VPFK+4,4)} offset:{buf*BUF + 128*80}")
        k.e(f"ds_write_b128 v17, {vr(VPFV,4)} offset:{buf*BUF}")
        k.e(f"ds_write_b128 v17, {vr(VPFV+4,4)} offset:{buf*BUF + 16*VST}")

    def chunk(buf, first):
        for kt in range(4):
            kf = VKF + 8 * (kt & 1)
            k.e(f"ds_read_b128 {vr(kf,4)}, v18 offset:{buf*BUF + kt*32*80}")
            k.e(f"ds_read_b128 {vr(kf+4,4)}, v18 offset:{buf*BUF + kt*32*80 + 32}")
            if kt >= 1:
                pk = VKF + 8 * ((kt - 1) & 1)
                k.e("s_waitcnt lgkmcnt(2)")
                k.mfma(VS + 16 * (kt - 1), pk, VQ, "0")
                k.mfma(VS + 16 * (kt - 1), pk + 4, VQ + 4, VS + 16 * (kt - 1))
        k.e("s_waitcnt lgkmcnt(0)")
        k.mfma(VS + 48, VKF + 8, VQ, "0")
        k.mfma(VS + 48, VKF + 12, VQ + 4, VS + 48)
        for kt in range(4):
            for G in range(2):
                k.e(f"ds_read_b128 {vr(VVF+4*(2*kt+G),4)}, v19 offset:{buf*BUF + (kt*32+16*G)*2}")
        k.nop(12)
        k.e(f"v_max3_f32 v21, v{VS}, v{VS+1}, v{VS+2}")
        for i in range(3, 63, 2):
            k.e(f"v_max3_f32 v21, v21, v{VS+i}, v{VS+i+1}")
        k.e(f"v_max_f32 v21, v21, v{VS+63}")
        fast = k.newlab("fast")
        if not first:
            k.e("v_cmp_lt_f32 vcc, s38, v21")
            k.e(f"s_cbranch_vccz {fast}")
        k.e("v_mov_b32 v22, v21")
        k.e("s_nop 1")
        k.e("v_permlane32_swap_b32 v21, v22")
        k.e("s_nop 1")
        k.e("v_max_f32 v21, v21, v22")
        if not first:
            k.e("v_max_f32 v21, 0, v21")
        k.e("v_add_f32 v22, v20, v21")
        k.e("v_cvt_pk_bf16_f32 v23, v22, v22")
        k.e("v_lshlrev_b32 v22, 16, v23")
        k.e("v_sub_f32 v21, v22, v20")
        k.e("v_mov_b32 v20, v22")
        for i in range(64):
            k.e(f"v_sub_f32 v{VS+i}, v{VS+i}, v21")
        if not first:
            k.e("v_exp_f32 v24, -v21")
            k.e("s_nop 0")
            for r in range(16):
                k.e(f"v_mul_f32 v{VO+r}, v{VO+r}, v24")
        k.e("v_xor_b32 v23, 0x8000, v23")
        k.e("v_and_b32 v23, 0xffff, v23")
        k.e(f"v_cndmask_b32 v{VQ+6}, v{VQ+6}, v23, s[46:47]")
        k.lab(fast)
        for i in range(64):
            k.e(f"v_exp_f32 v{VS+i}, v{VS+i}")
        k.e("s_nop 0")
        for i in range(32):
            k.e(f"v_cvt_pk_bf16_f32 v{VP+i}, v{VS+2*i}, v{VS+2*i+1}")
        k.e("s_waitcnt lgkmcnt(0)")
        k.e("s_nop 1")
        for kt in range(4):
            for G in range(2):
                j = 2 * kt + G
                k.mfma(VO, VVF + 4 * j, VP + 4 * j, VO)
        k.e("s_waitcnt vmcnt(0)")
        l_writes(buf ^ 1)
        skip = k.newlab("skip")
        k.e(f"s_cmp_ge_u32 s35, {hex(0x200000 + 8*16384)}")
        k.e(f"s_cbranch_scc1 {skip}")
        g_loads()
        k.lab(skip)
        k.e("s_waitcnt lgkmcnt(0)")
        k.e("s_barrier")

    FS = [64, 80]
    FP = [96, 104]
    FK = [112, 120]
    FV = [128, 136]
    FO = 144
    FPF0 = 160
    FLAG = 3 * BUF

    def fg_loads(c):
        FPF = FPF0 + 16 * (c & 1)
        k.e(f"buffer_load_dwordx4 {vr(FPF,4)}, v4, s[8:11], s35 offen")
        k.e(f"s_add_u32 s37, s35, 8192")
        k.e(f"buffer_load_dwordx4 {vr(FPF+4,4)}, v4, s[8:11], s37 offen")
        k.e(f"buffer_load_dwordx4 {vr(FPF+8,4)}, v16, s[8:11], s36 offen")
        k.e(f"s_add_u32 s37, s36, 0x10000")
        k.e(f"buffer_load_dwordx4 {vr(FPF+12,4)}, v16, s[8:11], s37 offen")
        k.e("s_add_u32 s35, s35, 16384")
        k.e("s_add_u32 s36, s36, 512")

    k.e(f"v_add_u32 v40, {2*BUF}, v5")
    k.e(f"v_add_u32 v41, {2*BUF}, v17")
    k.e(f"v_add_u32 v42, {2*BUF}, v18")
    k.e(f"v_add_u32 v43, {2*BUF}, v19")

    def fl_writes(c):
        buf = c % 3
        FPF = FPF0 + 16 * (c & 1)
        a, b, o = ("v5", "v17", buf * BUF) if buf < 2 else ("v40", "v41", 0)
        k.e(f"ds_write_b128 {a}, {vr(FPF,4)} offset:{o}")
        k.e(f"ds_write_b128 {a}, {vr(FPF+4,4)} offset:{o + 128*80}")
        k.e(f"ds_write_b128 {b}, {vr(FPF+8,4)} offset:{o}")
        k.e(f"ds_write_b128 {b}, {vr(FPF+12,4)} offset:{o + 16*VST}")

    def rdK(t):
        c, kt = t >> 2, t & 3
        kf = FK[t & 1]
        a, o = ("v18", (c % 3) * BUF) if c % 3 < 2 else ("v42", 0)
        k.e(f"ds_read_b128 {vr(kf,4)}, {a} offset:{o + kt*32*80}")
        k.e(f"ds_read_b128 {vr(kf+4,4)}, {a} offset:{o + kt*32*80 + 32}")

    def rdV(t):
        c, kt = t >> 2, t & 3
        vf = FV[t & 1]
        for G in range(2):
            a, o = ("v19", (c % 3) * BUF) if c % 3 < 2 else ("v43", 0)
            k.e(f"ds_read_b128 {vr(vf+4*G,4)}, {a} offset:{o + (kt*32+16*G)*2}")

    k.stamp()
    k.e("s_mov_b32 s35, 0x200000")
    k.e("s_mov_b32 s36, 0x400000")
    fg_loads(0)
    fg_loads(1)
    k.e("s_waitcnt vmcnt(4)")
    k.stamp()
    fl_writes(0)
    fg_loads(2)
    k.e("s_waitcnt vmcnt(4)")
    fl_writes(1)
    fg_loads(3)
    k.e("s_waitcnt lgkmcnt(0)")
    k.e("s_barrier")
    for kt in range(4):
        k.e(f"ds_read_b128 {vr(128+8*kt,4)}, v18 offset:{kt*32*80}")
        k.e(f"ds_read_b128 {vr(132+8*kt,4)}, v18 offset:{kt*32*80 + 32}")
    for kt in range(4):
        k.e(f"s_waitcnt lgkmcnt({6-2*kt})")
        k.mfma(64 + 16 * kt, 128 + 8 * kt, VQ, "0")
        k.mfma(64 + 16 * kt, 132 + 8 * kt, VQ + 4, 64 + 16 * kt)
    rdK(0)
    rdK(1)
    k.nop(12)
    k.e("v_max3_f32 v21, v64, v65, v66")
    for i in range(3, 63, 2):
        k.e(f"v_max3_f32 v21, v21, v{64+i}, v{64+i+1}")
    k.e("v_max_f32 v21, v21, v127")
    k.e("v_mov_b32 v22, v21")
    k.e("s_nop 1")
    k.e("v_permlane32_swap_b32 v21, v22")
    k.e("s_nop 1")
    k.e("v_max_f32 v21, v21, v22")
    k.e("v_cvt_pk_bf16_f32 v23, v21, v21")
    k.e("v_lshlrev_b32 v20, 16, v23")
    k.e("v_xor_b32 v23, 0x8000, v23")
    k.e("v_and_b32 v23, 0xffff, v23")
    k.e(f"v_cndmask_b32 v{VQ+6}, v{VQ+6}, v23, s[46:47]")
    k.e("s_waitcnt lgkmcnt(0)")
    k.e("s_nop 1")
    k.mfma(FS[0], FK[0], VQ, "0")
    k.mfma(FS[0], FK[0] + 4, VQ + 4, FS[0])
    k.nop(16)
    NT = 32
    for t in range(NT):
        c, kt = t >> 2, t & 3
        if kt == 0:
            k.stamp()
        if kt == 1 and EXPT != 6:
            k.e("s_barrier")
        nrd = 0
        if EXPT != 4:
            if t + 2 < NT:
                rdK(t + 2); nrd += 2
            rdV(t); nrd += 2
            k.e(f"s_waitcnt lgkmcnt({nrd})")
        if EXPT == 7:
            sv_mfma = k.mfma
            k.mfma = lambda *a: None
        s = FS[t & 1]
        sn = FS[(t + 1) & 1]
        p = FP[t & 1]
        pp = FP[(t - 1) & 1]
        kf = FK[(t + 1) & 1]
        vf = FV[(t - 1) & 1]
        def ex(a, b):
            for i in range(a, b):
                if EXPT == 1:
                    k.e(f"v_mul_f32 v{s+i}, v{s+i}, v{s+i}")
                elif EXPT in (2, 4, 5, 6):
                    pass
                else:
                    k.e(f"v_exp_f32 v{s+i}, v{s+i}")
        def cv(a, b):
            for i in range(a, b):
                if EXPT not in (3, 5):
                    k.e(f"v_cvt_pk_bf16_f32 v{p+i}, v{s+2*i}, v{s+2*i+1}")
        if t + 1 < NT:
            k.mfma(sn, kf, VQ, "0")
        ex(0, 4)
        if t + 1 < NT:
            k.mfma(sn, kf + 4, VQ + 4, sn)
        ex(4, 8)
        cv(0, 2)
        if t >= 1:
            k.mfma(FO, vf, pp, "0" if t == 1 else FO)
        ex(8, 12)
        cv(2, 4)
        if t >= 1:
            k.mfma(FO, vf + 4, pp + 4, FO)
        ex(12, 16)
        cv(4, 8)
        if EXPT == 7:
            k.mfma = sv_mfma
        if kt == 2 and c + 2 < 8 and EXPT != 6:
            npf = bin(PF).count("1") if (PFC < 4 and c in (PFC + 1, PFC + 2)) else 0
            k.e(f"s_waitcnt vmcnt({(4 if c + 3 < 8 else 0) + npf})")
            fl_writes(c + 2)
            if c + 4 < 8:
                fg_loads(c + 4)
            if c == PFC and PF:
                k.e("s_and_b32 s80, s2, 7")
                if os.environ.get("PFX"):
                    k.e("s_xor_b32 s80, s80, 4")
                k.e("s_lshr_b32 s81, s2, 3")
                k.e("v_lshrrev_b32 v244, 4, v1")
                k.e("s_lshl_b32 s82, s33, 2")
                k.e("v_add_u32 v244, s82, v244")
                k.e("v_min_u32 v244, 13, v244")
                k.e("s_mul_i32 s82, s81, 14")
                k.e("v_add_u32 v244, s82, v244")
                k.e("s_movk_i32 s82, 3584")
                k.e("v_mul_u32_u24 v244, s82, v244")
                k.e("v_and_b32 v245, 15, v1")
                k.e("v_min_u32 v245, 13, v245")
                k.e("v_lshl_add_u32 v244, v245, 7, v244")
                k.e("s_lshr_b32 s82, s80, 2")
                k.e("s_mul_i32 s82, s82, 1792")
                k.e("s_cmp_eq_u32 s44, 0")
                k.e("s_cselect_b32 s84, s50, s52")
                k.e("s_cselect_b32 s85, s51, s53")
                k.e(f"s_mov_b32 s86, {D*F*2}")
                k.e("s_mov_b32 s87, 0x00020000")
                if PF & 1:
                    k.e("buffer_load_dword v240, v244, s[84:87], s82 offen")
                k.e("v_min_u32 v245, 97, v0")
                k.e("v_lshlrev_b32 v245, 7, v245")
                k.e("s_mul_i32 s82, s81, 12544")
                k.srd(84, 48, 0, D * D * 2)
                if PF & 2:
                    k.e("buffer_load_dword v241, v245, s[84:87], s82 offen")
                k.e("v_min_u32 v246, 391, v0")
                k.e("v_lshlrev_b32 v246, 7, v246")
                k.e("s_mul_i32 s82, s81, 50176")
                k.srd(84, 54, 0, D * F * 2)
                if PF & 4:
                    k.e("buffer_load_dword v242, v246, s[84:87], s82 offen")
    k.stamp()
    k.e("s_waitcnt lgkmcnt(0)")
    k.e("s_nop 1")
    k.mfma(FO, FV[(NT - 1) & 1], FP[(NT - 1) & 1], FO)
    k.mfma(FO, FV[(NT - 1) & 1] + 4, FP[(NT - 1) & 1] + 4, FO)
    k.nop(16)
    for r in range(16):
        k.e(f"v_mov_b32 v{VO+r}, v{FO+r}") if VO != FO else None
    k.e(f"s_mov_b32 s38, {hex(f2u(2.0**40))}")
    k.e(f"v_cmp_nlt_f32 vcc, v{FO+12}, s38")
    k.e("s_and_b64 vcc, vcc, s[46:47]")
    k.e("s_cmp_lg_u64 vcc, 0")
    k.e("s_cselect_b32 s38, 1, 0")
    k.e("v_mov_b32 v21, s38")
    k.e("v_lshlrev_b32 v22, 2, v2")
    k.e(f"v_add_u32 v22, {FLAG}, v22")
    k.e(f"ds_write_b32 v22, v21")
    k.e("s_waitcnt lgkmcnt(0)")
    k.e("s_barrier")
    k.e("v_and_b32 v22, 7, v1")
    k.e("v_lshlrev_b32 v22, 2, v22")
    k.e(f"v_add_u32 v22, {FLAG}, v22")
    k.e(f"ds_read_b32 v21, v22")
    k.e("s_waitcnt lgkmcnt(0)")
    k.e("v_cmp_ne_u32 vcc, 0, v21")
    combine = k.newlab("combine")
    k.e(f"s_cbranch_vccz {combine}")
    k.e(f"v_cndmask_b32 v{VQ+6}, v{VQ+6}, 0, s[46:47]")
    k.e("s_barrier")
    k.e("s_mov_b32 s35, 0x200000")
    k.e("s_mov_b32 s36, 0x400000")
    g_loads()
    for r in range(16):
        k.e(f"v_mov_b32 v{VO+r}, 0")
    k.e("v_mov_b32 v20, 0")
    k.e(f"s_mov_b32 s38, {hex(f2u(T))}")
    k.e("s_waitcnt vmcnt(0)")
    l_writes(0)
    g_loads()
    k.e("s_waitcnt lgkmcnt(0)")
    k.e("s_barrier")
    chunk(0, True)
    chunk(1, False)
    k.e("s_mov_b32 s39, 0")
    loop = k.newlab("loop")
    k.lab(loop)
    chunk(0, False)
    chunk(1, False)
    k.e("s_add_u32 s39, s39, 1")
    k.e("s_cmp_lt_u32 s39, 3")
    k.e(f"s_cbranch_scc1 {loop}")
    k.nop(16)
    k.lab(combine)
    k.e("v_lshlrev_b32 v3, 2, v1")
    k.e(f"s_mul_i32 s45, s33, {17*256}")
    k.e("v_add_u32 v3, s45, v3")
    up = k.newlab("up")
    k.e("s_cmp_eq_u32 s44, 0")
    k.e(f"s_cbranch_scc1 {up}")
    for r in range(16):
        k.e(f"ds_write_b32 v3, v{VO+r} offset:{256*r}")
    k.e(f"ds_write_b32 v3, v20 offset:{256*16}")
    k.e("s_waitcnt lgkmcnt(0)")
    k.e("s_barrier")
    k.e("s_endpgm")
    k.lab(up)
    k.e("s_barrier")
    for r in range(16):
        k.e(f"ds_read_b32 v{VS+r}, v3 offset:{256*r}")
    k.e(f"ds_read_b32 v{VS+16}, v3 offset:{256*16}")
    k.e("s_waitcnt lgkmcnt(0)")
    k.e(f"v_max_f32 v21, v20, v{VS+16}")
    k.e("v_sub_f32 v22, v20, v21")
    k.e(f"v_sub_f32 v23, v{VS+16}, v21")
    k.e("v_exp_f32 v22, v22")
    k.e("v_exp_f32 v23, v23")
    k.e("s_nop 0")
    for r in range(16):
        k.e(f"v_mul_f32 v{VO+r}, v{VO+r}, v22")
        k.e(f"v_fma_f32 v{VO+r}, v{VS+r}, v23, v{VO+r}")
    k.e("s_nop 0")
    k.e(f"v_mov_b32 v21, v{VO+12}")
    k.e(f"v_mov_b32 v22, v{VO+12}")
    k.e("s_nop 1")
    k.e("v_permlane32_swap_b32 v21, v22")
    k.e("s_nop 1")
    k.e("v_rcp_f32 v22, v22")
    k.e("s_nop 0")
    for r in range(16):
        k.e(f"v_mul_f32 v{VO+r}, v{VO+r}, v22")
    if OFRAG:
        for r in range(12, 16):
            k.e(f"v_cndmask_b32 v{VO+r}, v{VO+r}, 0, s[46:47]")
    for g in range(4):
        k.e(f"v_cvt_pk_bf16_f32 v{28+2*g}, v{VO+4*g}, v{VO+4*g+1}")
        k.e(f"v_cvt_pk_bf16_f32 v{29+2*g}, v{VO+4*g+2}, v{VO+4*g+3}")
    if OFRAG:
        k.e("v_lshlrev_b32 v3, 4, v1")
        k.e("s_lshr_b32 s40, s34, 5")
        k.e("s_lshl_b32 s40, s40, 5")
        k.e("s_lshl_b32 s41, s31, 1")
        k.e("s_add_u32 s40, s40, s41")
        k.e("s_lshl_b32 s40, s40, 10")
        for g in range(2):
            k.e(f"buffer_store_dwordx4 v[{28+4*g}:{31+4*g}], v3, s[16:19], s40 offen offset:{1024*g}")
        finish(k)
        return k
    k.e("v_add_u32 v3, s34, v25")
    k.e("s_movk_i32 s40, 896")
    k.e("v_mul_u32_u24 v3, s40, v3")
    k.e("v_lshl_add_u32 v3, v26, 3, v3")
    k.e("s_mul_i32 s40, s31, 56")
    for g in range(3):
        k.e(f"buffer_store_dwordx2 v[{28+2*g}:{29+2*g}], v3, s[16:19], s40 offen offset:{16*g}")
    k.e("v_cmp_gt_u32 vcc, 32, v1")
    k.e("s_and_saveexec_b64 s[42:43], vcc")
    k.e(f"buffer_store_dwordx2 v[34:35], v3, s[16:19], s40 offen offset:48")
    finish(k)
    return k


def gen_k3():
    k = K("k3_wo_kernel")
    tmpl_prologue(k, 224, 72, 0, 0)
    k.e("s_load_dwordx2 s[6:7], s[0:1], 16")
    k.e("s_load_dwordx2 s[20:21], s[0:1], 0")
    k.e("s_and_b32 s30, s2, 15")
    k.e("s_lshr_b32 s31, s2, 4")
    k.e("s_waitcnt lgkmcnt(0)")
    k.srd(8, 4, WS_O, S * D * 2)
    k.srd(12, 6, 0, D * D * 2)
    k.srd(16, 28, WS_H, S * D * 2)
    k.srd(24, 20, 0, S * D * 2)
    b_thread_addr(k, 896)
    tr_addr(k)
    k.e("s_lshl_b32 s33, s31, 6")
    b_loads(k, 12, "s33", 896)
    k.e("s_lshl_b32 s41, s30, 2")
    k.e("s_add_u32 s41, s41, s3")
    k.e("s_lshl_b32 s34, s41, 5")
    k.e(f"s_mul_i32 s41, s41, {32*896}")
    a_stage(k, False)
    k.e("s_barrier")
    b_writes(k, 0)
    k.e("v_and_b32 v25, 31, v1")
    k.e("v_lshrrev_b32 v26, 5, v1")
    k.e("v_add_u32 v23, s34, v25")
    k.e("s_movk_i32 s40, 896")
    k.e("v_mul_u32_u24 v23, s40, v23")
    k.e("v_lshl_add_u32 v23, v26, 3, v23")
    for g in range(4):
        k.e(f"buffer_load_dwordx2 v[{28+2*g}:{29+2*g}], v23, s[24:27], s33 offen offset:{16*g}")
    k.e("s_waitcnt lgkmcnt(0)")
    k.e("s_barrier")
    chunk_mfma(k, 0, VACC0, True)
    k.nop(16)
    k.e("s_waitcnt vmcnt(0)")
    for g in range(4):
        for h in range(2):
            src = 28 + 2 * g + h
            k.e(f"v_lshlrev_b32 v36, 16, v{src}")
            k.e(f"v_and_b32 v37, 0xffff0000, v{src}")
            k.e(f"v_add_f32 v36, v36, v{VACC0+4*g+2*h}")
            k.e(f"v_add_f32 v37, v37, v{VACC0+4*g+2*h+1}")
            k.e(f"v_cvt_pk_bf16_f32 v{src}, v36, v37")
    for g in range(4):
        k.e(f"buffer_store_dwordx2 v[{28+2*g}:{29+2*g}], v23, s[16:19], s33 offen offset:{16*g}")
    finish(k)
    return k


def gen_k4():
    k = K("k4_ffn1_kernel")
    tmpl_prologue(k, 224, 72, 0, 0)
    k.e("s_load_dwordx2 s[6:7], s[0:1], 32")
    k.e("s_load_dwordx2 s[20:21], s[0:1], 40")
    k.e("s_and_b32 s30, s2, 15")
    k.e("s_lshr_b32 s31, s2, 4")
    k.e("s_waitcnt lgkmcnt(0)")
    k.srd(8, 4, WS_H, S * D * 2)
    k.srd(12, 6, 0, D * F * 2)
    k.srd(24, 20, 0, D * F * 2)
    k.srd(16, 28, WS_ACT, S * F * 2)
    b_thread_addr(k, 3584)
    tr_addr(k)
    k.e("s_lshl_b32 s33, s31, 8")
    b_loads(k, 12, "s33", 3584)
    k.e("s_lshl_b32 s41, s30, 2")
    k.e("s_add_u32 s41, s41, s3")
    k.e("s_lshl_b32 s34, s41, 5")
    k.e(f"s_mul_i32 s41, s41, {32*896}")
    a_stage(k, True)
    k.e("s_barrier")
    b_writes(k, 0)
    b_loads(k, 24, "s33", 3584)
    a_ln(k)
    k.e("v_and_b32 v25, 31, v1")
    k.e("v_lshrrev_b32 v26, 5, v1")
    k.e("v_add_u32 v23, s34, v25")
    k.e("s_movk_i32 s40, 3584")
    k.e("v_mul_u32_u24 v23, s40, v23")
    k.e("v_lshl_add_u32 v23, v26, 3, v23")
    c0 = -2.0 * math.log2(math.e) * math.sqrt(2.0 / math.pi)
    c1 = c0 * 0.044715
    k.e(f"s_mov_b32 s45, {hex(f2u(c0))}")
    k.e(f"s_mov_b32 s46, {hex(f2u(c1))}")
    k.e("s_waitcnt lgkmcnt(0)")
    k.e("s_barrier")
    nch = 8
    for c in range(nch):
        acc = VACC0 if c % 2 == 0 else VACC1
        chunk_mfma(k, c & 1, acc, True)
        if c + 1 < nch:
            k.e("s_waitcnt vmcnt(0)")
            b_writes(k, (c + 1) & 1)
            if c + 2 < nch:
                j = (c + 2) // 2
                k.e(f"s_add_u32 s35, s33, {64*j}")
                b_loads(k, 12 if (c + 2) % 2 == 0 else 24, "s35", 3584)
        if c % 2 == 1:
            k.nop(16)
            for r in range(16):
                g_, u_ = VACC0 + r, VACC1 + r
                t = 36 + (r & 3)
                k.e(f"v_mul_f32 v{t}, v{g_}, v{g_}")
                k.e(f"v_fma_f32 v{t}, v{t}, s46, v47")
                k.e(f"v_mul_f32 v{t}, v{t}, v{g_}")
                k.e(f"v_exp_f32 v{t}, v{t}")
                k.e("s_nop 0")
                k.e(f"v_add_f32 v{t}, 1.0, v{t}")
                k.e(f"v_rcp_f32 v{t}, v{t}")
                k.e("s_nop 0")
                k.e(f"v_mul_f32 v{t}, v{t}, v{g_}")
                k.e(f"v_mul_f32 v{g_}, v{t}, v{u_}")
            for g in range(4):
                k.e(f"v_cvt_pk_bf16_f32 v{28+2*g}, v{VACC0+4*g}, v{VACC0+4*g+1}")
                k.e(f"v_cvt_pk_bf16_f32 v{29+2*g}, v{VACC0+4*g+2}, v{VACC0+4*g+3}")
            k.e(f"s_add_u32 s37, s33, {64*(c//2)}")
            for g in range(4):
                k.e(f"buffer_store_dwordx2 v[{28+2*g}:{29+2*g}], v23, s[16:19], s37 offen offset:{16*g}")
        if c + 1 < nch:
            k.e("s_waitcnt lgkmcnt(0)")
            k.e("s_barrier")
        if c == 0:
            k.e("v_mov_b32 v47, s45")
    finish(k)
    return k


def gen_k5():
    k = K("k5_down_kernel")
    AST = 464
    ABUF = 64 * AST
    BB = 2 * 224 * 64
    BUF = ABUF + BB
    VPA = 64
    VPB = 96
    VAF = 128
    VBF = 144
    ACC = 160
    k.e("s_cmp_ge_u32 s2, 224")
    k.e(f"s_cbranch_scc1 {k.name}_end")
    k.e("s_load_dwordx2 s[28:29], s[0:1], 72")
    k.e("s_load_dwordx2 s[6:7], s[0:1], 48")
    k.e("s_load_dwordx2 s[20:21], s[0:1], 56")
    k.e("v_and_b32 v1, 63, v0")
    k.e("v_lshrrev_b32 v2, 6, v0")
    k.e("s_and_b32 s30, s2, 31")
    k.e("s_lshr_b32 s31, s2, 5")
    k.e("v_readfirstlane_b32 s3, v2")
    k.e("s_waitcnt lgkmcnt(0)")
    k.srd(8, 28, WS_ACT, S * F * 2)
    k.srd(12, 6, 0, F * D * 2)
    k.srd(16, 20, 0, S * D * 2)
    k.srd(24, 28, WS_H, S * D * 2)
    k.e("s_movk_i32 s44, 2341")
    k.e("s_movk_i32 s44, 4682")
    for i in range(7):
        k.e(f"v_add_u32 v7, {i*256}, v0")
        k.e("v_mul_u32_u24 v8, s44, v7")
        k.e("v_lshrrev_b32 v8, 17, v8")
        k.e("v_mul_u32_u24 v9, 28, v8")
        k.e("v_sub_u32 v9, v7, v9")
        k.e("v_mul_u32_u24 v10, s45, v8") if False else None
        k.e(f"v_lshlrev_b32 v10, 4, v9")
        k.e(f"s_movk_i32 s45, 3584")
        k.e(f"v_mad_u32_u24 v{32+i}, v8, s45, v10")
        k.e(f"s_movk_i32 s45, {AST}")
        k.e(f"v_mad_u32_u24 v{40+i}, v8, s45, v10")
    k.e("v_lshrrev_b32 v7, 3, v0")
    k.e("v_and_b32 v8, 7, v0")
    k.e("s_movk_i32 s45, 896")
    k.e("v_mul_u32_u24 v48, s45, v7")
    k.e("v_lshl_add_u32 v48, v8, 4, v48")
    k.e("v_lshlrev_b32 v49, 6, v7")
    k.e("v_and_b32 v9, 3, v8")
    k.e("v_lshl_add_u32 v49, v9, 4, v49")
    k.e("v_lshrrev_b32 v9, 2, v8")
    k.e(f"s_movk_i32 s45, {224*64}")
    k.e("v_mad_u32_u24 v49, v9, s45, v49")
    k.e(f"v_add_u32 v49, {ABUF}, v49")
    k.e(f"s_mul_i32 s35, s30, {64*3584}")
    k.e("s_lshl_b32 s36, s31, 7")

    def g_loads():
        for i in range(7):
            k.e(f"buffer_load_dwordx4 {vr(VPA+4*i,4)}, v{32+i}, s[8:11], s35 offen")
        k.e("s_mov_b32 s37, s36")
        for i in range(7):
            k.e(f"buffer_load_dwordx4 {vr(VPB+4*i,4)}, v48, s[12:15], s37 offen")
            if i < 6:
                k.e(f"s_add_u32 s37, s37, {32*896}")
        k.e("s_add_u32 s35, s35, 448")
        k.e(f"s_add_u32 s36, s36, {224*896}")

    def l_writes(buf):
        for i in range(7):
            k.e(f"ds_write_b128 v{(50 if buf else 40)+i}, {vr(VPA+4*i,4)}")
        for i in range(7):
            k.e(f"ds_write_b128 v{57 if buf else 49}, {vr(VPB+4*i,4)} offset:{i*32*64}")

    g_loads()
    for i in range(7):
        k.e(f"v_add_u32 v{50+i}, {BUF}, v{40+i}")
    k.e(f"v_add_u32 v57, {BUF}, v49")
    tr_addr(k)
    k.e("s_and_b32 s38, s3, 1")
    k.e(f"s_mul_i32 s38, s38, {224*64}")
    k.e(f"s_add_u32 s38, s38, {ABUF}")
    k.e("v_add_u32 v21, s38, v21")
    k.e("s_lshr_b32 s39, s3, 1")
    k.e("v_and_b32 v25, 31, v1")
    k.e("v_lshrrev_b32 v26, 5, v1")
    k.e("s_lshl_b32 s40, s39, 5")
    k.e("v_add_u32 v20, s40, v25")
    k.e(f"s_movk_i32 s45, {AST}")
    k.e("v_mul_u32_u24 v20, s45, v20")
    k.e("v_lshl_add_u32 v20, v26, 4, v20")
    k.e(f"v_add_u32 v58, {BUF}, v20")
    k.e(f"v_add_u32 v59, {BUF}, v21")
    k.e("s_waitcnt vmcnt(0)")
    l_writes(0)
    g_loads()
    k.e("s_waitcnt lgkmcnt(0)")
    k.e("s_barrier")
    for c in range(8):
        buf = c & 1

        def rd(s_):
            a = VAF + 4 * (s_ % 4)
            b = VBF + 4 * (s_ % 4)
            k.e(f"ds_read_b128 {vr(a,4)}, v{58 if buf else 20} offset:{32*s_}")
            k.e(f"ds_read_b64_tr_b16 v[{b}:{b+1}], v{59 if buf else 21} offset:{1024*s_}")
            k.e(f"ds_read_b64_tr_b16 v[{b+2}:{b+3}], v{59 if buf else 21} offset:{1024*s_ + 256}")
        for s_ in range(3):
            rd(s_)
        for s_ in range(14):
            if s_ + 3 < 14:
                rd(s_ + 3)
                k.e("s_waitcnt lgkmcnt(9)")
            else:
                k.e(f"s_waitcnt lgkmcnt({3*(13-s_)})")
            a = VAF + 4 * (s_ % 4)
            b = VBF + 4 * (s_ % 4)
            k.mfma(ACC, b, a, "0" if (c == 0 and s_ == 0) else ACC)
        if c + 1 < 8:
            k.e("s_waitcnt vmcnt(0)")
            l_writes(buf ^ 1)
            if c + 2 < 8:
                g_loads()
            k.e("s_waitcnt lgkmcnt(0)")
            k.e("s_barrier")
    k.e("s_lshl_b32 s41, s30, 6")
    k.e("s_add_u32 s41, s41, s40")
    k.e("v_add_u32 v23, s41, v25")
    k.e("s_movk_i32 s45, 896")
    k.e("v_mul_u32_u24 v23, s45, v23")
    k.e("v_lshl_add_u32 v23, v26, 3, v23")
    k.e("s_lshl_b32 s42, s31, 7")
    k.e("s_and_b32 s43, s3, 1")
    k.e("s_lshl_b32 s43, s43, 6")
    k.e("s_add_u32 s42, s42, s43")
    for g in range(4):
        k.e(f"buffer_load_dwordx2 v[{28+2*g}:{29+2*g}], v23, s[24:27], s42 offen offset:{16*g}")
    k.nop(16)
    k.e("s_waitcnt vmcnt(0)")
    for g in range(4):
        for h in range(2):
            src = 28 + 2 * g + h
            k.e(f"v_lshlrev_b32 v36, 16, v{src}")
            k.e(f"v_and_b32 v37, 0xffff0000, v{src}")
            k.e(f"v_add_f32 v36, v36, v{ACC+4*g+2*h}")
            k.e(f"v_add_f32 v37, v37, v{ACC+4*g+2*h+1}")
            k.e(f"v_cvt_pk_bf16_f32 v{src}, v36, v37")
    for g in range(4):
        k.e(f"buffer_store_dwordx2 v[{28+2*g}:{29+2*g}], v23, s[16:19], s42 offen offset:{16*g}")
    finish(k)
    return k


HEADER = open("cdna_kernels/" + NAME + ".s.ref").read().split("; Override")[0]


def build(nk=5):
    ks = [(gen_k1(), 256, 4 * A_WAVE, 256), (gen_k2(), 256, 3 * (256 * 80 + 32 * 528) + 64, 512), (gen_k3(), 224, 4 * A_WAVE, 256),
          (gen_k4(), 224, 4 * A_WAVE, 256), (gen_k5(), 224, 2 * (64 * 464 + 28672), 256)][:nk]
    out = [HEADER.rstrip("\n")]
    for k, g, lds, blk in ks:
        out.append(f"; @launch kernel={k.name} grid=({g},1,1) block=({blk},1,1) lds={lds}")
    out.append('.amdgcn_target "amdgcn-amd-amdhsa--gfx950"')
    out.append(".text")
    for k, g, lds, blk in ks:
        out.append(f".globl {k.name}")
        out.append(".p2align 8")
        out.append(f".type {k.name},@function")
        out.append(f"{k.name}:")
        out += [l for l in k.L if l is not None]
    out.append('.section .rodata,"a"')
    for k, g, lds, blk in ks:
        out.append(".p2align 6")
        out.append(f".amdhsa_kernel {k.name}")
        out.append("  .amdhsa_next_free_vgpr 256")
        out.append("  .amdhsa_next_free_sgpr 102")
        out.append("  .amdhsa_accum_offset 256")
        out.append("  .amdhsa_group_segment_fixed_size 0")
        out.append("  .amdhsa_kernarg_size 80")
        out.append("  .amdhsa_user_sgpr_count 2")
        out.append("  .amdhsa_user_sgpr_kernarg_segment_ptr 1")
        out.append("  .amdhsa_system_sgpr_workgroup_id_x 1")
        out.append(".end_amdhsa_kernel")
    return "\n".join(out) + "\n"


if __name__ == "__main__":
    txt = build()
    open(OUT or ("cdna_kernels/" + NAME + ".s"), "w").write(txt)
    print("written", len(txt))
```

```python
import math, sys, os
import gen as G
from gen import K, vr, f2u, finish, NAME, S, D, H, DH, F, HEADER

STAMP = G.STAMP
OUT = os.environ.get("OUT", "")
WS_Q, WS_K, WS_V = 0x0, 0x200000, 0x400000
WS_O = 0x600000
WS_H = 0x800000
WS_ACT = 0xA00000
WS_ST = 0x1200000
ROT = int(os.environ.get("ROT", "7"))
SC1 = int(os.environ.get("SC1", "8"))
EXP = int(os.environ.get("EXP", "0"))
SCF = os.environ.get("SCF", "sc1")


WS_CS = 0x1240000


def cap(k, fn, *a):
    n0 = len(k.L)
    fn(*a)
    out = k.L[n0:]
    del k.L[n0:]
    return out


def pieces(lines):
    out, cur = [], []
    for l in lines:
        cur.append(l)
        if "buffer_load" in l:
            out.append(cur)
            cur = []
    if cur:
        out[-1] += cur
    return out


def dma(k, voff, srd, soff, m0expr):
    k.e(f"buffer_load_dwordx4 {voff}, s[{srd}:{srd+3}], {soff} offen lds")


def gen_sk(which):
    is3 = which == 3
    name = "k3_wo_kernel" if is3 else "k5_down_kernel"
    k = K(name)
    NKS = 32 if is3 else 112
    NST = NKS // 4
    DEP = 8
    ACC = 64
    VAF = 128
    VBF = 192
    k.e("s_cmp_ge_u32 s2, 224")
    k.e(f"s_cbranch_scc1 {k.name}_" + ("cs" if is3 else "end"))
    k.e("s_load_dwordx2 s[28:29], s[0:1], 72")
    k.e(f"s_load_dwordx2 s[6:7], s[0:1], {16 if is3 else 48}")
    if is3:
        k.e("s_load_dwordx2 s[20:21], s[0:1], 0")
    else:
        k.e("s_load_dwordx2 s[20:21], s[0:1], 56")
    k.e("v_and_b32 v1, 63, v0")
    k.e("v_lshrrev_b32 v2, 6, v0")
    k.e("s_and_b32 s30, s2, 7")
    k.e("s_lshr_b32 s31, s2, 3")
    k.e("v_readfirstlane_b32 s3, v2")
    k.e("s_and_b32 s32, s31, 3")
    k.e("s_lshl_b32 s30, s30, 2")
    k.e("s_add_u32 s30, s30, s32")
    k.e("s_lshr_b32 s31, s31, 2")
    k.stamp()
    k.e("v_lshlrev_b32 v3, 4, v1")
    k.e("v_lshrrev_b32 v4, 3, v1")
    k.e("v_and_b32 v5, 7, v1")
    k.e("v_bfe_u32 v6, v1, 4, 1")
    k.e("v_lshlrev_b32 v6, 2, v6")
    k.e("v_xor_b32 v5, v5, v6")
    k.e("s_movk_i32 s44, 896")
    if is3:
        k.e("s_and_b32 s33, s3, 1")
        k.e("s_lshl_b32 s33, s33, 4")
        k.e("v_add_u32 v6, s33, v4")
        k.e("v_add_u32 v7, 8, v6")
        k.e("v_min_u32 v7, 27, v7")
        k.e("v_mul_u32_u24 v6, s44, v6")
        k.e("v_mul_u32_u24 v7, s44, v7")
        k.e("v_lshl_add_u32 v6, v5, 4, v6")
        k.e("v_lshl_add_u32 v7, v5, 4, v7")
    else:
        k.e("v_mul_u32_u24 v6, s44, v4")
        k.e("v_lshl_add_u32 v6, v5, 4, v6")
        k.e(f"v_add_u32 v7, {8*896}, v6")
    k.e("s_waitcnt lgkmcnt(0)")
    k.srd(8, 28, WS_O if is3 else WS_ACT, 64 * NKS * 1024)
    k.srd(12, 6, 0, (D if is3 else F) * D * 2)
    k.e(f"s_mul_i32 s34, s30, {2*NKS*1024}")
    k.e("s_lshl_b32 s35, s3, 10")
    k.e("s_add_u32 s34, s34, s35")
    k.e("s_lshl_b32 s36, s31, 7")
    if is3:
        k.e("s_lshr_b32 s37, s3, 1")
        k.e(f"s_mul_i32 s37, s37, {28*896}")
        bstep = 2 * 28 * 896
    else:
        k.e(f"s_mul_i32 s37, s3, {16*896}")
        bstep = 64 * 896
    k.e("s_add_u32 s36, s36, s37")
    k.e(f"s_mul_i32 s38, s3, {DEP*2048}")
    if ROT & 1:
        ca, cb = (1, 2) if is3 else (4, 7)
        k.e(f"s_mul_i32 s47, s31, {ca}")
        k.e(f"s_mul_i32 s48, s32, {cb}")
        k.e("s_add_u32 s47, s47, s48")
        k.e(f"s_cmp_ge_u32 s47, {NST}")
        k.e(f"s_cselect_b32 s48, {NST}, 0")
        k.e("s_sub_u32 s47, s47, s48")
        k.e("s_lshl_b32 s48, s47, 12")
        k.e("s_add_u32 s34, s34, s48")
        k.e(f"s_mul_i32 s48, s47, {bstep}")
        k.e("s_add_u32 s36, s36, s48")

    def issue(t):
        sl = t % DEP
        a = VAF + 8 * sl
        k.e(f"buffer_load_dwordx4 {vr(a,4)}, v3, s[8:11], s34 offen")
        k.e(f"s_add_u32 s39, s34, {NKS*1024}")
        k.e(f"buffer_load_dwordx4 {vr(a+4,4)}, v3, s[8:11], s39 offen")
        k.e(f"s_add_u32 m0, s38, {sl*2048}")
        k.e("s_add_u32 s34, s34, 4096")
        k.e("buffer_load_dwordx4 v6, s[12:15], s36 offen lds")
        k.e(f"s_add_u32 m0, s38, {sl*2048+1024}")
        k.e("s_nop 0")
        k.e("buffer_load_dwordx4 v7, s[12:15], s36 offen lds")
        k.e(f"s_add_u32 s36, s36, {bstep}")
        if ROT & 1:
            k.e("s_add_u32 s47, s47, 1")
            k.e(f"s_cmp_eq_u32 s47, {NST}")
            k.e(f"s_cselect_b32 s48, {NST*4096}, 0")
            k.e(f"s_cselect_b32 s49, {NST*bstep}, 0")
            k.e("s_sub_u32 s34, s34, s48")
            k.e("s_sub_u32 s36, s36, s49")

    for t in range(min(DEP, NST)):
        issue(t)
    k.e("v_lshrrev_b32 v8, 5, v1")
    k.e("v_bfe_u32 v9, v1, 2, 2")
    k.e("v_lshl_add_u32 v10, v8, 2, v9")
    k.e("v_lshlrev_b32 v10, 7, v10")
    k.e("v_lshrrev_b32 v11, 1, v9")
    k.e("v_lshl_add_u32 v10, v11, 6, v10")
    k.e("v_bfe_u32 v11, v1, 4, 1")
    k.e("v_lshl_add_u32 v10, v11, 5, v10")
    k.e("v_and_b32 v11, 3, v1")
    k.e("v_lshl_add_u32 v10, v11, 3, v10")
    k.e("v_add_u32 v10, s38, v10")
    k.e("v_xor_b32 v11, 64, v10")

    def rdB(t):
        sl = t % DEP
        b = VBF + 8 * (t & 1)
        for ct in range(2):
            for i in range(2):
                k.e(f"ds_read_b64_tr_b16 v[{b+4*ct+2*i}:{b+4*ct+2*i+1}], v{10+ct} offset:{sl*2048+1024*i}")

    def outstanding_after(t):
        return None

    issued = min(DEP, NST)
    k.e(f"s_waitcnt vmcnt({4*(issued-1)})")
    k.stamp()
    rdB(0)
    for t in range(NST):
        if t + 1 < NST:
            k.e(f"s_waitcnt vmcnt({4*(issued-(t+2))})")
            rdB(t + 1)
            k.e("s_waitcnt lgkmcnt(4)")
        else:
            k.e("s_waitcnt lgkmcnt(0)")
        a = VAF + 8 * (t % DEP)
        b = VBF + 8 * (t & 1)
        for rt in range(2):
            for ct in range(2):
                acc = ACC + 16 * (2 * rt + ct)
                k.mfma(acc, b + 4 * ct, a + 4 * rt, "0" if t == 0 else acc)
        if issued < NST:
            issue(issued)
            issued += 1
    k.stamp()
    k.e("s_lshr_b32 s40, s3, 1")
    k.e("s_and_b32 s41, s3, 1")
    k.e("s_lshl_b32 s42, s30, 1")
    k.e("s_add_u32 s42, s42, s40")
    k.e("s_lshl_b32 s43, s31, 1")
    k.e("s_add_u32 s43, s43, s41")
    k.e("v_and_b32 v12, 31, v1")
    if is3:
        k.srd(16, 20, 0, S * D * 2)
        k.srd(24, 28, WS_H, 64 * 28 * 1024)
        k.e("s_lshl_b32 s45, s42, 5")
        k.e("v_add_u32 v13, s45, v12")
        k.e("v_mul_u32_u24 v13, s44, v13")
        k.e("v_lshl_add_u32 v13, v8, 3, v13")
        k.e("s_lshl_b32 s45, s43, 6")
        for g in range(4):
            k.e(f"buffer_load_dwordx2 v[{208+2*g}:{209+2*g}], v13, s[16:19], s45 offen offset:{16*g}")
    else:
        k.srd(16, 28, WS_H, 64 * 28 * 1024)
        k.srd(24, 20, 0, S * D * 2)
        k.e("s_mul_i32 s45, s42, 28")
        k.e("s_lshl_b32 s46, s43, 1")
        k.e("s_add_u32 s45, s45, s46")
        k.e("s_lshl_b32 s45, s45, 10")
        for g in range(2):
            k.e(f"buffer_load_dwordx4 v[{208+4*g}:{211+4*g}], v3, s[16:19], s45 offen offset:{1024*g}")
    k.e("s_barrier")
    k.nop(8)
    for o in range(4):
        skip = k.newlab("own")
        k.e(f"s_cmp_eq_u32 s3, {o}")
        k.e(f"s_cbranch_scc1 {skip}")
        k.e(f"s_sub_u32 s45, s3, {o+1}")
        k.e("s_and_b32 s45, s45, 3")
        k.e("s_lshl_b32 s45, s45, 12")
        k.e(f"s_add_u32 s45, s45, {o*3*4096}")
        k.e("v_add_u32 v14, s45, v3")
        for q in range(4):
            k.e(f"ds_write_b128 v14, {vr(ACC+16*o+4*q,4)} offset:{1024*q}")
        k.lab(skip)
    for o in range(4):
        skip = k.newlab("mv")
        k.e(f"s_cmp_lg_u32 s3, {o}")
        k.e(f"s_cbranch_scc1 {skip}")
        for r in range(16):
            k.e(f"v_mov_b32 v{128+r}, v{ACC+16*o+r}")
        k.lab(skip)
    k.e("s_waitcnt lgkmcnt(0)")
    k.e("s_barrier")
    k.e(f"s_mul_i32 s45, s3, {3*4096}")
    k.e("v_add_u32 v14, s45, v3")
    for sl in range(3):
        for q in range(4):
            k.e(f"ds_read_b128 {vr(144+16*sl+4*q,4)}, v14 offset:{4096*sl+1024*q}")
    for sl in range(3):
        k.e(f"s_waitcnt lgkmcnt({8-4*sl})")
        for r in range(16):
            k.e(f"v_add_f32 v{128+r}, v{128+r}, v{144+16*sl+r}")
    k.e("s_waitcnt vmcnt(0)")
    k.stamp()
    for p in range(8):
        src = 208 + p
        k.e(f"v_lshlrev_b32 v14, 16, v{src}")
        k.e(f"v_and_b32 v15, 0xffff0000, v{src}")
        k.e(f"v_add_f32 v14, v14, v{128+2*p}")
        k.e(f"v_add_f32 v15, v15, v{128+2*p+1}")
        k.e(f"v_cvt_pk_bf16_f32 v{src}, v14, v15")
    if is3:
        k.e("s_mul_i32 s45, s42, 28")
        k.e("s_lshl_b32 s46, s43, 1")
        k.e("s_add_u32 s45, s45, s46")
        k.e("s_lshl_b32 s45, s45, 10")
        for g in range(2):
            k.e(f"buffer_store_dwordx4 v[{208+4*g}:{211+4*g}], v3, s[24:27], s45 offen offset:{1024*g}")
        k.e("v_mov_b32 v16, 0")
        k.e("v_mov_b32 v17, 0")
        k.e("s_mov_b32 s46, 0x3f803f80")
        for p in range(8):
            k.e(f"v_dot2_f32_bf16 v16, v{208+p}, s46, v16")
            k.e(f"v_dot2_f32_bf16 v17, v{208+p}, v{208+p}, v17")
        k.e("s_nop 1")
        k.e("v_mov_b32 v18, v16")
        k.e("v_mov_b32 v19, v17")
        k.e("s_nop 1")
        k.e("v_permlane32_swap_b32 v16, v18")
        k.e("v_permlane32_swap_b32 v17, v19")
        k.e("s_nop 1")
        k.e("v_add_f32 v16, v16, v18")
        k.e("v_add_f32 v17, v17, v19")
        k.srd(16, 28, WS_ST, S * 14 * 8)
        k.e("s_lshl_b32 s45, s42, 5")
        k.e("v_add_u32 v13, s45, v12")
        k.e("v_lshlrev_b32 v13, 3, v13")
        k.e("s_lshl_b32 s45, s43, 14")
        k.e("v_cmp_gt_u32 vcc, 32, v1")
        k.e("s_and_saveexec_b64 s[46:47], vcc")
        k.e("buffer_store_dwordx2 v[16:17], v13, s[16:19], s45 offen")
    else:
        k.e("s_nop 1")
        for g in (0, 2):
            k.e(f"v_permlane32_swap_b32 v{208+2*g}, v{208+2*g+2}")
            k.e(f"v_permlane32_swap_b32 v{208+2*g+1}, v{208+2*g+3}")
        k.e("s_lshl_b32 s45, s42, 5")
        k.e("v_add_u32 v13, s45, v12")
        k.e("v_mul_u32_u24 v13, s44, v13")
        k.e("v_lshl_add_u32 v13, v8, 4, v13")
        k.e("s_lshl_b32 s45, s43, 6")
        k.e("s_nop 0")
        for g in range(2):
            k.e(f"buffer_store_dwordx4 v[{208+4*g}:{211+4*g}], v13, s[24:27], s45 offen offset:{32*g}")
    if is3:
        k.e(f"s_branch {k.name}_fin")
        k.lab(f"{k.name}_cs")
        k.e("s_cmp_ge_u32 s2, 252")
        k.e(f"s_cbranch_scc1 {k.name}_end")
        k.e("s_load_dwordx2 s[28:29], s[0:1], 72")
        k.e("s_load_dwordx2 s[4:5], s[0:1], 32")
        k.e("s_load_dwordx2 s[6:7], s[0:1], 40")
        k.e("v_and_b32 v1, 63, v0")
        k.e("v_lshrrev_b32 v2, 6, v0")
        k.e("s_sub_u32 s30, s2, 224")
        k.e("v_readfirstlane_b32 s3, v2")
        k.e("s_cmp_ge_u32 s30, 14")
        k.e("s_cselect_b32 s31, 14, 0")
        k.e("s_cselect_b32 s33, 1, 0")
        k.e("s_sub_u32 s32, s30, s31")
        k.e("v_lshrrev_b32 v4, 4, v1")
        k.e("v_and_b32 v5, 15, v1")
        k.e("s_movk_i32 s44, 3584")
        k.e("v_mul_u32_u24 v4, s44, v4")
        k.e("v_lshl_add_u32 v4, v5, 4, v4")
        k.e("s_waitcnt lgkmcnt(0)")
        k.e("s_cmp_eq_u32 s33, 1")
        k.e("s_cselect_b32 s4, s6, s4")
        k.e("s_cselect_b32 s5, s7, s5")
        k.srd(8, 4, 0, D * F * 2)
        k.e(f"s_mul_i32 s34, s3, {112*3584}")
        k.e("s_lshl_b32 s35, s32, 8")
        k.e("s_add_u32 s34, s34, s35")
        for n in range(28):
            k.e(f"buffer_load_dwordx4 {vr(64+4*n,4)}, v4, s[8:11], s34 offen")
            k.e(f"s_add_u32 s34, s34, {4*3584}")
        for r in range(8):
            k.e(f"v_mov_b32 v{16+r}, 0")
        for n in range(28):
            k.e(f"s_waitcnt vmcnt({27-n})")
            for d in range(4):
                x = 64 + 4 * n + d
                k.e(f"v_lshlrev_b32 v{24+2*d}, 16, v{x}")
                k.e(f"v_and_b32 v{25+2*d}, 0xffff0000, v{x}")
            for r in range(8):
                k.e(f"v_add_f32 v{16+r}, v{16+r}, v{24+r}")
        k.e("v_lshrrev_b32 v6, 4, v1")
        k.e("s_lshl_b32 s35, s3, 2")
        k.e("v_add_u32 v6, s35, v6")
        k.e("v_lshlrev_b32 v6, 9, v6")
        k.e("v_lshl_add_u32 v6, v5, 5, v6")
        k.e("ds_write_b128 v6, v[16:19]")
        k.e("ds_write_b128 v6, v[20:23] offset:16")
        k.e("s_waitcnt lgkmcnt(0)")
        k.e("s_barrier")
        k.e("s_cmp_ge_u32 s3, 2")
        k.e(f"s_cbranch_scc1 {k.name}_end")
        k.e("v_lshlrev_b32 v6, 2, v0")
        for j in range(16):
            k.e(f"ds_read_b32 v{32+j}, v6 offset:{512*j}")
        k.srd(12, 28, WS_CS, 2 * F * 4)
        k.e(f"s_mul_i32 s35, s33, {F*4}")
        k.e("s_lshl_b32 s36, s32, 9")
        k.e("s_add_u32 s35, s35, s36")
        k.e("s_waitcnt lgkmcnt(0)")
        for st in (8, 4, 2, 1):
            for j in range(st):
                k.e(f"v_add_f32 v{32+j}, v{32+j}, v{32+j+st}")
        k.e("buffer_store_dword v32, v6, s[12:15], s35 offen")
        k.e(f"s_branch {k.name}_end")
        k.lab(f"{k.name}_fin")
    finish(k)
    return k, 252 if is3 else 224, 4 * DEP * 2048 if 4 * DEP * 2048 > 48 * 1024 else 48 * 1024 + 0, 256


def gen_k4():
    k = K("k4_ffn_kernel")
    SLOT = 49152
    R = 3
    NSL = 7
    ACC = 192
    FR = [64, 128]
    PK = int(os.environ.get("PK", "1"))
    k.e("s_cmp_ge_u32 s2, 224")
    k.e(f"s_cbranch_scc1 {k.name}_end")
    k.e("s_load_dwordx2 s[28:29], s[0:1], 72")
    k.e("s_load_dwordx2 s[4:5], s[0:1], 32")
    k.e("s_load_dwordx2 s[6:7], s[0:1], 40")
    PF4 = int(os.environ.get("PF4", "1"))
    if PF4:
        k.e("s_load_dwordx2 s[50:51], s[0:1], 48")
    k.e("v_and_b32 v1, 63, v0")
    k.e("v_lshrrev_b32 v2, 6, v0")
    k.e("s_and_b32 s30, s2, 7")
    k.e("s_lshr_b32 s31, s2, 3")
    k.e("v_readfirstlane_b32 s3, v2")
    k.e("s_and_b32 s32, s30, 3")
    k.e("s_lshl_b32 s32, s32, 2")
    k.e("s_and_b32 s33, s31, 3")
    k.e("s_add_u32 s32, s32, s33")
    k.e("s_lshr_b32 s30, s30, 2")
    k.e("s_mul_i32 s30, s30, 7")
    k.e("s_lshr_b32 s31, s31, 2")
    if ROT & 2:
        k.e("s_lshl_b32 s47, s33, 1")
        k.e("s_add_u32 s47, s47, s31")
        k.e("s_cmp_ge_u32 s47, 7")
        k.e("s_cselect_b32 s48, 7, 0")
        k.e("s_sub_u32 s47, s47, s48")
    k.e("s_add_u32 s31, s31, s30")
    k.e("s_mov_b32 s30, s32")
    k.e("s_lshr_b32 s32, s3, 2")
    k.e("s_and_b32 s33, s3, 3")
    k.stamp()
    k.e("v_lshlrev_b32 v3, 4, v1")
    k.e("v_and_b32 v12, 31, v1")
    k.e("v_lshrrev_b32 v8, 5, v1")
    k.e("v_lshrrev_b32 v4, 4, v1")
    k.e("v_and_b32 v5, 15, v1")
    k.e("v_lshlrev_b32 v6, 2, v4")
    k.e("v_xor_b32 v5, v5, v6")
    k.e("s_movk_i32 s44, 3584")
    k.e("v_mul_u32_u24 v4, s44, v4")
    k.e("v_lshl_add_u32 v4, v5, 4, v4")
    k.e("s_lshl_b32 s36, s3, 10")
    k.e("s_lshl_b32 s37, s30, 2")
    k.e("s_add_u32 s37, s37, s32")
    k.e("s_mul_i32 s37, s37, 28")
    k.e("s_add_u32 s37, s37, s33")
    k.e("s_lshl_b32 s37, s37, 10")
    k.e(f"s_mul_i32 s38, s3, {4*3584}")
    k.e("s_lshl_b32 s39, s31, 8")
    k.e("s_add_u32 s38, s38, s39")
    if ROT & 2:
        k.e("s_lshl_b32 s48, s47, 12")
        k.e("s_add_u32 s37, s37, s48")
        k.e(f"s_mul_i32 s48, s47, {64*3584}")
        k.e("s_add_u32 s38, s38, s48")
    k.e("s_waitcnt lgkmcnt(0)")
    if EXP & 16:
        k.stamp()
    k.srd(8, 28, WS_H, 64 * 28 * 1024)
    k.srd(12, 4, 0, D * F * 2)
    k.srd(16, 6, 0, D * F * 2)

    def issue(sl):
        sb = (sl % R) * SLOT
        k.e(f"s_add_u32 m0, s36, {sb}")
        k.e(f"s_add_u32 s39, s37, {56*1024}")
        k.e("buffer_load_dwordx4 v3, s[8:11], s37 offen lds")
        k.e(f"s_add_u32 m0, s36, {sb+8192}")
        k.e("s_add_u32 s37, s37, 4096")
        k.e("buffer_load_dwordx4 v3, s[8:11], s39 offen lds")
        for u in range(2):
            k.e(f"s_add_u32 m0, s36, {sb+16384*(1+u)}")
            k.e(f"s_add_u32 s39, s38, {32*3584}")
            k.e(f"buffer_load_dwordx4 v4, s[{12+4*u}:{15+4*u}], s38 offen lds")
            k.e(f"s_add_u32 m0, s36, {sb+16384*(1+u)+8192}")
            k.e("s_nop 0")
            k.e(f"buffer_load_dwordx4 v4, s[{12+4*u}:{15+4*u}], s39 offen lds")
        k.e(f"s_add_u32 s38, s38, {64*3584}")
        if ROT & 2:
            k.e("s_add_u32 s47, s47, 1")
            k.e("s_cmp_eq_u32 s47, 7")
            k.e(f"s_cselect_b32 s48, {7*4096}, 0")
            k.e(f"s_cselect_b32 s49, {7*64*3584}, 0")
            k.e("s_sub_u32 s37, s37, s48")
            k.e("s_sub_u32 s38, s38, s49")

    issue(0)
    issue(1)
    if EXP & 16:
        k.stamp()
    k.srd(20, 28, WS_ST, S * 14 * 8)
    k.srd(24, 28, WS_ACT, 64 * 112 * 1024)
    k.srd(52, 28, WS_CS, 2 * F * 4)
    k.e("s_lshl_b32 s34, s30, 7")
    k.e("s_lshl_b32 s35, s32, 6")
    k.e("s_add_u32 s34, s34, s35")
    k.e("v_add_u32 v5, s34, v1")
    k.e("v_lshlrev_b32 v5, 3, v5")
    for q in range(14):
        k.e(f"s_mov_b32 s40, {q*16384}")
        k.e(f"buffer_load_dwordx2 v[{36+2*q}:{37+2*q}], v5, s[20:23], s40 offen")
    k.e("s_lshl_b32 s40, s32, 13")
    k.e("v_add_u32 v20, s40, v3")
    k.e(f"v_add_u32 v21, {SLOT}, v20")
    k.e(f"v_add_u32 v22, {2*SLOT}, v20")
    k.e("v_bfe_u32 v9, v1, 2, 2")
    k.e("v_lshl_add_u32 v10, v8, 2, v9")
    k.e("v_lshlrev_b32 v10, 8, v10")
    k.e("v_xor_b32 v11, s33, v9")
    k.e("v_lshl_add_u32 v10, v11, 6, v10")
    k.e("v_bfe_u32 v11, v1, 4, 1")
    k.e("v_lshl_add_u32 v10, v11, 5, v10")
    k.e("v_and_b32 v11, 3, v1")
    k.e("v_lshl_add_u32 v24, v11, 3, v10")
    k.e(f"v_add_u32 v25, {SLOT}, v24")
    k.e(f"v_add_u32 v26, {2*SLOT}, v24")
    k.e("v_lshlrev_b32 v6, 4, v8")
    k.e("s_lshl_b32 s41, s31, 9")
    k.e("s_lshl_b32 s42, s33, 7")
    k.e("s_add_u32 s41, s41, s42")
    k.e(f"s_add_u32 s42, s41, {F*4}")

    if EXP & 16:
        k.stamp()
    k1 = -2.0 * math.sqrt(2.0 / math.pi) * math.log2(math.e)
    k3 = k1 * 0.044715

    def csreg(u, g):
        idx = 4 * u + g
        return 36 + 4 * idx if idx < 7 else 16

    def stats():
        for st in (7,):
            for q in range(7):
                k.e(f"v_add_f32 v{36+2*q}, v{36+2*q}, v{50+2*q}")
                k.e(f"v_add_f32 v{37+2*q}, v{37+2*q}, v{51+2*q}")
        for (a, b) in ((0, 4), (1, 5), (2, 6), (0, 2), (1, 3), (0, 1)):
            k.e(f"v_add_f32 v{36+2*a}, v{36+2*a}, v{36+2*b}")
            k.e(f"v_add_f32 v{37+2*a}, v{37+2*a}, v{36+2*b+1}")
        k.e(f"s_mov_b32 s40, {hex(f2u(1.0/448))}")
        k.e("v_mul_f32 v13, s40, v36")
        k.e("v_mul_f32 v14, s40, v37")
        k.e("v_fma_f32 v14, -v13, v13, v14")
        k.e("v_max_f32 v14, 0, v14")
        k.e(f"v_add_f32 v34, {hex(f2u(1e-5))}, v14")
        k.e("v_rsq_f32 v15, v34")
        k.e("v_sub_f32 v28, 0, v13")
        k.e("v_mul_f32 v7, v15, v15")
        k.e("v_mul_f32 v7, v7, v15")
        k.e(f"v_mul_f32 v30, {hex(f2u(k1))}, v15")
        k.e(f"v_mul_f32 v32, {hex(f2u(k3))}, v7")
        for r in (28, 30, 32, 34):
            k.e(f"v_mov_b32 v{r+1}, v{r}")
        k.e("s_nop 1")
        for r in (34, 28, 30, 32):
            k.e(f"v_permlane32_swap_b32 v{r}, v{r+1}")

    def csloads():
        for u in range(2):
            for g in range(4):
                k.e(f"buffer_load_dwordx4 {vr(csreg(u,g),4)}, v6, s[52:55], s{41+u} offen offset:{32*g}")

    def reads(sl):
        fr = FR[sl & 1]
        s_ = sl % R
        for ks in range(4):
            for i in range(2):
                k.e(f"ds_read_b128 {vr(fr+16*ks+4*i,4)}, v{20+s_} offset:{4096*i+1024*ks}")
            for u in range(2):
                for h in range(2):
                    r0 = fr + 16 * ks + 8 + 4 * u + 2 * h
                    k.e(f"ds_read_b64_tr_b16 v[{r0}:{r0+1}], v{24+s_} offset:{16384*(1+u)+4096*ks+2048*h}")

    def mfmas(sl):
        fr = FR[sl & 1]
        for ks in range(4):
            for i in range(2):
                for u in range(2):
                    acc = ACC + 16 * (2 * i + u)
                    k.mfma(acc, fr + 16 * ks + 8 + 4 * u, fr + 16 * ks + 4 * i, "0" if (sl == 0 and ks == 0) else acc)

    wv = {0: 20, 1: 20, 2: 6, 3: 14, 4: 14, 5: 6, 6: 0}
    PFS = int(os.environ.get("PFS", "5"))
    if PF4:
        for s_ in range(PFS + 1, NSL):
            if s_ <= PFS + 2:
                wv[s_] += 1

    def pfload():
        k.e("v_min_u32 v7, 447, v0")
        k.e("v_lshlrev_b32 v7, 7, v7")
        k.e("s_lshr_b32 s43, s2, 3")
        k.e("s_mul_i32 s43, s43, 57344")
        k.srd(56, 50, 0, F * D * 2)
        k.e("buffer_load_dword v23, v7, s[56:59], s43 offen")
    for sl in range(NSL):
        k.e(f"s_waitcnt vmcnt({wv[sl]}) lgkmcnt(0)")
        k.e("s_barrier")
        k.stamp()
        P = pieces(cap(k, issue, sl + R - 1)) if sl + R - 1 < NSL else []
        Rd = cap(k, reads, sl)
        M = cap(k, mfmas, sl - 1) if sl >= 1 else []
        X = []
        if sl == 2:
            X = cap(k, stats) + cap(k, csloads)
        if sl == PFS and PF4:
            X = X + cap(k, pfload)
        M = [l for l in M if l is not None]
        if not M:
            for p in P:
                k.L += p
            k.L += Rd
        else:
            xi = 0
            for n in range(16):
                k.L.append(M[n])
                if n < len(P):
                    k.L += P[n]
                if n < 12:
                    k.L += Rd[2 * n:2 * n + 2]
                if n >= 6 and X:
                    cnt = (len(X) + 9) // 10
                    k.L += X[xi:xi + cnt]
                    xi += cnt
            k.L += X[xi:]
    k.e("s_waitcnt lgkmcnt(0)")
    mfmas(NSL - 1)
    k.stamp()
    k.e("s_lshl_b32 s40, s30, 2")
    k.e("s_lshl_b32 s41, s32, 1")
    k.e("s_add_u32 s40, s40, s41")
    k.e("s_mul_i32 s40, s40, 112")
    k.e("s_lshl_b32 s41, s31, 2")
    k.e("s_add_u32 s41, s41, s33")
    k.e("s_lshl_b32 s41, s41, 1")
    k.e("s_add_u32 s40, s40, s41")
    k.e("s_lshl_b32 s40, s40, 10")
    k.nop(16)
    for i in range(2):
        ag = ACC + 16 * (2 * i)
        au = ACC + 16 * (2 * i + 1)
        T = 96
        sel = f"op_sel:[0,{i},{i}] op_sel_hi:[1,{i},{i}]"

        def pk(op, d, a, b, c=None, bsel=None, csel=None):
            if c is None:
                os_ = f"op_sel:[0,{bsel or 0}] op_sel_hi:[1,{1 if bsel is None else bsel}]"
                k.e(f"v_pk_{op}_f32 v[{d}:{d+1}], v[{a}:{a+1}], v[{b}:{b+1}] {os_}")
            else:
                os_ = (f"op_sel:[0,{bsel or 0},{csel or 0}] op_sel_hi:[1,{1 if bsel is None else bsel},"
                       f"{1 if csel is None else csel}]")
                k.e(f"v_pk_{op}_f32 v[{d}:{d+1}], v[{a}:{a+1}], v[{b}:{b+1}], v[{c}:{c+1}] {os_}")
        if PK:
            for r in range(0, 16, 2):
                cg = csreg(0, r >> 2) + (r & 3)
                cu = csreg(1, r >> 2) + (r & 3)
                pk("fma", ag + r, cg, 28, ag + r, bsel=i)
                pk("fma", au + r, cu, 28, au + r, bsel=i)
            for r in range(0, 16, 2):
                pk("mul", T + r, ag + r, ag + r)
            for r in range(0, 16, 2):
                pk("fma", T + r, T + r, 32, 30, bsel=i, csel=i)
            for r in range(0, 16, 2):
                pk("mul", T + r, T + r, ag + r)
            for r in range(16):
                k.e(f"v_exp_f32 v{T+r}, v{T+r}")
            for r in range(0, 16, 2):
                pk("mul", au + r, au + r, ag + r)
            for r in range(0, 16, 2):
                pk("fma", T + r, T + r, 34, 34, bsel=i, csel=i)
            for r in range(16):
                k.e(f"v_rcp_f32 v{T+r}, v{T+r}")
            k.e("s_nop 0")
            for r in range(0, 16, 2):
                pk("mul", au + r, au + r, T + r)
        else:
            for r in range(16):
                cg = csreg(0, r >> 2) + (r & 3)
                cu = csreg(1, r >> 2) + (r & 3)
                k.e(f"v_fma_f32 v{ag+r}, v{28+i}, v{cg}, v{ag+r}")
                k.e(f"v_fma_f32 v{au+r}, v{28+i}, v{cu}, v{au+r}")
            for r in range(16):
                k.e(f"v_mul_f32 v{T+r}, v{ag+r}, v{ag+r}")
            for r in range(16):
                k.e(f"v_fma_f32 v{T+r}, v{T+r}, v{32+i}, v{30+i}")
            for r in range(16):
                k.e(f"v_mul_f32 v{T+r}, v{T+r}, v{ag+r}")
            for r in range(16):
                k.e(f"v_exp_f32 v{T+r}, v{T+r}")
            for r in range(16):
                k.e(f"v_mul_f32 v{au+r}, v{au+r}, v{ag+r}")
            for r in range(16):
                k.e(f"v_fma_f32 v{T+r}, v{T+r}, v{34+i}, v{34+i}")
            for r in range(16):
                k.e(f"v_rcp_f32 v{T+r}, v{T+r}")
            k.e("s_nop 0")
            for r in range(16):
                k.e(f"v_mul_f32 v{au+r}, v{au+r}, v{T+r}")
        for p in range(8):
            k.e(f"v_cvt_pk_bf16_f32 v{T+16+p}, v{au+2*p}, v{au+2*p+1}")
        if i == 1:
            k.e(f"s_add_u32 s40, s40, {112*1024}")
        for g in range(2):
            k.e(f"buffer_store_dwordx4 {vr(T+16+4*g,4)}, v3, s[24:27], s40 offen offset:{1024*g}")
    finish(k)
    return k, 224, R * SLOT, 512


def gen_k1():
    k = K("k1_qkv_kernel")
    SLOT = 28672
    R = 5
    NSL = 7
    ACC = 192
    FR = [64, 128]
    SCR = R * SLOT
    k.e("s_cmp_ge_u32 s2, 256")
    k.e(f"s_cbranch_scc1 {k.name}_end")
    k.e("s_load_dwordx2 s[28:29], s[0:1], 72")
    k.e("s_load_dwordx2 s[4:5], s[0:1], 0")
    k.e("s_load_dwordx2 s[6:7], s[0:1], 8")
    k.e("v_and_b32 v1, 63, v0")
    k.e("v_lshrrev_b32 v2, 6, v0")
    k.e("s_and_b32 s30, s2, 7")
    k.e("s_lshr_b32 s31, s2, 3")
    k.e("v_readfirstlane_b32 s3, v2")
    k.e("s_and_b32 s32, s30, 3")
    k.e("s_lshl_b32 s32, s32, 2")
    k.e("s_and_b32 s33, s31, 3")
    k.e("s_add_u32 s32, s32, s33")
    k.e("s_lshr_b32 s30, s30, 2")
    k.e("s_lshl_b32 s30, s30, 3")
    k.e("s_lshr_b32 s31, s31, 2")
    if ROT & 4:
        k.e("s_lshl_b32 s47, s33, 1")
        k.e("s_add_u32 s47, s47, s31")
        k.e("s_cmp_ge_u32 s47, 7")
        k.e("s_cselect_b32 s48, 7, 0")
        k.e("s_sub_u32 s47, s47, s48")
    k.e("s_add_u32 s31, s31, s30")
    k.e("s_mov_b32 s30, s32")
    k.stamp()
    k.e("v_lshlrev_b32 v3, 4, v1")
    k.e("v_and_b32 v12, 31, v1")
    k.e("v_lshrrev_b32 v8, 5, v1")
    k.e("v_lshrrev_b32 v4, 3, v1")
    k.e("v_and_b32 v5, 7, v1")
    k.e("v_lshrrev_b32 v6, 4, v1")
    k.e("s_and_b32 s33, s3, 1")
    k.e("s_lshl_b32 s33, s33, 2")
    k.e("v_or_b32 v6, s33, v6")
    k.e("v_xor_b32 v5, v5, v6")
    k.e("s_movk_i32 s44, 896")
    k.e("v_mul_u32_u24 v4, s44, v4")
    k.e("v_lshl_add_u32 v4, v5, 4, v4")
    k.e("v_lshrrev_b32 v5, 2, v1")
    k.e("s_movk_i32 s45, 2688")
    k.e("v_mul_u32_u24 v5, s45, v5")
    k.e("v_and_b32 v6, 3, v1")
    k.e("v_lshl_add_u32 v5, v6, 4, v5")
    k.e("s_waitcnt lgkmcnt(0)")
    k.srd(8, 4, 0, S * D * 2)
    k.srd(12, 6, 0, D * 3 * D * 2)
    k.e("s_lshl_b32 s33, s31, 17")
    k.e("s_add_u32 s16, s28, s33")
    k.e("s_addc_u32 s17, s29, 0")
    k.e(f"s_mov_b32 s18, {hex(0x400000 + 0x20000)}")
    k.e("s_mov_b32 s19, 0x00020000")
    k.e("s_lshl_b32 s36, s3, 10")
    k.e("s_lshl_b32 s37, s30, 7")
    k.e("s_lshl_b32 s38, s3, 3")
    k.e("s_add_u32 s37, s37, s38")
    k.e("s_mul_i32 s37, s37, 896")
    k.e(f"s_mul_i32 s38, s3, {16*2688}")
    k.e("s_mul_i32 s39, s31, 56")
    k.e("s_add_u32 s38, s38, s39")
    if ROT & 4:
        k.e("s_lshl_b32 s48, s47, 7")
        k.e("s_add_u32 s37, s37, s48")
        k.e(f"s_mul_i32 s48, s47, {64*2688}")
        k.e("s_add_u32 s38, s38, s48")

    def issue(sl):
        sb = (sl % R) * SLOT
        for i in range(4):
            k.e(f"s_add_u32 m0, s36, {sb+4096*i}")
            k.e(f"s_add_u32 s39, s37, {32*896*i}")
            k.e("buffer_load_dwordx4 v4, s[8:11], s39 offen lds")
        for sg in range(3):
            k.e(f"s_add_u32 m0, s36, {sb+16384+4096*sg}")
            k.e(f"s_add_u32 s39, s38, {896*sg}")
            k.e("buffer_load_dwordx4 v5, s[12:15], s39 offen lds")
        k.e("s_add_u32 s37, s37, 128")
        k.e(f"s_add_u32 s38, s38, {64*2688}")
        if ROT & 4:
            k.e("s_add_u32 s47, s47, 1")
            k.e("s_cmp_eq_u32 s47, 7")
            k.e(f"s_cselect_b32 s48, {7*128}, 0")
            k.e(f"s_cselect_b32 s49, {7*64*2688}, 0")
            k.e("s_sub_u32 s37, s37, s48")
            k.e("s_sub_u32 s38, s38, s49")

    for sl in range(R - 1):
        issue(sl)
    k.e("v_bfe_u32 v9, v1, 1, 3")
    k.e("v_xor_b32 v9, v9, v8")
    k.e("v_lshlrev_b32 v9, 4, v9")
    k.e("v_lshl_add_u32 v9, v12, 7, v9")
    k.e("s_lshl_b32 s40, s3, 12")
    k.e("v_add_u32 v9, s40, v9")
    for grp in range(3):
        for ks in range(4):
            r = 16 + 4 * grp + ks
            k.e(f"v_xor_b32 v{r}, {ks<<5}, v9")
            if grp:
                k.e(f"v_add_u32 v{r}, {2*grp*SLOT}, v{r}")
    k.e("v_lshlrev_b32 v10, 9, v8")
    k.e("v_bfe_u32 v11, v1, 2, 2")
    k.e("v_lshl_add_u32 v10, v11, 6, v10")
    k.e("v_bfe_u32 v11, v1, 4, 1")
    k.e("v_lshl_add_u32 v10, v11, 5, v10")
    k.e("v_and_b32 v11, 3, v1")
    k.e("v_lshl_add_u32 v28, v11, 3, v10")
    k.e(f"v_add_u32 v29, {2*SLOT}, v28")
    k.e(f"v_add_u32 v30, {4*SLOT}, v28")
    for r in range(32, 52):
        k.e(f"v_mov_b32 v{r}, 0")
    k.e("s_mov_b32 s46, 0x3f803f80")

    def reads(sl):
        fr = FR[sl & 1]
        s_ = sl % R
        grp, o = s_ >> 1, (s_ & 1) * SLOT
        for ks in range(4):
            k.e(f"ds_read_b128 {vr(fr+16*ks,4)}, v{16+4*grp+ks} offset:{o}")
            for sg in range(3):
                for h in range(2):
                    r0 = fr + 16 * ks + 4 + 4 * sg + 2 * h
                    k.e(f"ds_read_b64_tr_b16 v[{r0}:{r0+1}], v{28+grp} offset:{o+16384+4096*sg+1024*ks+256*h}")

    def mfmas(sl):
        fr = FR[sl & 1]
        for ks in range(4):
            a = fr + 16 * ks
            c0 = (sl == 0 and ks == 0)
            k.mfma(ACC, a + 4, a, "0" if c0 else ACC)
            for j in range(2):
                k.e(f"v_dot2_f32_bf16 v{32+j}, v{a+j}, s46, v{32+j}")
                k.e(f"v_dot2_f32_bf16 v{36+j}, v{a+j}, v{a+j}, v{36+j}")
            k.mfma(ACC + 16, a + 8, a, "0" if c0 else ACC + 16)
            for j in range(2, 4):
                k.e(f"v_dot2_f32_bf16 v{32+j}, v{a+j}, s46, v{32+j}")
                k.e(f"v_dot2_f32_bf16 v{36+j}, v{a+j}, v{a+j}, v{36+j}")
            k.mfma(ACC + 32, a, a + 12, "0" if c0 else ACC + 32)
        done = k.newlab("csd")
        for w in range(4):
            nx = k.newlab("cs")
            if w < 3:
                k.e(f"s_cmp_eq_u32 s3, {w}")
                k.e(f"s_cbranch_scc0 {nx}")
            for j in range(12):
                k.e(f"v_dot2_f32_bf16 v{40+j}, v{fr+16*w+4+j}, s46, v{40+j}")
            if w < 3:
                k.e(f"s_branch {done}")
                k.lab(nx)
        k.lab(done)

    issued = R - 1
    for sl in range(NSL):
        pend = issued - 1 - sl
        k.e(f"s_waitcnt vmcnt({7*pend}) lgkmcnt(0)")
        k.e("s_barrier")
        k.stamp()
        if issued < NSL:
            issue(issued)
            issued += 1
        reads(sl)
        if sl >= 1:
            mfmas(sl - 1)
    k.e("s_waitcnt lgkmcnt(0)")
    mfmas(NSL - 1)
    k.stamp()
    k.e("s_nop 1")
    k.e("v_add_f32 v32, v32, v33")
    k.e("v_add_f32 v34, v34, v35")
    k.e("v_add_f32 v36, v36, v37")
    k.e("v_add_f32 v38, v38, v39")
    k.e("v_add_f32 v32, v32, v34")
    k.e("v_add_f32 v36, v36, v38")
    for t in range(3):
        k.e(f"v_add_f32 v{40+4*t}, v{40+4*t}, v{41+4*t}")
        k.e(f"v_add_f32 v{42+4*t}, v{42+4*t}, v{43+4*t}")
        k.e(f"v_add_f32 v{40+4*t}, v{40+4*t}, v{42+4*t}")
    k.e("v_mov_b32 v33, v32")
    k.e("v_mov_b32 v37, v36")
    k.e("s_lshl_b32 s40, s3, 3")
    k.e(f"s_add_u32 s40, s40, {SCR}")
    k.e("v_lshlrev_b32 v13, 5, v12")
    k.e("v_lshl_add_u32 v13, v8, 2, v13")
    k.e("v_add_u32 v13, s40, v13")
    for t in range(3):
        k.e(f"ds_write_b32 v13, v{40+4*t} offset:{1024*t}")
    k.e("v_permlane32_swap_b32 v32, v33")
    k.e("v_permlane32_swap_b32 v36, v37")
    k.e("s_nop 1")
    k.e("v_add_f32 v32, v32, v33")
    k.e("v_add_f32 v36, v36, v37")
    k.e(f"s_mov_b32 s40, {hex(f2u(1.0/448))}")
    k.e("v_mul_f32 v32, s40, v32")
    k.e("v_mul_f32 v36, s40, v36")
    k.e("v_fma_f32 v36, -v32, v32, v36")
    k.e("v_max_f32 v36, 0, v36")
    k.e(f"v_add_f32 v36, {hex(f2u(1e-5))}, v36")
    k.e("v_rsq_f32 v33, v36")
    k.e("s_nop 0")
    k.e("v_mov_b32 v34, v32")
    k.e("v_mov_b32 v35, v33")
    k.e("s_lshl_b32 s40, s3, 8")
    k.e(f"s_add_u32 s40, s40, {SCR+4096}")
    k.e("v_lshl_add_u32 v14, v12, 3, s40")
    k.e("ds_write_b64 v14, v[34:35]")
    k.e("s_waitcnt lgkmcnt(0)")
    k.e("s_barrier")
    k.e("v_lshlrev_b32 v13, 5, v1")
    k.e(f"v_add_u32 v13, {SCR}, v13")
    k.e("ds_read_b128 v[40:43], v13")
    k.e("ds_read_b128 v[44:47], v13 offset:16")
    k.e("v_lshlrev_b32 v13, 5, v12")
    k.e(f"v_add_u32 v13, {SCR+2048}, v13")
    k.e("ds_read_b128 v[48:51], v13")
    k.e("ds_read_b128 v[52:55], v13 offset:16")
    k.e("v_lshlrev_b32 v14, 5, v8")
    k.e("v_add_u32 v14, s40, v14")
    for g in range(4):
        k.e(f"ds_read_b128 {vr(128+8*g,4)}, v14 offset:{64*g}")
        k.e(f"ds_read_b128 {vr(132+8*g,4)}, v14 offset:{64*g+16}")
    k.e("s_waitcnt lgkmcnt(8)")
    for b in (40, 48):
        k.e(f"v_add_f32 v{b}, v{b}, v{b+1}")
        k.e(f"v_add_f32 v{b+2}, v{b+2}, v{b+3}")
        k.e(f"v_add_f32 v{b+4}, v{b+4}, v{b+5}")
        k.e(f"v_add_f32 v{b+6}, v{b+6}, v{b+7}")
        k.e(f"v_add_f32 v{b}, v{b}, v{b+2}")
        k.e(f"v_add_f32 v{b+4}, v{b+4}, v{b+6}")
        k.e(f"v_add_f32 v{b}, v{b}, v{b+4}")
    k.e("s_lshl_b32 s41, s3, 8")
    k.e(f"s_add_u32 s41, s41, {SCR+3072}")
    k.e("v_lshlrev_b32 v13, 2, v1")
    k.e("v_add_u32 v13, s41, v13")
    k.e("ds_write_b32 v13, v40")
    k.e("v_lshlrev_b32 v13, 4, v8")
    k.e("v_add_u32 v13, s41, v13")
    k.e("s_waitcnt lgkmcnt(0)")
    for u in range(2):
        for g in range(4):
            k.e(f"ds_read_b128 {vr(64+16*u+4*g,4)}, v13 offset:{128*u+32*g}")
    k.e("s_lshl_b32 s34, s30, 7")
    k.e("s_lshl_b32 s35, s3, 5")
    k.e("s_add_u32 s34, s34, s35")
    k.e("v_add_u32 v23, s34, v12")
    k.e("v_lshlrev_b32 v23, 6, v23")
    k.e("v_lshl_add_u32 v23, v8, 3, v23")
    k.e("v_lshlrev_b32 v24, 12, v12")
    k.e("v_lshl_add_u32 v24, v8, 4, v24")
    k.e("s_lshl_b32 s36, s34, 1")
    k.e("v_add_u32 v24, s36, v24")
    k.e(f"v_mul_f32 v34, {hex(f2u(DH ** -0.5 * math.log2(math.e)))}, v33")
    k.e("s_waitcnt lgkmcnt(0)")
    for c in range(2):
        a = ACC + 16 * c
        rs = "v34" if c == 0 else "v33"
        for r in range(16):
            k.e(f"v_fma_f32 v{a+r}, -v32, v{64+16*c+r}, v{a+r}")
            k.e(f"v_mul_f32 v{a+r}, {rs}, v{a+r}")
        k.e("v_cmp_gt_u32 vcc, 32, v1")
        k.e("s_nop 1")
        for r in range(12, 16):
            pad = "1.0" if (c == 1 and r == 12) else "0"
            k.e(f"v_cndmask_b32 v{a+r}, {pad}, v{a+r}, vcc")
        for g in range(4):
            k.e(f"v_cvt_pk_bf16_f32 v{96+8*c+2*g}, v{a+4*g}, v{a+4*g+1}")
            k.e(f"v_cvt_pk_bf16_f32 v{97+8*c+2*g}, v{a+4*g+2}, v{a+4*g+3}")
        k.e(f"s_mov_b32 s37, {hex(c*0x200000)}")
        for g in range(4):
            k.e(f"buffer_store_dwordx2 v[{96+8*c+2*g}:{97+8*c+2*g}], v23, s[16:19], s37 offen offset:{16*g}")
    a = ACC + 32
    for r in range(16):
        g, j = r >> 2, r & 3
        mreg = 128 + 8 * g + 2 * j
        k.e(f"v_fma_f32 v{a+r}, -v{mreg}, v48, v{a+r}")
        k.e(f"v_mul_f32 v{a+r}, v{mreg+1}, v{a+r}")
    k.e("v_cmp_gt_u32 vcc, 28, v12")
    k.e("v_cmp_eq_u32 s[38:39], 28, v12")
    k.e("v_cndmask_b32 v27, 0, 1.0, s[38:39]")
    k.e("s_nop 1")
    for r in range(16):
        k.e(f"v_cndmask_b32 v{a+r}, v27, v{a+r}, vcc")
    for r in range(8):
        k.e(f"v_cvt_pk_bf16_f32 v{112+r}, v{a+2*r}, v{a+2*r+1}")
    k.e("s_mov_b32 s37, 0x400000")
    for g_ in range(2):
        k.e(f"buffer_store_dwordx4 v[{112+4*g_}:{115+4*g_}], v24, s[16:19], s37 offen offset:{32*g_}")
    finish(k)
    return k, 256, SCR + 4096 + 1024, 256


def gen_k2():
    G.OFRAG = True
    k = G.gen_k2()
    return k, 256, 3 * (256 * 80 + 32 * 528) + 64, 512


def build():
    ks = [gen_k1(), gen_k2(), gen_sk(3), gen_k4(), gen_sk(5)]
    out = [HEADER.rstrip("\n")]
    for k, g, lds, blk in ks:
        out.append(f"; @launch kernel={k.name} grid=({g},1,1) block=({blk},1,1) lds={lds}")
    out.append('.amdgcn_target "amdgcn-amd-amdhsa--gfx950"')
    out.append(".text")
    for k, g, lds, blk in ks:
        out.append(f".globl {k.name}")
        out.append(".p2align 8")
        out.append(f".type {k.name},@function")
        out.append(f"{k.name}:")
        idx = [kk[0] for kk in ks].index(k)
        L = [l for l in k.L if l is not None]
        if SC1 & (1 << idx):
            end = len(L)
            for n, l in enumerate(L):
                if l.strip().startswith(k.name + "_end"):
                    end = n
            nst = 0
            L2 = []
            for n, l in enumerate(L):
                if "buffer_store" in l and "s[56:59]" not in l and "s[92:95]" not in l:
                    l = l + " " + SCF
                    nst += 1
                L2.append(l)
            L = L2
            print("sc1 stores in", k.name, nst)
        out += L
    out.append('.section .rodata,"a"')
    for k, g, lds, blk in ks:
        out.append(".p2align 6")
        out.append(f".amdhsa_kernel {k.name}")
        out.append("  .amdhsa_next_free_vgpr 256")
        out.append("  .amdhsa_next_free_sgpr 102")
        out.append("  .amdhsa_accum_offset 256")
        out.append("  .amdhsa_group_segment_fixed_size 0")
        out.append("  .amdhsa_kernarg_size 80")
        out.append("  .amdhsa_user_sgpr_count 2")
        out.append("  .amdhsa_user_sgpr_kernarg_segment_ptr 1")
        out.append("  .amdhsa_system_sgpr_workgroup_id_x 1")
        out.append(".end_amdhsa_kernel")
    return "\n".join(out) + "\n"


if __name__ == "__main__":
    txt = build()
    open(OUT or ("cdna_kernels/" + NAME + ".s"), "w").write(txt)
    print("written", len(txt))
```

```python
import math, sys, os
STAMP = int(os.environ.get("STAMP", "0"))
EXPT = int(os.environ.get("EXPT", "0"))
OFRAG = False
OUT = os.environ.get("OUT", "")

NAME = "sequential_preLN__softmax_full_mha__geglu_ffn__prompt"
S, D, H, DH, F = 2048, 448, 16, 28, 1792
WS_Q, WS_K, WS_V, WS_O, WS_H, WS_ACT = 0x0, 0x200000, 0x400000, 0x600000, 0x800000, 0xA00000
WS_SIZE = 268435456


def f2u(x):
    import struct
    return struct.unpack("<I", struct.pack("<f", x))[0]


class K:
    def __init__(s, name):
        s.name = name
        s.L = []
        s.nlab = 0
        s.nst = 0

    def e(s, x):
        s.L.append("    " + x)

    def lab(s, l):
        s.L.append(l + ":")

    def newlab(s, p="L"):
        s.nlab += 1
        return f"{s.name}_{p}{s.nlab}"

    def nop(s, n):
        while n > 0:
            k = min(n, 16)
            s.e(f"s_nop {k-1}")
            n -= k

    def stamp(s):
        if STAMP == 2:
            if s.nst == 0:
                s.e("s_memrealtime s[90:91]")
                s.nst = 1
            return
        if not STAMP:
            return
        i = s.nst
        s.nst += 1
        s.e("s_memtime s[60:61]")
        s.e("s_waitcnt lgkmcnt(0)")
        s.e(f"s_mov_b32 s{64+i}, s60")

    def srd(s, sd, sb, off, nbytes):
        if off:
            s.e(f"s_add_u32 s{sd}, s{sb}, {hex(off)}")
            s.e(f"s_addc_u32 s{sd+1}, s{sb+1}, 0")
        else:
            s.e(f"s_mov_b32 s{sd}, s{sb}")
            s.e(f"s_mov_b32 s{sd+1}, s{sb+1}")
        s.e(f"s_mov_b32 s{sd+2}, {hex(nbytes)}")
        s.e(f"s_mov_b32 s{sd+3}, 0x00020000")

    def mfma(s, d, a, b, c):
        cs = f"v[{c}:{c+15}]" if isinstance(c, int) else c
        s.e(f"v_mfma_f32_32x32x16_bf16 v[{d}:{d+15}], v[{a}:{a+3}], v[{b}:{b+3}], {cs}")


def vr(a, n):
    return f"v[{a}:{a+n-1}]"


VA = 64
VACC0 = 176
VACC1 = 192
VB = 208
VPF = 224
A_STRIDE = 912
A_WAVE = 32 * A_STRIDE
BBUF = 28672


def tmpl_prologue(k, nwg, a_arg, a_off, a_bytes):
    k.e(f"s_cmp_ge_u32 s2, {nwg}")
    k.e(f"s_cbranch_scc1 {k.name}_end")
    k.e(f"s_load_dwordx2 s[4:5], s[0:1], {a_arg}")
    k.e(f"s_load_dwordx2 s[28:29], s[0:1], 72")
    k.e("v_and_b32 v1, 63, v0")
    k.e("v_lshrrev_b32 v2, 6, v0")
    k.e("s_nop 0")
    k.e("v_readfirstlane_b32 s3, v2")
    k.stamp()


def b_loads(k, srd, colbytes_sreg_or_imm, stride):
    if isinstance(colbytes_sreg_or_imm, str):
        k.e(f"s_mov_b32 s40, {colbytes_sreg_or_imm}")
    else:
        k.e(f"s_mov_b32 s40, {hex(colbytes_sreg_or_imm)}")
    for i in range(7):
        k.e(f"buffer_load_dwordx4 {vr(VPF+4*i,4)}, v3, s[{srd}:{srd+3}], s40 offen")
        if i < 6:
            k.e(f"s_add_u32 s40, s40, {hex(64*stride)}")


def b_writes(k, buf):
    for i in range(7):
        k.e(f"ds_write_b128 v4, {vr(VPF+4*i,4)} offset:{buf*BBUF + i*4096}")


def a_stage(k, do_ln):
    k.e("v_lshlrev_b32 v5, 4, v1")
    for i in range(28):
        if i % 4 == 0:
            if i == 0:
                k.e("s_mov_b32 s42, s41")
            else:
                k.e("s_add_u32 s42, s42, 4096")
        k.e(f"buffer_load_dwordx4 {vr(VA+4*i,4)}, v5, s[8:11], s42 offen offset:{(i%4)*1024}")
    k.e(f"s_mul_i32 s43, s3, {A_WAVE}")
    k.e("s_movk_i32 s44, 2341")
    addr_regs = []
    for i in range(28):
        pass
    k.e("s_waitcnt vmcnt(0)")
    k.stamp()
    for i in range(28):
        k.e(f"v_add_u32 v7, {i*64}, v1")
        k.e("v_mul_u32_u24 v8, s44, v7")
        k.e("v_lshrrev_b32 v8, 17, v8")
        k.e("v_add_lshl_u32 v7, v7, v8, 4")
        k.e("v_add_u32 v7, s43, v7")
        k.e(f"ds_write_b128 v7, {vr(VA+4*i,4)}")
    k.e("v_and_b32 v7, 31, v1")
    k.e(f"v_mul_u32_u24 v7, {A_STRIDE}, v7")
    k.e("v_lshrrev_b32 v8, 5, v1")
    k.e("v_lshl_add_u32 v7, v8, 4, v7")
    k.e("v_add_u32 v7, s43, v7")
    k.e("s_waitcnt lgkmcnt(0)")
    for s_ in range(28):
        k.e(f"ds_read_b128 {vr(VA+4*s_,4)}, v7 offset:{32*s_}")
    k.e("s_waitcnt lgkmcnt(0)")
    k.stamp()


def a_ln(k):
    k.e("s_mov_b32 s44, 0x3f803f80")
    for r in (8, 9, 10, 11):
        k.e(f"v_mov_b32 v{r}, 0")
    for r in range(112):
        k.e(f"v_dot2_f32_bf16 v{8+(r&1)}, v{VA+r}, s44, v{8+(r&1)}")
        k.e(f"v_dot2_f32_bf16 v{10+(r&1)}, v{VA+r}, v{VA+r}, v{10+(r&1)}")
    k.e("s_nop 1")
    k.e("v_add_f32 v8, v8, v9")
    k.e("v_add_f32 v10, v10, v11")
    k.e("s_nop 0")
    k.e("v_mov_b32 v9, v8")
    k.e("v_mov_b32 v11, v10")
    k.e("s_nop 1")
    k.e("v_permlane32_swap_b32 v8, v9")
    k.e("v_permlane32_swap_b32 v10, v11")
    k.e("s_nop 1")
    k.e("v_add_f32 v8, v8, v9")
    k.e("v_add_f32 v10, v10, v11")
    k.e(f"s_mov_b32 s44, {hex(f2u(1.0/448))}")
    k.e("v_mul_f32 v8, s44, v8")
    k.e("v_mul_f32 v10, s44, v10")
    k.e("v_fma_f32 v10, -v8, v8, v10")
    k.e("v_max_f32 v10, 0, v10")
    k.e(f"v_add_f32 v10, {hex(f2u(1e-5))}, v10")
    k.e("v_rsq_f32 v12, v10")
    k.e("s_nop 0")
    k.e("v_mov_b32 v13, v12")
    k.e("v_mul_f32 v14, v8, v12")
    k.e("v_sub_f32 v14, 0, v14")
    k.e("v_mov_b32 v15, v14")
    for r in range(112):
        t = 16 + 2 * (r & 1)
        k.e(f"v_lshlrev_b32 v{t}, 16, v{VA+r}")
        k.e(f"v_and_b32 v{t+1}, 0xffff0000, v{VA+r}")
        k.e(f"v_pk_fma_f32 v[{t}:{t+1}], v[{t}:{t+1}], v[12:13], v[14:15]")
        k.e(f"v_cvt_pk_bf16_f32 v{VA+r}, v{t}, v{t+1}")
    k.stamp()


def chunk_mfma(k, buf, acc, w_first):
    def rd(s_):
        b = VB + 4 * (s_ % 4)
        k.e(f"ds_read_b64_tr_b16 v[{b}:{b+1}], v21 offset:{buf*BBUF + 1024*s_}")
        k.e(f"ds_read_b64_tr_b16 v[{b+2}:{b+3}], v21 offset:{buf*BBUF + 1024*s_ + 256}")
    for s_ in range(3):
        rd(s_)
    for s_ in range(28):
        if s_ + 3 < 28:
            rd(s_ + 3)
            k.e("s_waitcnt lgkmcnt(6)")
        else:
            k.e(f"s_waitcnt lgkmcnt({2*(27-s_)})")
        b = VB + 4 * (s_ % 4)
        a = VA + 4 * s_
        c = "0" if s_ == 0 else acc
        if w_first:
            k.mfma(acc, b, a, c)
        else:
            k.mfma(acc, a, b, c)
    k.stamp()


def tr_addr(k):
    k.e("v_lshrrev_b32 v22, 5, v1")
    k.e("v_lshlrev_b32 v21, 9, v22")
    k.e("v_bfe_u32 v22, v1, 2, 2")
    k.e("v_lshl_add_u32 v21, v22, 6, v21")
    k.e("v_bfe_u32 v22, v1, 4, 1")
    k.e("v_lshl_add_u32 v21, v22, 5, v21")
    k.e("v_and_b32 v22, 3, v1")
    k.e("v_lshl_add_u32 v21, v22, 3, v21")


def b_thread_addr(k, stride):
    k.e("v_lshrrev_b32 v3, 2, v0")
    k.e(f"s_movk_i32 s44, {stride}" if stride < 32768 else f"s_mov_b32 s44, {stride}")
    k.e("v_mul_u32_u24 v3, s44, v3")
    k.e("v_and_b32 v4, 3, v0")
    k.e("v_lshl_add_u32 v3, v4, 4, v3")
    k.e("v_lshlrev_b32 v4, 4, v0")


KIDX = {"k1": 0, "k2": 1, "k3": 2, "k4": 3, "k5": 4}
def finish(k):
    if STAMP == 2:
        k.e("s_cmp_lg_u32 s3, 0")
        k.e(f"s_cbranch_scc1 {k.name}_end")
        k.e("s_waitcnt vmcnt(0)")
        k.e("s_memrealtime s[92:93]")
        k.srd(56, 28, 0x1F00000 + 8192 * KIDX[k.name[:2]], 8192)
        k.e("s_mov_b64 exec, -1")
        k.e("s_waitcnt lgkmcnt(0)")
        k.e("s_lshl_b32 s63, s2, 4")
        k.e("v_mov_b32 v1, s63")
        k.e("v_mov_b32 v4, s90")
        k.e("v_mov_b32 v5, s92")
        k.e("buffer_store_dwordx2 v[4:5], v1, s[56:59], 0 offen")
    elif STAMP and k.nst:
        k.stamp()
        k.e("s_cmp_lg_u32 s2, 0")
        k.e(f"s_cbranch_scc1 {k.name}_end")
        k.e("s_cmp_lg_u32 s3, 0")
        k.e(f"s_cbranch_scc1 {k.name}_end")
        k.e("s_load_dwordx2 s[60:61], s[0:1], 64")
        k.e("s_waitcnt lgkmcnt(0)")
        k.srd(56, 60, 0, 256)
        k.e("s_mov_b64 exec, -1")
        k.e("v_mov_b32 v1, 0")
        for i in range(k.nst):
            k.e(f"s_sub_u32 s63, s{64+i}, s64")
            k.e("v_mov_b32 v2, s63")
            k.e(f"buffer_store_dword v2, v1, s[56:59], 0 offen offset:{4*i}")
    k.lab(f"{k.name}_end")
    k.e("s_endpgm")


def gen_k1():
    k = K("k1_qkv_kernel")
    tmpl_prologue(k, 256, 0, 0, 0)
    k.e("s_load_dwordx2 s[6:7], s[0:1], 8")
    k.e("s_and_b32 s30, s2, 15")
    k.e("s_lshr_b32 s31, s2, 4")
    k.e("s_waitcnt lgkmcnt(0)")
    k.srd(8, 4, 0, S * D * 2)
    k.srd(12, 6, 0, D * 3 * D * 2)
    k.e("s_lshl_b32 s32, s31, 17")
    k.e("s_add_u32 s16, s28, s32")
    k.e("s_addc_u32 s17, s29, 0")
    k.e(f"s_mov_b32 s18, {hex(0x400000 + 0x20000)}")
    k.e("s_mov_b32 s19, 0x00020000")
    b_thread_addr(k, 2688)
    tr_addr(k)
    k.e("s_mul_i32 s33, s31, 56")
    b_loads(k, 12, "s33", 2688)
    k.e("s_lshl_b32 s41, s30, 2")
    k.e("s_add_u32 s41, s41, s3")
    k.e("s_lshl_b32 s34, s41, 5")
    k.e(f"s_mul_i32 s41, s41, {32*896}")
    a_stage(k, True)
    k.e("s_barrier")
    b_writes(k, 0)
    k.e("s_add_u32 s35, s33, 896")
    b_loads(k, 12, "s35", 2688)
    a_ln(k)
    k.e("v_and_b32 v25, 31, v1")
    k.e("v_lshrrev_b32 v26, 5, v1")
    k.e("v_add_u32 v23, s34, v25")
    k.e("v_lshlrev_b32 v23, 6, v23")
    k.e("v_lshl_add_u32 v23, v26, 3, v23")
    k.e("v_lshlrev_b32 v24, 12, v25")
    k.e("v_lshl_add_u32 v24, v26, 4, v24")
    k.e("s_lshl_b32 s36, s34, 1")
    k.e("v_add_u32 v24, s36, v24")
    k.e("s_waitcnt lgkmcnt(0)")
    k.e("s_barrier")
    for c in range(3):
        chunk_mfma(k, c & 1, VACC0, w_first=(c < 2))
        if c < 2:
            k.e("s_waitcnt vmcnt(0)")
            b_writes(k, (c + 1) & 1)
            if c == 0:
                k.e("s_add_u32 s35, s33, 1792")
                b_loads(k, 12, "s35", 2688)
        k.nop(16)
        if c < 2:
            k.e("v_cmp_gt_u32 vcc, 32, v1")
            k.e("s_nop 1")
            if c == 0:
                k.e(f"s_mov_b32 s37, {hex(f2u(DH ** -0.5 * math.log2(math.e)))}")
                for r in range(16):
                    k.e(f"v_mul_f32 v{VACC0+r}, s37, v{VACC0+r}")
            for r in range(12, 16):
                pad = "1.0" if (c == 1 and r == 12) else "0"
                k.e(f"v_cndmask_b32 v{VACC0+r}, {pad}, v{VACC0+r}, vcc")
            for g in range(4):
                k.e(f"v_cvt_pk_bf16_f32 v{28+2*g}, v{VACC0+4*g}, v{VACC0+4*g+1}")
                k.e(f"v_cvt_pk_bf16_f32 v{29+2*g}, v{VACC0+4*g+2}, v{VACC0+4*g+3}")
            k.e(f"s_mov_b32 s37, {hex(c*0x200000)}")
            for g in range(4):
                k.e(f"buffer_store_dwordx2 v[{28+2*g}:{29+2*g}], v23, s[16:19], s37 offen offset:{16*g}")
        else:
            k.e("v_cmp_gt_u32 vcc, 28, v25")
            k.e("v_cmp_eq_u32 s[38:39], 28, v25")
            k.e("v_cndmask_b32 v27, 0, 1.0, s[38:39]")
            k.e("s_nop 1")
            for r in range(16):
                k.e(f"v_cndmask_b32 v{VACC0+r}, v27, v{VACC0+r}, vcc")
            for r in range(8):
                k.e(f"v_cvt_pk_bf16_f32 v{28+r}, v{VACC0+2*r}, v{VACC0+2*r+1}")
            k.e("s_mov_b32 s37, 0x400000")
            for G in range(2):
                k.e(f"buffer_store_dwordx4 v[{28+4*G}:{31+4*G}], v24, s[16:19], s37 offen offset:{32*G}")
        if c < 2:
            k.e("s_waitcnt lgkmcnt(0)")
            k.e("s_barrier")
    finish(k)
    return k


def gen_k2():
    k = K("k2_attn_kernel")
    VQ = 8
    VS = 64
    VO = 128
    VP = 144
    VKF = 176
    VVF = 192
    VPFK = 224
    VPFV = 232
    KB = 256 * 80
    VST = 528
    VBS = 32 * VST
    BUF = KB + VBS
    T = 6.0
    k.e("s_cmp_ge_u32 s2, 256")
    k.e(f"s_cbranch_scc1 {k.name}_end")
    k.e("s_load_dwordx2 s[28:29], s[0:1], 72")
    k.e("v_and_b32 v1, 63, v0")
    k.e("v_lshrrev_b32 v2, 6, v0")
    K2M = int(os.environ.get("K2M", "1"))
    PF = int(os.environ.get("PF", "3"))
    PFC = int(os.environ.get("PFC", "5"))
    if PF:
        k.e("s_load_dwordx2 s[48:49], s[0:1], 16")
        k.e("s_load_dwordx2 s[50:51], s[0:1], 32")
        k.e("s_load_dwordx2 s[52:53], s[0:1], 40")
        k.e("s_load_dwordx2 s[54:55], s[0:1], 48")
    if K2M:
        k.e("s_and_b32 s31, s2, 7")
        k.e("s_lshl_b32 s31, s31, 1")
        k.e("s_lshr_b32 s30, s2, 7")
        k.e("s_add_u32 s31, s31, s30")
        k.e("s_bfe_u32 s30, s2, 0x40003")
    else:
        k.e("s_and_b32 s30, s2, 15")
        k.e("s_lshr_b32 s31, s2, 4")
    k.e("v_readfirstlane_b32 s3, v2")
    k.e("s_lshl_b32 s32, s31, 17")
    k.e("s_and_b32 s33, s3, 3")
    k.e("s_lshr_b32 s44, s3, 2")
    k.e("s_waitcnt lgkmcnt(0)")
    k.e("s_add_u32 s8, s28, s32")
    k.e("s_addc_u32 s9, s29, 0")
    k.e(f"s_mov_b32 s10, {hex(0x400000 + 0x20000)}")
    k.e("s_mov_b32 s11, 0x00020000")
    k.srd(16, 28, WS_O, 64 * 32 * 1024 if OFRAG else S * D * 2)
    k.e("s_lshl_b32 s34, s30, 2")
    k.e("s_add_u32 s34, s34, s33")
    k.e("s_lshl_b32 s34, s34, 5")
    k.e("v_and_b32 v25, 31, v1")
    k.e("v_lshrrev_b32 v26, 5, v1")
    k.e("s_lshl_b32 s45, s34, 6")
    k.e("v_lshlrev_b32 v4, 4, v1")
    k.e("v_add_u32 v3, s45, v4")
    k.e("buffer_load_dwordx4 v[8:11], v3, s[8:11], 0 offen")
    k.e("buffer_load_dwordx4 v[12:15], v3, s[8:11], 0 offen offset:1024")
    k.e("s_lshl_b32 s45, s44, 13")
    k.e("v_add_u32 v18, s45, v4")
    k.e("v_add_u32 v42, 0x10000, v18")
    k.e("s_lshl_b32 s43, s3, 11")
    k.e("s_mov_b32 s46, 0")
    k.e("s_mov_b32 s47, -1")

    CB = 32768

    def g_loads(buf):
        k.e(f"s_add_u32 m0, s43, {buf*CB}")
        k.e("s_add_u32 s36, s35, 0x200000")
        k.e("buffer_load_dwordx4 v4, s[8:11], s35 offen lds")
        k.e("buffer_load_dwordx4 v4, s[8:11], s35 offen offset:1024 lds")
        k.e(f"s_add_u32 m0, s43, {buf*CB+16384}")
        k.e("s_add_u32 s35, s35, 16384")
        k.e("buffer_load_dwordx4 v4, s[8:11], s36 offen lds")
        k.e("buffer_load_dwordx4 v4, s[8:11], s36 offen offset:1024 lds")

    def chunk(buf, first):
        k.e("s_waitcnt vmcnt(0)")
        k.e("s_barrier")
        skip = k.newlab("skip")
        k.e(f"s_cmp_ge_u32 s35, {hex(0x200000 + 8*16384)}")
        k.e(f"s_cbranch_scc1 {skip}")
        g_loads(buf ^ 1)
        k.lab(skip)
        for kt in range(4):
            kf = VKF + 8 * (kt & 1)
            k.e(f"ds_read_b128 {vr(kf,4)}, v18 offset:{buf*CB + kt*2048}")
            k.e(f"ds_read_b128 {vr(kf+4,4)}, v18 offset:{buf*CB + kt*2048 + 1024}")
            if kt >= 1:
                pk = VKF + 8 * ((kt - 1) & 1)
                k.e("s_waitcnt lgkmcnt(2)")
                k.mfma(VS + 16 * (kt - 1), pk, VQ, "0")
                k.mfma(VS + 16 * (kt - 1), pk + 4, VQ + 4, VS + 16 * (kt - 1))
        k.e("s_waitcnt lgkmcnt(0)")
        k.mfma(VS + 48, VKF + 8, VQ, "0")
        k.mfma(VS + 48, VKF + 12, VQ + 4, VS + 48)
        for kt in range(4):
            for G in range(2):
                k.e(f"ds_read_b128 {vr(VVF+4*(2*kt+G),4)}, v18 offset:{buf*CB + 16384 + kt*2048 + 1024*G}")
        k.nop(12)
        k.e(f"v_max3_f32 v21, v{VS}, v{VS+1}, v{VS+2}")
        for i in range(3, 63, 2):
            k.e(f"v_max3_f32 v21, v21, v{VS+i}, v{VS+i+1}")
        k.e(f"v_max_f32 v21, v21, v{VS+63}")
        fast = k.newlab("fast")
        if not first:
            k.e("v_cmp_lt_f32 vcc, s38, v21")
            k.e(f"s_cbranch_vccz {fast}")
        k.e("v_mov_b32 v22, v21")
        k.e("s_nop 1")
        k.e("v_permlane32_swap_b32 v21, v22")
        k.e("s_nop 1")
        k.e("v_max_f32 v21, v21, v22")
        if not first:
            k.e("v_max_f32 v21, 0, v21")
        k.e("v_add_f32 v22, v20, v21")
        k.e("v_cvt_pk_bf16_f32 v23, v22, v22")
        k.e("v_lshlrev_b32 v22, 16, v23")
        k.e("v_sub_f32 v21, v22, v20")
        k.e("v_mov_b32 v20, v22")
        for i in range(64):
            k.e(f"v_sub_f32 v{VS+i}, v{VS+i}, v21")
        if not first:
            k.e("v_exp_f32 v24, -v21")
            k.e("s_nop 0")
            for r in range(16):
                k.e(f"v_mul_f32 v{VO+r}, v{VO+r}, v24")
        k.e("v_xor_b32 v23, 0x8000, v23")
        k.e("v_and_b32 v23, 0xffff, v23")
        k.e(f"v_cndmask_b32 v{VQ+6}, v{VQ+6}, v23, s[46:47]")
        k.lab(fast)
        for i in range(64):
            k.e(f"v_exp_f32 v{VS+i}, v{VS+i}")
        k.e("s_nop 0")
        for i in range(32):
            k.e(f"v_cvt_pk_bf16_f32 v{VP+i}, v{VS+2*i}, v{VS+2*i+1}")
        k.e("s_waitcnt lgkmcnt(0)")
        k.e("s_nop 1")
        for kt in range(4):
            for G in range(2):
                j = 2 * kt + G
                k.mfma(VO, VVF + 4 * j, VP + 4 * j, VO)

    FS = [64, 80]
    FP = [96, 104]
    FK = [112, 120]
    FV = [128, 136]
    FO = 144
    FLAG = 4 * CB
    vq = []

    def fdma(c, part):
        buf = c % 4
        k.e(f"s_add_u32 m0, s43, {buf*CB + 16384*part}")
        k.e(f"s_add_u32 s35, s43, {hex(0x200000*(part+1) + c*16384)}")
        k.e("buffer_load_dwordx4 v4, s[8:11], s35 offen lds")
        k.e("buffer_load_dwordx4 v4, s[8:11], s35 offen offset:1024 lds")
        vq.extend([c, c])

    def vwait(c):
        idx = max(i for i, t_ in enumerate(vq) if t_ == c)
        k.e(f"s_waitcnt vmcnt({len(vq) - 1 - idx})")

    def rdK(t):
        c, kt = t >> 2, t & 3
        kf = FK[t & 1]
        a, o = ("v18" if (c % 4) < 2 else "v42"), (c & 1) * CB
        k.e(f"ds_read_b128 {vr(kf,4)}, {a} offset:{o + kt*2048}")
        k.e(f"ds_read_b128 {vr(kf+4,4)}, {a} offset:{o + kt*2048 + 1024}")

    def rdV(t):
        c, kt = t >> 2, t & 3
        vf = FV[t & 1]
        for G in range(2):
            a, o = ("v18" if (c % 4) < 2 else "v42"), (c & 1) * CB
            k.e(f"ds_read_b128 {vr(vf+4*G,4)}, {a} offset:{o + 16384 + kt*2048 + 1024*G}")

    k.stamp()
    for c_ in range(3):
        fdma(c_, 0)
        fdma(c_, 1)
    vwait(0)
    k.stamp()
    k.e("s_barrier")
    for kt in range(4):
        k.e(f"ds_read_b128 {vr(128+8*kt,4)}, v18 offset:{kt*2048}")
        k.e(f"ds_read_b128 {vr(132+8*kt,4)}, v18 offset:{kt*2048 + 1024}")
    for kt in range(4):
        k.e(f"s_waitcnt lgkmcnt({6-2*kt})")
        k.mfma(64 + 16 * kt, 128 + 8 * kt, VQ, "0")
        k.mfma(64 + 16 * kt, 132 + 8 * kt, VQ + 4, 64 + 16 * kt)
    rdK(0)
    rdK(1)
    k.nop(12)
    k.e("v_max3_f32 v21, v64, v65, v66")
    for i in range(3, 63, 2):
        k.e(f"v_max3_f32 v21, v21, v{64+i}, v{64+i+1}")
    k.e("v_max_f32 v21, v21, v127")
    k.e("v_mov_b32 v22, v21")
    k.e("s_nop 1")
    k.e("v_permlane32_swap_b32 v21, v22")
    k.e("s_nop 1")
    k.e("v_max_f32 v21, v21, v22")
    k.e("v_cvt_pk_bf16_f32 v23, v21, v21")
    k.e("v_lshlrev_b32 v20, 16, v23")
    k.e("v_xor_b32 v23, 0x8000, v23")
    k.e("v_and_b32 v23, 0xffff, v23")
    k.e(f"v_cndmask_b32 v{VQ+6}, v{VQ+6}, v23, s[46:47]")
    k.e("s_waitcnt lgkmcnt(0)")
    k.e("s_nop 1")
    k.mfma(FS[0], FK[0], VQ, "0")
    k.mfma(FS[0], FK[0] + 4, VQ + 4, FS[0])
    k.nop(16)
    NT = 32
    for t in range(NT):
        c, kt = t >> 2, t & 3
        if kt == 0:
            k.stamp()
        if kt == 1 and EXPT != 6:
            if c + 1 < 8:
                vwait(c + 1)
            k.e("s_barrier")
        nrd = 0
        if EXPT != 4:
            if t + 2 < NT:
                rdK(t + 2); nrd += 2
            rdV(t); nrd += 2
            k.e(f"s_waitcnt lgkmcnt({nrd})")
        if EXPT == 7:
            sv_mfma = k.mfma
            k.mfma = lambda *a: None
        s = FS[t & 1]
        sn = FS[(t + 1) & 1]
        p = FP[t & 1]
        pp = FP[(t - 1) & 1]
        kf = FK[(t + 1) & 1]
        vf = FV[(t - 1) & 1]
        def ex(a, b):
            for i in range(a, b):
                if EXPT == 1:
                    k.e(f"v_mul_f32 v{s+i}, v{s+i}, v{s+i}")
                elif EXPT in (2, 4, 5, 6):
                    pass
                else:
                    k.e(f"v_exp_f32 v{s+i}, v{s+i}")
        def cv(a, b):
            for i in range(a, b):
                if EXPT not in (3, 5):
                    k.e(f"v_cvt_pk_bf16_f32 v{p+i}, v{s+2*i}, v{s+2*i+1}")
        if t + 1 < NT:
            k.mfma(sn, kf, VQ, "0")
        ex(0, 4)
        if t + 1 < NT:
            k.mfma(sn, kf + 4, VQ + 4, sn)
        ex(4, 8)
        cv(0, 2)
        if t >= 1:
            k.mfma(FO, vf, pp, "0" if t == 1 else FO)
        ex(8, 12)
        cv(2, 4)
        if t >= 1:
            k.mfma(FO, vf + 4, pp + 4, FO)
        ex(12, 16)
        cv(4, 8)
        if EXPT == 7:
            k.mfma = sv_mfma
        if kt in (1, 2) and c + 3 < 8:
            fdma(c + 3, kt - 1)
        if kt == 2:
            if c == PFC and PF:
                k.e("s_and_b32 s80, s2, 7")
                if os.environ.get("PFX"):
                    k.e("s_xor_b32 s80, s80, 4")
                k.e("s_lshr_b32 s81, s2, 3")
                k.e("v_lshrrev_b32 v244, 4, v1")
                k.e("s_lshl_b32 s82, s33, 2")
                k.e("v_add_u32 v244, s82, v244")
                k.e("v_min_u32 v244, 13, v244")
                k.e("s_mul_i32 s82, s81, 14")
                k.e("v_add_u32 v244, s82, v244")
                k.e("s_movk_i32 s82, 3584")
                k.e("v_mul_u32_u24 v244, s82, v244")
                k.e("v_and_b32 v245, 15, v1")
                k.e("v_min_u32 v245, 13, v245")
                k.e("v_lshl_add_u32 v244, v245, 7, v244")
                k.e("s_lshr_b32 s82, s80, 2")
                k.e("s_mul_i32 s82, s82, 1792")
                k.e("s_cmp_eq_u32 s44, 0")
                k.e("s_cselect_b32 s84, s50, s52")
                k.e("s_cselect_b32 s85, s51, s53")
                k.e(f"s_mov_b32 s86, {D*F*2}")
                k.e("s_mov_b32 s87, 0x00020000")
                if PF & 1:
                    k.e("buffer_load_dword v240, v244, s[84:87], s82 offen")
                    vq.append("pf")
                k.e("v_min_u32 v245, 97, v0")
                k.e("v_lshlrev_b32 v245, 7, v245")
                k.e("s_mul_i32 s82, s81, 12544")
                k.srd(84, 48, 0, D * D * 2)
                if PF & 2:
                    k.e("buffer_load_dword v241, v245, s[84:87], s82 offen")
                    vq.append("pf")
                k.e("v_min_u32 v246, 391, v0")
                k.e("v_lshlrev_b32 v246, 7, v246")
                k.e("s_mul_i32 s82, s81, 50176")
                k.srd(84, 54, 0, D * F * 2)
                if PF & 4:
                    k.e("buffer_load_dword v242, v246, s[84:87], s82 offen")
                    vq.append("pf")
    k.stamp()
    k.e("s_waitcnt lgkmcnt(0)")
    k.e("s_nop 1")
    k.mfma(FO, FV[(NT - 1) & 1], FP[(NT - 1) & 1], FO)
    k.mfma(FO, FV[(NT - 1) & 1] + 4, FP[(NT - 1) & 1] + 4, FO)
    k.nop(16)
    for r in range(16):
        k.e(f"v_mov_b32 v{VO+r}, v{FO+r}") if VO != FO else None
    k.e(f"s_mov_b32 s38, {hex(f2u(2.0**40))}")
    k.e(f"v_cmp_nlt_f32 vcc, v{FO+12}, s38")
    k.e("s_and_b64 vcc, vcc, s[46:47]")
    k.e("s_cmp_lg_u64 vcc, 0")
    k.e("s_cselect_b32 s38, 1, 0")
    k.e("v_mov_b32 v21, s38")
    k.e("v_lshlrev_b32 v22, 2, v2")
    k.e(f"v_add_u32 v22, {FLAG}, v22")
    k.e(f"ds_write_b32 v22, v21")
    k.e("s_waitcnt lgkmcnt(0)")
    k.e("s_barrier")
    k.e("v_and_b32 v22, 7, v1")
    k.e("v_lshlrev_b32 v22, 2, v22")
    k.e(f"v_add_u32 v22, {FLAG}, v22")
    k.e(f"ds_read_b32 v21, v22")
    k.e("s_waitcnt lgkmcnt(0)")
    k.e("v_cmp_ne_u32 vcc, 0, v21")
    combine = k.newlab("combine")
    k.e(f"s_cbranch_vccz {combine}")
    k.e(f"v_cndmask_b32 v{VQ+6}, v{VQ+6}, 0, s[46:47]")
    k.e("s_waitcnt vmcnt(0)")
    k.e("s_barrier")
    k.e("s_add_u32 s35, s43, 0x200000")
    g_loads(0)
    for r in range(16):
        k.e(f"v_mov_b32 v{VO+r}, 0")
    k.e("v_mov_b32 v20, 0")
    k.e(f"s_mov_b32 s38, {hex(f2u(T))}")
    chunk(0, True)
    chunk(1, False)
    k.e("s_mov_b32 s39, 0")
    loop = k.newlab("loop")
    k.lab(loop)
    chunk(0, False)
    chunk(1, False)
    k.e("s_add_u32 s39, s39, 1")
    k.e("s_cmp_lt_u32 s39, 3")
    k.e(f"s_cbranch_scc1 {loop}")
    k.nop(16)
    k.lab(combine)
    k.e("v_lshlrev_b32 v3, 2, v1")
    k.e(f"s_mul_i32 s45, s33, {17*256}")
    k.e("v_add_u32 v3, s45, v3")
    up = k.newlab("up")
    k.e("s_cmp_eq_u32 s44, 0")
    k.e(f"s_cbranch_scc1 {up}")
    for r in range(16):
        k.e(f"ds_write_b32 v3, v{VO+r} offset:{256*r}")
    k.e(f"ds_write_b32 v3, v20 offset:{256*16}")
    k.e("s_waitcnt lgkmcnt(0)")
    k.e("s_barrier")
    k.e("s_endpgm")
    k.lab(up)
    k.e("s_barrier")
    for r in range(16):
        k.e(f"ds_read_b32 v{VS+r}, v3 offset:{256*r}")
    k.e(f"ds_read_b32 v{VS+16}, v3 offset:{256*16}")
    k.e("s_waitcnt lgkmcnt(0)")
    k.e(f"v_max_f32 v21, v20, v{VS+16}")
    k.e("v_sub_f32 v22, v20, v21")
    k.e(f"v_sub_f32 v23, v{VS+16}, v21")
    k.e("v_exp_f32 v22, v22")
    k.e("v_exp_f32 v23, v23")
    k.e("s_nop 0")
    for r in range(16):
        k.e(f"v_mul_f32 v{VO+r}, v{VO+r}, v22")
        k.e(f"v_fma_f32 v{VO+r}, v{VS+r}, v23, v{VO+r}")
    k.e("s_nop 0")
    k.e(f"v_mov_b32 v21, v{VO+12}")
    k.e(f"v_mov_b32 v22, v{VO+12}")
    k.e("s_nop 1")
    k.e("v_permlane32_swap_b32 v21, v22")
    k.e("s_nop 1")
    k.e("v_rcp_f32 v22, v22")
    k.e("s_nop 0")
    for r in range(16):
        k.e(f"v_mul_f32 v{VO+r}, v{VO+r}, v22")
    if OFRAG:
        for r in range(12, 16):
            k.e(f"v_cndmask_b32 v{VO+r}, v{VO+r}, 0, s[46:47]")
    for g in range(4):
        k.e(f"v_cvt_pk_bf16_f32 v{28+2*g}, v{VO+4*g}, v{VO+4*g+1}")
        k.e(f"v_cvt_pk_bf16_f32 v{29+2*g}, v{VO+4*g+2}, v{VO+4*g+3}")
    if OFRAG:
        k.e("v_lshlrev_b32 v3, 4, v1")
        k.e("s_lshr_b32 s40, s34, 5")
        k.e("s_lshl_b32 s40, s40, 5")
        k.e("s_lshl_b32 s41, s31, 1")
        k.e("s_add_u32 s40, s40, s41")
        k.e("s_lshl_b32 s40, s40, 10")
        for g in range(2):
            k.e(f"buffer_store_dwordx4 v[{28+4*g}:{31+4*g}], v3, s[16:19], s40 offen offset:{1024*g}")
        finish(k)
        return k
    k.e("v_add_u32 v3, s34, v25")
    k.e("s_movk_i32 s40, 896")
    k.e("v_mul_u32_u24 v3, s40, v3")
    k.e("v_lshl_add_u32 v3, v26, 3, v3")
    k.e("s_mul_i32 s40, s31, 56")
    for g in range(3):
        k.e(f"buffer_store_dwordx2 v[{28+2*g}:{29+2*g}], v3, s[16:19], s40 offen offset:{16*g}")
    k.e("v_cmp_gt_u32 vcc, 32, v1")
    k.e("s_and_saveexec_b64 s[42:43], vcc")
    k.e(f"buffer_store_dwordx2 v[34:35], v3, s[16:19], s40 offen offset:48")
    finish(k)
    return k


def gen_k3():
    k = K("k3_wo_kernel")
    tmpl_prologue(k, 224, 72, 0, 0)
    k.e("s_load_dwordx2 s[6:7], s[0:1], 16")
    k.e("s_load_dwordx2 s[20:21], s[0:1], 0")
    k.e("s_and_b32 s30, s2, 15")
    k.e("s_lshr_b32 s31, s2, 4")
    k.e("s_waitcnt lgkmcnt(0)")
    k.srd(8, 4, WS_O, S * D * 2)
    k.srd(12, 6, 0, D * D * 2)
    k.srd(16, 28, WS_H, S * D * 2)
    k.srd(24, 20, 0, S * D * 2)
    b_thread_addr(k, 896)
    tr_addr(k)
    k.e("s_lshl_b32 s33, s31, 6")
    b_loads(k, 12, "s33", 896)
    k.e("s_lshl_b32 s41, s30, 2")
    k.e("s_add_u32 s41, s41, s3")
    k.e("s_lshl_b32 s34, s41, 5")
    k.e(f"s_mul_i32 s41, s41, {32*896}")
    a_stage(k, False)
    k.e("s_barrier")
    b_writes(k, 0)
    k.e("v_and_b32 v25, 31, v1")
    k.e("v_lshrrev_b32 v26, 5, v1")
    k.e("v_add_u32 v23, s34, v25")
    k.e("s_movk_i32 s40, 896")
    k.e("v_mul_u32_u24 v23, s40, v23")
    k.e("v_lshl_add_u32 v23, v26, 3, v23")
    for g in range(4):
        k.e(f"buffer_load_dwordx2 v[{28+2*g}:{29+2*g}], v23, s[24:27], s33 offen offset:{16*g}")
    k.e("s_waitcnt lgkmcnt(0)")
    k.e("s_barrier")
    chunk_mfma(k, 0, VACC0, True)
    k.nop(16)
    k.e("s_waitcnt vmcnt(0)")
    for g in range(4):
        for h in range(2):
            src = 28 + 2 * g + h
            k.e(f"v_lshlrev_b32 v36, 16, v{src}")
            k.e(f"v_and_b32 v37, 0xffff0000, v{src}")
            k.e(f"v_add_f32 v36, v36, v{VACC0+4*g+2*h}")
            k.e(f"v_add_f32 v37, v37, v{VACC0+4*g+2*h+1}")
            k.e(f"v_cvt_pk_bf16_f32 v{src}, v36, v37")
    for g in range(4):
        k.e(f"buffer_store_dwordx2 v[{28+2*g}:{29+2*g}], v23, s[16:19], s33 offen offset:{16*g}")
    finish(k)
    return k


def gen_k4():
    k = K("k4_ffn1_kernel")
    tmpl_prologue(k, 224, 72, 0, 0)
    k.e("s_load_dwordx2 s[6:7], s[0:1], 32")
    k.e("s_load_dwordx2 s[20:21], s[0:1], 40")
    k.e("s_and_b32 s30, s2, 15")
    k.e("s_lshr_b32 s31, s2, 4")
    k.e("s_waitcnt lgkmcnt(0)")
    k.srd(8, 4, WS_H, S * D * 2)
    k.srd(12, 6, 0, D * F * 2)
    k.srd(24, 20, 0, D * F * 2)
    k.srd(16, 28, WS_ACT, S * F * 2)
    b_thread_addr(k, 3584)
    tr_addr(k)
    k.e("s_lshl_b32 s33, s31, 8")
    b_loads(k, 12, "s33", 3584)
    k.e("s_lshl_b32 s41, s30, 2")
    k.e("s_add_u32 s41, s41, s3")
    k.e("s_lshl_b32 s34, s41, 5")
    k.e(f"s_mul_i32 s41, s41, {32*896}")
    a_stage(k, True)
    k.e("s_barrier")
    b_writes(k, 0)
    b_loads(k, 24, "s33", 3584)
    a_ln(k)
    k.e("v_and_b32 v25, 31, v1")
    k.e("v_lshrrev_b32 v26, 5, v1")
    k.e("v_add_u32 v23, s34, v25")
    k.e("s_movk_i32 s40, 3584")
    k.e("v_mul_u32_u24 v23, s40, v23")
    k.e("v_lshl_add_u32 v23, v26, 3, v23")
    c0 = -2.0 * math.log2(math.e) * math.sqrt(2.0 / math.pi)
    c1 = c0 * 0.044715
    k.e(f"s_mov_b32 s45, {hex(f2u(c0))}")
    k.e(f"s_mov_b32 s46, {hex(f2u(c1))}")
    k.e("s_waitcnt lgkmcnt(0)")
    k.e("s_barrier")
    nch = 8
    for c in range(nch):
        acc = VACC0 if c % 2 == 0 else VACC1
        chunk_mfma(k, c & 1, acc, True)
        if c + 1 < nch:
            k.e("s_waitcnt vmcnt(0)")
            b_writes(k, (c + 1) & 1)
            if c + 2 < nch:
                j = (c + 2) // 2
                k.e(f"s_add_u32 s35, s33, {64*j}")
                b_loads(k, 12 if (c + 2) % 2 == 0 else 24, "s35", 3584)
        if c % 2 == 1:
            k.nop(16)
            for r in range(16):
                g_, u_ = VACC0 + r, VACC1 + r
                t = 36 + (r & 3)
                k.e(f"v_mul_f32 v{t}, v{g_}, v{g_}")
                k.e(f"v_fma_f32 v{t}, v{t}, s46, v47")
                k.e(f"v_mul_f32 v{t}, v{t}, v{g_}")
                k.e(f"v_exp_f32 v{t}, v{t}")
                k.e("s_nop 0")
                k.e(f"v_add_f32 v{t}, 1.0, v{t}")
                k.e(f"v_rcp_f32 v{t}, v{t}")
                k.e("s_nop 0")
                k.e(f"v_mul_f32 v{t}, v{t}, v{g_}")
                k.e(f"v_mul_f32 v{g_}, v{t}, v{u_}")
            for g in range(4):
                k.e(f"v_cvt_pk_bf16_f32 v{28+2*g}, v{VACC0+4*g}, v{VACC0+4*g+1}")
                k.e(f"v_cvt_pk_bf16_f32 v{29+2*g}, v{VACC0+4*g+2}, v{VACC0+4*g+3}")
            k.e(f"s_add_u32 s37, s33, {64*(c//2)}")
            for g in range(4):
                k.e(f"buffer_store_dwordx2 v[{28+2*g}:{29+2*g}], v23, s[16:19], s37 offen offset:{16*g}")
        if c + 1 < nch:
            k.e("s_waitcnt lgkmcnt(0)")
            k.e("s_barrier")
        if c == 0:
            k.e("v_mov_b32 v47, s45")
    finish(k)
    return k


def gen_k5():
    k = K("k5_down_kernel")
    AST = 464
    ABUF = 64 * AST
    BB = 2 * 224 * 64
    BUF = ABUF + BB
    VPA = 64
    VPB = 96
    VAF = 128
    VBF = 144
    ACC = 160
    k.e("s_cmp_ge_u32 s2, 224")
    k.e(f"s_cbranch_scc1 {k.name}_end")
    k.e("s_load_dwordx2 s[28:29], s[0:1], 72")
    k.e("s_load_dwordx2 s[6:7], s[0:1], 48")
    k.e("s_load_dwordx2 s[20:21], s[0:1], 56")
    k.e("v_and_b32 v1, 63, v0")
    k.e("v_lshrrev_b32 v2, 6, v0")
    k.e("s_and_b32 s30, s2, 31")
    k.e("s_lshr_b32 s31, s2, 5")
    k.e("v_readfirstlane_b32 s3, v2")
    k.e("s_waitcnt lgkmcnt(0)")
    k.srd(8, 28, WS_ACT, S * F * 2)
    k.srd(12, 6, 0, F * D * 2)
    k.srd(16, 20, 0, S * D * 2)
    k.srd(24, 28, WS_H, S * D * 2)
    k.e("s_movk_i32 s44, 2341")
    k.e("s_movk_i32 s44, 4682")
    for i in range(7):
        k.e(f"v_add_u32 v7, {i*256}, v0")
        k.e("v_mul_u32_u24 v8, s44, v7")
        k.e("v_lshrrev_b32 v8, 17, v8")
        k.e("v_mul_u32_u24 v9, 28, v8")
        k.e("v_sub_u32 v9, v7, v9")
        k.e("v_mul_u32_u24 v10, s45, v8") if False else None
        k.e(f"v_lshlrev_b32 v10, 4, v9")
        k.e(f"s_movk_i32 s45, 3584")
        k.e(f"v_mad_u32_u24 v{32+i}, v8, s45, v10")
        k.e(f"s_movk_i32 s45, {AST}")
        k.e(f"v_mad_u32_u24 v{40+i}, v8, s45, v10")
    k.e("v_lshrrev_b32 v7, 3, v0")
    k.e("v_and_b32 v8, 7, v0")
    k.e("s_movk_i32 s45, 896")
    k.e("v_mul_u32_u24 v48, s45, v7")
    k.e("v_lshl_add_u32 v48, v8, 4, v48")
    k.e("v_lshlrev_b32 v49, 6, v7")
    k.e("v_and_b32 v9, 3, v8")
    k.e("v_lshl_add_u32 v49, v9, 4, v49")
    k.e("v_lshrrev_b32 v9, 2, v8")
    k.e(f"s_movk_i32 s45, {224*64}")
    k.e("v_mad_u32_u24 v49, v9, s45, v49")
    k.e(f"v_add_u32 v49, {ABUF}, v49")
    k.e(f"s_mul_i32 s35, s30, {64*3584}")
    k.e("s_lshl_b32 s36, s31, 7")

    def g_loads():
        for i in range(7):
            k.e(f"buffer_load_dwordx4 {vr(VPA+4*i,4)}, v{32+i}, s[8:11], s35 offen")
        k.e("s_mov_b32 s37, s36")
        for i in range(7):
            k.e(f"buffer_load_dwordx4 {vr(VPB+4*i,4)}, v48, s[12:15], s37 offen")
            if i < 6:
                k.e(f"s_add_u32 s37, s37, {32*896}")
        k.e("s_add_u32 s35, s35, 448")
        k.e(f"s_add_u32 s36, s36, {224*896}")

    def l_writes(buf):
        for i in range(7):
            k.e(f"ds_write_b128 v{(50 if buf else 40)+i}, {vr(VPA+4*i,4)}")
        for i in range(7):
            k.e(f"ds_write_b128 v{57 if buf else 49}, {vr(VPB+4*i,4)} offset:{i*32*64}")

    g_loads()
    for i in range(7):
        k.e(f"v_add_u32 v{50+i}, {BUF}, v{40+i}")
    k.e(f"v_add_u32 v57, {BUF}, v49")
    tr_addr(k)
    k.e("s_and_b32 s38, s3, 1")
    k.e(f"s_mul_i32 s38, s38, {224*64}")
    k.e(f"s_add_u32 s38, s38, {ABUF}")
    k.e("v_add_u32 v21, s38, v21")
    k.e("s_lshr_b32 s39, s3, 1")
    k.e("v_and_b32 v25, 31, v1")
    k.e("v_lshrrev_b32 v26, 5, v1")
    k.e("s_lshl_b32 s40, s39, 5")
    k.e("v_add_u32 v20, s40, v25")
    k.e(f"s_movk_i32 s45, {AST}")
    k.e("v_mul_u32_u24 v20, s45, v20")
    k.e("v_lshl_add_u32 v20, v26, 4, v20")
    k.e(f"v_add_u32 v58, {BUF}, v20")
    k.e(f"v_add_u32 v59, {BUF}, v21")
    k.e("s_waitcnt vmcnt(0)")
    l_writes(0)
    g_loads()
    k.e("s_waitcnt lgkmcnt(0)")
    k.e("s_barrier")
    for c in range(8):
        buf = c & 1

        def rd(s_):
            a = VAF + 4 * (s_ % 4)
            b = VBF + 4 * (s_ % 4)
            k.e(f"ds_read_b128 {vr(a,4)}, v{58 if buf else 20} offset:{32*s_}")
            k.e(f"ds_read_b64_tr_b16 v[{b}:{b+1}], v{59 if buf else 21} offset:{1024*s_}")
            k.e(f"ds_read_b64_tr_b16 v[{b+2}:{b+3}], v{59 if buf else 21} offset:{1024*s_ + 256}")
        for s_ in range(3):
            rd(s_)
        for s_ in range(14):
            if s_ + 3 < 14:
                rd(s_ + 3)
                k.e("s_waitcnt lgkmcnt(9)")
            else:
                k.e(f"s_waitcnt lgkmcnt({3*(13-s_)})")
            a = VAF + 4 * (s_ % 4)
            b = VBF + 4 * (s_ % 4)
            k.mfma(ACC, b, a, "0" if (c == 0 and s_ == 0) else ACC)
        if c + 1 < 8:
            k.e("s_waitcnt vmcnt(0)")
            l_writes(buf ^ 1)
            if c + 2 < 8:
                g_loads()
            k.e("s_waitcnt lgkmcnt(0)")
            k.e("s_barrier")
    k.e("s_lshl_b32 s41, s30, 6")
    k.e("s_add_u32 s41, s41, s40")
    k.e("v_add_u32 v23, s41, v25")
    k.e("s_movk_i32 s45, 896")
    k.e("v_mul_u32_u24 v23, s45, v23")
    k.e("v_lshl_add_u32 v23, v26, 3, v23")
    k.e("s_lshl_b32 s42, s31, 7")
    k.e("s_and_b32 s43, s3, 1")
    k.e("s_lshl_b32 s43, s43, 6")
    k.e("s_add_u32 s42, s42, s43")
    for g in range(4):
        k.e(f"buffer_load_dwordx2 v[{28+2*g}:{29+2*g}], v23, s[24:27], s42 offen offset:{16*g}")
    k.nop(16)
    k.e("s_waitcnt vmcnt(0)")
    for g in range(4):
        for h in range(2):
            src = 28 + 2 * g + h
            k.e(f"v_lshlrev_b32 v36, 16, v{src}")
            k.e(f"v_and_b32 v37, 0xffff0000, v{src}")
            k.e(f"v_add_f32 v36, v36, v{ACC+4*g+2*h}")
            k.e(f"v_add_f32 v37, v37, v{ACC+4*g+2*h+1}")
            k.e(f"v_cvt_pk_bf16_f32 v{src}, v36, v37")
    for g in range(4):
        k.e(f"buffer_store_dwordx2 v[{28+2*g}:{29+2*g}], v23, s[16:19], s42 offen offset:{16*g}")
    finish(k)
    return k


HEADER = open("cdna_kernels/" + NAME + ".s.ref").read().split("; Override")[0]


def build(nk=5):
    ks = [(gen_k1(), 256, 4 * A_WAVE, 256), (gen_k2(), 256, 3 * (256 * 80 + 32 * 528) + 64, 512), (gen_k3(), 224, 4 * A_WAVE, 256),
          (gen_k4(), 224, 4 * A_WAVE, 256), (gen_k5(), 224, 2 * (64 * 464 + 28672), 256)][:nk]
    out = [HEADER.rstrip("\n")]
    for k, g, lds, blk in ks:
        out.append(f"; @launch kernel={k.name} grid=({g},1,1) block=({blk},1,1) lds={lds}")
    out.append('.amdgcn_target "amdgcn-amd-amdhsa--gfx950"')
    out.append(".text")
    for k, g, lds, blk in ks:
        out.append(f".globl {k.name}")
        out.append(".p2align 8")
        out.append(f".type {k.name},@function")
        out.append(f"{k.name}:")
        out += [l for l in k.L if l is not None]
    out.append('.section .rodata,"a"')
    for k, g, lds, blk in ks:
        out.append(".p2align 6")
        out.append(f".amdhsa_kernel {k.name}")
        out.append("  .amdhsa_next_free_vgpr 256")
        out.append("  .amdhsa_next_free_sgpr 102")
        out.append("  .amdhsa_accum_offset 256")
        out.append("  .amdhsa_group_segment_fixed_size 0")
        out.append("  .amdhsa_kernarg_size 80")
        out.append("  .amdhsa_user_sgpr_count 2")
        out.append("  .amdhsa_user_sgpr_kernarg_segment_ptr 1")
        out.append("  .amdhsa_system_sgpr_workgroup_id_x 1")
        out.append(".end_amdhsa_kernel")
    return "\n".join(out) + "\n"


if __name__ == "__main__":
    txt = build()
    open(OUT or ("cdna_kernels/" + NAME + ".s"), "w").write(txt)
    print("written", len(txt))
```

```python
import math, sys, os
import gen as G
from gen import K, vr, f2u, finish, NAME, S, D, H, DH, F, HEADER

STAMP = G.STAMP
OUT = os.environ.get("OUT", "")
WS_Q, WS_K, WS_V = 0x0, 0x200000, 0x400000
WS_O = 0x600000
WS_H = 0x800000
WS_ACT = 0xA00000
WS_ST = 0x1200000
ROT = int(os.environ.get("ROT", "7"))
SC1 = int(os.environ.get("SC1", "8"))
EXP = int(os.environ.get("EXP", "0"))
SCF = os.environ.get("SCF", "sc1")


WS_CS = 0x1240000


def cap(k, fn, *a):
    n0 = len(k.L)
    fn(*a)
    out = k.L[n0:]
    del k.L[n0:]
    return out


def pieces(lines):
    out, cur = [], []
    for l in lines:
        cur.append(l)
        if "buffer_load" in l:
            out.append(cur)
            cur = []
    if cur:
        out[-1] += cur
    return out


def dma(k, voff, srd, soff, m0expr):
    k.e(f"buffer_load_dwordx4 {voff}, s[{srd}:{srd+3}], {soff} offen lds")


def gen_sk(which):
    is3 = which == 3
    name = "k3_wo_kernel" if is3 else "k5_down_kernel"
    k = K(name)
    NKS = 32 if is3 else 112
    NST = NKS // 4
    DEP = 8
    ACC = 64
    VAF = 128
    VBF = 192
    k.e("s_cmp_ge_u32 s2, 224")
    k.e(f"s_cbranch_scc1 {k.name}_" + ("cs" if is3 else "end"))
    k.e("s_load_dwordx2 s[28:29], s[0:1], 72")
    k.e(f"s_load_dwordx2 s[6:7], s[0:1], {16 if is3 else 48}")
    if is3:
        k.e("s_load_dwordx2 s[20:21], s[0:1], 0")
    else:
        k.e("s_load_dwordx2 s[20:21], s[0:1], 56")
    k.e("v_and_b32 v1, 63, v0")
    k.e("v_lshrrev_b32 v2, 6, v0")
    k.e("s_and_b32 s30, s2, 7")
    k.e("s_lshr_b32 s31, s2, 3")
    k.e("v_readfirstlane_b32 s3, v2")
    k.e("s_and_b32 s32, s31, 3")
    k.e("s_lshl_b32 s30, s30, 2")
    k.e("s_add_u32 s30, s30, s32")
    k.e("s_lshr_b32 s31, s31, 2")
    k.stamp()
    k.e("v_lshlrev_b32 v3, 4, v1")
    k.e("v_lshrrev_b32 v4, 3, v1")
    k.e("v_and_b32 v5, 7, v1")
    k.e("v_bfe_u32 v6, v1, 4, 1")
    k.e("v_lshlrev_b32 v6, 2, v6")
    k.e("v_xor_b32 v5, v5, v6")
    k.e("s_movk_i32 s44, 896")
    if is3:
        k.e("s_and_b32 s33, s3, 1")
        k.e("s_lshl_b32 s33, s33, 4")
        k.e("v_add_u32 v6, s33, v4")
        k.e("v_add_u32 v7, 8, v6")
        k.e("v_min_u32 v7, 27, v7")
        k.e("v_mul_u32_u24 v6, s44, v6")
        k.e("v_mul_u32_u24 v7, s44, v7")
        k.e("v_lshl_add_u32 v6, v5, 4, v6")
        k.e("v_lshl_add_u32 v7, v5, 4, v7")
    else:
        k.e("v_mul_u32_u24 v6, s44, v4")
        k.e("v_lshl_add_u32 v6, v5, 4, v6")
        k.e(f"v_add_u32 v7, {8*896}, v6")
    k.e("s_waitcnt lgkmcnt(0)")
    k.srd(8, 28, WS_O if is3 else WS_ACT, 64 * NKS * 1024)
    k.srd(12, 6, 0, (D if is3 else F) * D * 2)
    k.e(f"s_mul_i32 s34, s30, {2*NKS*1024}")
    k.e("s_lshl_b32 s35, s3, 10")
    k.e("s_add_u32 s34, s34, s35")
    k.e("s_lshl_b32 s36, s31, 7")
    if is3:
        k.e("s_lshr_b32 s37, s3, 1")
        k.e(f"s_mul_i32 s37, s37, {28*896}")
        bstep = 2 * 28 * 896
    else:
        k.e(f"s_mul_i32 s37, s3, {16*896}")
        bstep = 64 * 896
    k.e("s_add_u32 s36, s36, s37")
    k.e(f"s_mul_i32 s38, s3, {DEP*2048}")
    if ROT & 1:
        ca, cb = (1, 2) if is3 else (4, 7)
        k.e(f"s_mul_i32 s47, s31, {ca}")
        k.e(f"s_mul_i32 s48, s32, {cb}")
        k.e("s_add_u32 s47, s47, s48")
        k.e(f"s_cmp_ge_u32 s47, {NST}")
        k.e(f"s_cselect_b32 s48, {NST}, 0")
        k.e("s_sub_u32 s47, s47, s48")
        k.e("s_lshl_b32 s48, s47, 12")
        k.e("s_add_u32 s34, s34, s48")
        k.e(f"s_mul_i32 s48, s47, {bstep}")
        k.e("s_add_u32 s36, s36, s48")

    def issue(t):
        sl = t % DEP
        a = VAF + 8 * sl
        k.e(f"buffer_load_dwordx4 {vr(a,4)}, v3, s[8:11], s34 offen")
        k.e(f"s_add_u32 s39, s34, {NKS*1024}")
        k.e(f"buffer_load_dwordx4 {vr(a+4,4)}, v3, s[8:11], s39 offen")
        k.e(f"s_add_u32 m0, s38, {sl*2048}")
        k.e("s_add_u32 s34, s34, 4096")
        k.e("buffer_load_dwordx4 v6, s[12:15], s36 offen lds")
        k.e(f"s_add_u32 m0, s38, {sl*2048+1024}")
        k.e("s_nop 0")
        k.e("buffer_load_dwordx4 v7, s[12:15], s36 offen lds")
        k.e(f"s_add_u32 s36, s36, {bstep}")
        if ROT & 1:
            k.e("s_add_u32 s47, s47, 1")
            k.e(f"s_cmp_eq_u32 s47, {NST}")
            k.e(f"s_cselect_b32 s48, {NST*4096}, 0")
            k.e(f"s_cselect_b32 s49, {NST*bstep}, 0")
            k.e("s_sub_u32 s34, s34, s48")
            k.e("s_sub_u32 s36, s36, s49")

    for t in range(min(DEP, NST)):
        issue(t)
    k.e("v_lshrrev_b32 v8, 5, v1")
    k.e("v_bfe_u32 v9, v1, 2, 2")
    k.e("v_lshl_add_u32 v10, v8, 2, v9")
    k.e("v_lshlrev_b32 v10, 7, v10")
    k.e("v_lshrrev_b32 v11, 1, v9")
    k.e("v_lshl_add_u32 v10, v11, 6, v10")
    k.e("v_bfe_u32 v11, v1, 4, 1")
    k.e("v_lshl_add_u32 v10, v11, 5, v10")
    k.e("v_and_b32 v11, 3, v1")
    k.e("v_lshl_add_u32 v10, v11, 3, v10")
    k.e("v_add_u32 v10, s38, v10")
    k.e("v_xor_b32 v11, 64, v10")

    def rdB(t):
        sl = t % DEP
        b = VBF + 8 * (t & 1)
        for ct in range(2):
            for i in range(2):
                k.e(f"ds_read_b64_tr_b16 v[{b+4*ct+2*i}:{b+4*ct+2*i+1}], v{10+ct} offset:{sl*2048+1024*i}")

    def outstanding_after(t):
        return None

    issued = min(DEP, NST)
    k.e(f"s_waitcnt vmcnt({4*(issued-1)})")
    k.stamp()
    rdB(0)
    for t in range(NST):
        if t + 1 < NST:
            k.e(f"s_waitcnt vmcnt({4*(issued-(t+2))})")
            rdB(t + 1)
            k.e("s_waitcnt lgkmcnt(4)")
        else:
            k.e("s_waitcnt lgkmcnt(0)")
        a = VAF + 8 * (t % DEP)
        b = VBF + 8 * (t & 1)
        for rt in range(2):
            for ct in range(2):
                acc = ACC + 16 * (2 * rt + ct)
                k.mfma(acc, b + 4 * ct, a + 4 * rt, "0" if t == 0 else acc)
        if issued < NST:
            issue(issued)
            issued += 1
    k.stamp()
    k.e("s_lshr_b32 s40, s3, 1")
    k.e("s_and_b32 s41, s3, 1")
    k.e("s_lshl_b32 s42, s30, 1")
    k.e("s_add_u32 s42, s42, s40")
    k.e("s_lshl_b32 s43, s31, 1")
    k.e("s_add_u32 s43, s43, s41")
    k.e("v_and_b32 v12, 31, v1")
    if is3:
        k.srd(16, 20, 0, S * D * 2)
        k.srd(24, 28, WS_H, 64 * 28 * 1024)
        k.e("s_lshl_b32 s45, s42, 5")
        k.e("v_add_u32 v13, s45, v12")
        k.e("v_mul_u32_u24 v13, s44, v13")
        k.e("v_lshl_add_u32 v13, v8, 3, v13")
        k.e("s_lshl_b32 s45, s43, 6")
        for g in range(4):
            k.e(f"buffer_load_dwordx2 v[{208+2*g}:{209+2*g}], v13, s[16:19], s45 offen offset:{16*g}")
    else:
        k.srd(16, 28, WS_H, 64 * 28 * 1024)
        k.srd(24, 20, 0, S * D * 2)
        k.e("s_mul_i32 s45, s42, 28")
        k.e("s_lshl_b32 s46, s43, 1")
        k.e("s_add_u32 s45, s45, s46")
        k.e("s_lshl_b32 s45, s45, 10")
        for g in range(2):
            k.e(f"buffer_load_dwordx4 v[{208+4*g}:{211+4*g}], v3, s[16:19], s45 offen offset:{1024*g}")
    k.e("s_barrier")
    k.nop(8)
    for o in range(4):
        skip = k.newlab("own")
        k.e(f"s_cmp_eq_u32 s3, {o}")
        k.e(f"s_cbranch_scc1 {skip}")
        k.e(f"s_sub_u32 s45, s3, {o+1}")
        k.e("s_and_b32 s45, s45, 3")
        k.e("s_lshl_b32 s45, s45, 12")
        k.e(f"s_add_u32 s45, s45, {o*3*4096}")
        k.e("v_add_u32 v14, s45, v3")
        for q in range(4):
            k.e(f"ds_write_b128 v14, {vr(ACC+16*o+4*q,4)} offset:{1024*q}")
        k.lab(skip)
    for o in range(4):
        skip = k.newlab("mv")
        k.e(f"s_cmp_lg_u32 s3, {o}")
        k.e(f"s_cbranch_scc1 {skip}")
        for r in range(16):
            k.e(f"v_mov_b32 v{128+r}, v{ACC+16*o+r}")
        k.lab(skip)
    k.e("s_waitcnt lgkmcnt(0)")
    k.e("s_barrier")
    k.e(f"s_mul_i32 s45, s3, {3*4096}")
    k.e("v_add_u32 v14, s45, v3")
    for sl in range(3):
        for q in range(4):
            k.e(f"ds_read_b128 {vr(144+16*sl+4*q,4)}, v14 offset:{4096*sl+1024*q}")
    for sl in range(3):
        k.e(f"s_waitcnt lgkmcnt({8-4*sl})")
        for r in range(16):
            k.e(f"v_add_f32 v{128+r}, v{128+r}, v{144+16*sl+r}")
    k.e("s_waitcnt vmcnt(0)")
    k.stamp()
    for p in range(8):
        src = 208 + p
        k.e(f"v_lshlrev_b32 v14, 16, v{src}")
        k.e(f"v_and_b32 v15, 0xffff0000, v{src}")
        k.e(f"v_add_f32 v14, v14, v{128+2*p}")
        k.e(f"v_add_f32 v15, v15, v{128+2*p+1}")
        k.e(f"v_cvt_pk_bf16_f32 v{src}, v14, v15")
    if is3:
        k.e("s_mul_i32 s45, s42, 28")
        k.e("s_lshl_b32 s46, s43, 1")
        k.e("s_add_u32 s45, s45, s46")
        k.e("s_lshl_b32 s45, s45, 10")
        for g in range(2):
            k.e(f"buffer_store_dwordx4 v[{208+4*g}:{211+4*g}], v3, s[24:27], s45 offen offset:{1024*g}")
        k.e("v_mov_b32 v16, 0")
        k.e("v_mov_b32 v17, 0")
        k.e("s_mov_b32 s46, 0x3f803f80")
        for p in range(8):
            k.e(f"v_dot2_f32_bf16 v16, v{208+p}, s46, v16")
            k.e(f"v_dot2_f32_bf16 v17, v{208+p}, v{208+p}, v17")
        k.e("s_nop 1")
        k.e("v_mov_b32 v18, v16")
        k.e("v_mov_b32 v19, v17")
        k.e("s_nop 1")
        k.e("v_permlane32_swap_b32 v16, v18")
        k.e("v_permlane32_swap_b32 v17, v19")
        k.e("s_nop 1")
        k.e("v_add_f32 v16, v16, v18")
        k.e("v_add_f32 v17, v17, v19")
        k.srd(16, 28, WS_ST, S * 14 * 8)
        k.e("s_lshl_b32 s45, s42, 5")
        k.e("v_add_u32 v13, s45, v12")
        k.e("v_lshlrev_b32 v13, 3, v13")
        k.e("s_lshl_b32 s45, s43, 14")
        k.e("v_cmp_gt_u32 vcc, 32, v1")
        k.e("s_and_saveexec_b64 s[46:47], vcc")
        k.e("buffer_store_dwordx2 v[16:17], v13, s[16:19], s45 offen")
    else:
        k.e("s_nop 1")
        for g in (0, 2):
            k.e(f"v_permlane32_swap_b32 v{208+2*g}, v{208+2*g+2}")
            k.e(f"v_permlane32_swap_b32 v{208+2*g+1}, v{208+2*g+3}")
        k.e("s_lshl_b32 s45, s42, 5")
        k.e("v_add_u32 v13, s45, v12")
        k.e("v_mul_u32_u24 v13, s44, v13")
        k.e("v_lshl_add_u32 v13, v8, 4, v13")
        k.e("s_lshl_b32 s45, s43, 6")
        k.e("s_nop 0")
        for g in range(2):
            k.e(f"buffer_store_dwordx4 v[{208+4*g}:{211+4*g}], v13, s[24:27], s45 offen offset:{32*g}")
    if is3:
        k.e(f"s_branch {k.name}_fin")
        k.lab(f"{k.name}_cs")
        k.e("s_cmp_ge_u32 s2, 252")
        k.e(f"s_cbranch_scc1 {k.name}_end")
        k.e("s_load_dwordx2 s[28:29], s[0:1], 72")
        k.e("s_load_dwordx2 s[4:5], s[0:1], 32")
        k.e("s_load_dwordx2 s[6:7], s[0:1], 40")
        k.e("v_and_b32 v1, 63, v0")
        k.e("v_lshrrev_b32 v2, 6, v0")
        k.e("s_sub_u32 s30, s2, 224")
        k.e("v_readfirstlane_b32 s3, v2")
        k.e("s_cmp_ge_u32 s30, 14")
        k.e("s_cselect_b32 s31, 14, 0")
        k.e("s_cselect_b32 s33, 1, 0")
        k.e("s_sub_u32 s32, s30, s31")
        k.e("v_lshrrev_b32 v4, 4, v1")
        k.e("v_and_b32 v5, 15, v1")
        k.e("s_movk_i32 s44, 3584")
        k.e("v_mul_u32_u24 v4, s44, v4")
        k.e("v_lshl_add_u32 v4, v5, 4, v4")
        k.e("s_waitcnt lgkmcnt(0)")
        k.e("s_cmp_eq_u32 s33, 1")
        k.e("s_cselect_b32 s4, s6, s4")
        k.e("s_cselect_b32 s5, s7, s5")
        k.srd(8, 4, 0, D * F * 2)
        k.e(f"s_mul_i32 s34, s3, {112*3584}")
        k.e("s_lshl_b32 s35, s32, 8")
        k.e("s_add_u32 s34, s34, s35")
        for n in range(28):
            k.e(f"buffer_load_dwordx4 {vr(64+4*n,4)}, v4, s[8:11], s34 offen")
            k.e(f"s_add_u32 s34, s34, {4*3584}")
        for r in range(8):
            k.e(f"v_mov_b32 v{16+r}, 0")
        for n in range(28):
            k.e(f"s_waitcnt vmcnt({27-n})")
            for d in range(4):
                x = 64 + 4 * n + d
                k.e(f"v_lshlrev_b32 v{24+2*d}, 16, v{x}")
                k.e(f"v_and_b32 v{25+2*d}, 0xffff0000, v{x}")
            for r in range(8):
                k.e(f"v_add_f32 v{16+r}, v{16+r}, v{24+r}")
        k.e("v_lshrrev_b32 v6, 4, v1")
        k.e("s_lshl_b32 s35, s3, 2")
        k.e("v_add_u32 v6, s35, v6")
        k.e("v_lshlrev_b32 v6, 9, v6")
        k.e("v_lshl_add_u32 v6, v5, 5, v6")
        k.e("ds_write_b128 v6, v[16:19]")
        k.e("ds_write_b128 v6, v[20:23] offset:16")
        k.e("s_waitcnt lgkmcnt(0)")
        k.e("s_barrier")
        k.e("s_cmp_ge_u32 s3, 2")
        k.e(f"s_cbranch_scc1 {k.name}_end")
        k.e("v_lshlrev_b32 v6, 2, v0")
        for j in range(16):
            k.e(f"ds_read_b32 v{32+j}, v6 offset:{512*j}")
        k.srd(12, 28, WS_CS, 2 * F * 4)
        k.e(f"s_mul_i32 s35, s33, {F*4}")
        k.e("s_lshl_b32 s36, s32, 9")
        k.e("s_add_u32 s35, s35, s36")
        k.e("s_waitcnt lgkmcnt(0)")
        for st in (8, 4, 2, 1):
            for j in range(st):
                k.e(f"v_add_f32 v{32+j}, v{32+j}, v{32+j+st}")
        k.e("buffer_store_dword v32, v6, s[12:15], s35 offen")
        k.e(f"s_branch {k.name}_end")
        k.lab(f"{k.name}_fin")
    finish(k)
    return k, 252 if is3 else 224, 4 * DEP * 2048 if 4 * DEP * 2048 > 48 * 1024 else 48 * 1024 + 0, 256


def gen_k4():
    k = K("k4_ffn_kernel")
    SLOT = 49152
    R = 3
    NSL = 7
    ACC = 192
    FR = [64, 128]
    PK = int(os.environ.get("PK", "1"))
    k.e("s_cmp_ge_u32 s2, 224")
    k.e(f"s_cbranch_scc1 {k.name}_end")
    k.e("s_load_dwordx2 s[28:29], s[0:1], 72")
    k.e("s_load_dwordx2 s[4:5], s[0:1], 32")
    k.e("s_load_dwordx2 s[6:7], s[0:1], 40")
    PF4 = int(os.environ.get("PF4", "1"))
    if PF4:
        k.e("s_load_dwordx2 s[50:51], s[0:1], 48")
    k.e("v_and_b32 v1, 63, v0")
    k.e("v_lshrrev_b32 v2, 6, v0")
    k.e("s_and_b32 s30, s2, 7")
    k.e("s_lshr_b32 s31, s2, 3")
    k.e("v_readfirstlane_b32 s3, v2")
    k.e("s_and_b32 s32, s30, 3")
    k.e("s_lshl_b32 s32, s32, 2")
    k.e("s_and_b32 s33, s31, 3")
    k.e("s_add_u32 s32, s32, s33")
    k.e("s_lshr_b32 s30, s30, 2")
    k.e("s_mul_i32 s30, s30, 7")
    k.e("s_lshr_b32 s31, s31, 2")
    if ROT & 2:
        k.e("s_lshl_b32 s47, s33, 1")
        k.e("s_add_u32 s47, s47, s31")
        k.e("s_cmp_ge_u32 s47, 7")
        k.e("s_cselect_b32 s48, 7, 0")
        k.e("s_sub_u32 s47, s47, s48")
    k.e("s_add_u32 s31, s31, s30")
    k.e("s_mov_b32 s30, s32")
    k.e("s_lshr_b32 s32, s3, 2")
    k.e("s_and_b32 s33, s3, 3")
    k.stamp()
    k.e("v_lshlrev_b32 v3, 4, v1")
    k.e("v_and_b32 v12, 31, v1")
    k.e("v_lshrrev_b32 v8, 5, v1")
    k.e("v_lshrrev_b32 v4, 4, v1")
    k.e("v_and_b32 v5, 15, v1")
    k.e("v_lshlrev_b32 v6, 2, v4")
    k.e("v_xor_b32 v5, v5, v6")
    k.e("s_movk_i32 s44, 3584")
    k.e("v_mul_u32_u24 v4, s44, v4")
    k.e("v_lshl_add_u32 v4, v5, 4, v4")
    k.e("s_lshl_b32 s36, s3, 10")
    k.e("s_lshl_b32 s37, s30, 2")
    k.e("s_add_u32 s37, s37, s32")
    k.e("s_mul_i32 s37, s37, 28")
    k.e("s_add_u32 s37, s37, s33")
    k.e("s_lshl_b32 s37, s37, 10")
    k.e(f"s_mul_i32 s38, s3, {4*3584}")
    k.e("s_lshl_b32 s39, s31, 8")
    k.e("s_add_u32 s38, s38, s39")
    if ROT & 2:
        k.e("s_lshl_b32 s48, s47, 12")
        k.e("s_add_u32 s37, s37, s48")
        k.e(f"s_mul_i32 s48, s47, {64*3584}")
        k.e("s_add_u32 s38, s38, s48")
    k.e("s_waitcnt lgkmcnt(0)")
    if EXP & 16:
        k.stamp()
    k.srd(8, 28, WS_H, 64 * 28 * 1024)
    k.srd(12, 4, 0, D * F * 2)
    k.srd(16, 6, 0, D * F * 2)

    def issue(sl):
        sb = (sl % R) * SLOT
        k.e(f"s_add_u32 m0, s36, {sb}")
        k.e(f"s_add_u32 s39, s37, {56*1024}")
        k.e("buffer_load_dwordx4 v3, s[8:11], s37 offen lds")
        k.e(f"s_add_u32 m0, s36, {sb+8192}")
        k.e("s_add_u32 s37, s37, 4096")
        k.e("buffer_load_dwordx4 v3, s[8:11], s39 offen lds")
        for u in range(2):
            k.e(f"s_add_u32 m0, s36, {sb+16384*(1+u)}")
            k.e(f"s_add_u32 s39, s38, {32*3584}")
            k.e(f"buffer_load_dwordx4 v4, s[{12+4*u}:{15+4*u}], s38 offen lds")
            k.e(f"s_add_u32 m0, s36, {sb+16384*(1+u)+8192}")
            k.e("s_nop 0")
            k.e(f"buffer_load_dwordx4 v4, s[{12+4*u}:{15+4*u}], s39 offen lds")
        k.e(f"s_add_u32 s38, s38, {64*3584}")
        if ROT & 2:
            k.e("s_add_u32 s47, s47, 1")
            k.e("s_cmp_eq_u32 s47, 7")
            k.e(f"s_cselect_b32 s48, {7*4096}, 0")
            k.e(f"s_cselect_b32 s49, {7*64*3584}, 0")
            k.e("s_sub_u32 s37, s37, s48")
            k.e("s_sub_u32 s38, s38, s49")

    issue(0)
    issue(1)
    if EXP & 16:
        k.stamp()
    k.srd(20, 28, WS_ST, S * 14 * 8)
    k.srd(24, 28, WS_ACT, 64 * 112 * 1024)
    k.srd(52, 28, WS_CS, 2 * F * 4)
    k.e("s_lshl_b32 s34, s30, 7")
    k.e("s_lshl_b32 s35, s32, 6")
    k.e("s_add_u32 s34, s34, s35")
    k.e("v_add_u32 v5, s34, v1")
    k.e("v_lshlrev_b32 v5, 3, v5")
    for q in range(14):
        k.e(f"s_mov_b32 s40, {q*16384}")
        k.e(f"buffer_load_dwordx2 v[{36+2*q}:{37+2*q}], v5, s[20:23], s40 offen")
    k.e("s_lshl_b32 s40, s32, 13")
    k.e("v_add_u32 v20, s40, v3")
    k.e(f"v_add_u32 v21, {SLOT}, v20")
    k.e(f"v_add_u32 v22, {2*SLOT}, v20")
    k.e("v_bfe_u32 v9, v1, 2, 2")
    k.e("v_lshl_add_u32 v10, v8, 2, v9")
    k.e("v_lshlrev_b32 v10, 8, v10")
    k.e("v_xor_b32 v11, s33, v9")
    k.e("v_lshl_add_u32 v10, v11, 6, v10")
    k.e("v_bfe_u32 v11, v1, 4, 1")
    k.e("v_lshl_add_u32 v10, v11, 5, v10")
    k.e("v_and_b32 v11, 3, v1")
    k.e("v_lshl_add_u32 v24, v11, 3, v10")
    k.e(f"v_add_u32 v25, {SLOT}, v24")
    k.e(f"v_add_u32 v26, {2*SLOT}, v24")
    k.e("v_lshlrev_b32 v6, 4, v8")
    k.e("s_lshl_b32 s41, s31, 9")
    k.e("s_lshl_b32 s42, s33, 7")
    k.e("s_add_u32 s41, s41, s42")
    k.e(f"s_add_u32 s42, s41, {F*4}")

    if EXP & 16:
        k.stamp()
    k1 = -2.0 * math.sqrt(2.0 / math.pi) * math.log2(math.e)
    k3 = k1 * 0.044715

    def csreg(u, g):
        idx = 4 * u + g
        return 36 + 4 * idx if idx < 7 else 16

    def stats():
        for st in (7,):
            for q in range(7):
                k.e(f"v_add_f32 v{36+2*q}, v{36+2*q}, v{50+2*q}")
                k.e(f"v_add_f32 v{37+2*q}, v{37+2*q}, v{51+2*q}")
        for (a, b) in ((0, 4), (1, 5), (2, 6), (0, 2), (1, 3), (0, 1)):
            k.e(f"v_add_f32 v{36+2*a}, v{36+2*a}, v{36+2*b}")
            k.e(f"v_add_f32 v{37+2*a}, v{37+2*a}, v{36+2*b+1}")
        k.e(f"s_mov_b32 s40, {hex(f2u(1.0/448))}")
        k.e("v_mul_f32 v13, s40, v36")
        k.e("v_mul_f32 v14, s40, v37")
        k.e("v_fma_f32 v14, -v13, v13, v14")
        k.e("v_max_f32 v14, 0, v14")
        k.e(f"v_add_f32 v34, {hex(f2u(1e-5))}, v14")
        k.e("v_rsq_f32 v15, v34")
        k.e("v_sub_f32 v28, 0, v13")
        k.e("v_mul_f32 v7, v15, v15")
        k.e("v_mul_f32 v7, v7, v15")
        k.e(f"v_mul_f32 v30, {hex(f2u(k1))}, v15")
        k.e(f"v_mul_f32 v32, {hex(f2u(k3))}, v7")
        for r in (28, 30, 32, 34):
            k.e(f"v_mov_b32 v{r+1}, v{r}")
        k.e("s_nop 1")
        for r in (34, 28, 30, 32):
            k.e(f"v_permlane32_swap_b32 v{r}, v{r+1}")

    def csloads():
        for u in range(2):
            for g in range(4):
                k.e(f"buffer_load_dwordx4 {vr(csreg(u,g),4)}, v6, s[52:55], s{41+u} offen offset:{32*g}")

    def reads(sl):
        fr = FR[sl & 1]
        s_ = sl % R
        for ks in range(4):
            for i in range(2):
                k.e(f"ds_read_b128 {vr(fr+16*ks+4*i,4)}, v{20+s_} offset:{4096*i+1024*ks}")
            for u in range(2):
                for h in range(2):
                    r0 = fr + 16 * ks + 8 + 4 * u + 2 * h
                    k.e(f"ds_read_b64_tr_b16 v[{r0}:{r0+1}], v{24+s_} offset:{16384*(1+u)+4096*ks+2048*h}")

    def mfmas(sl):
        fr = FR[sl & 1]
        for ks in range(4):
            for i in range(2):
                for u in range(2):
                    acc = ACC + 16 * (2 * i + u)
                    k.mfma(acc, fr + 16 * ks + 8 + 4 * u, fr + 16 * ks + 4 * i, "0" if (sl == 0 and ks == 0) else acc)

    wv = {0: 20, 1: 20, 2: 6, 3: 14, 4: 14, 5: 6, 6: 0}
    PFS = int(os.environ.get("PFS", "5"))
    if PF4:
        for s_ in range(PFS + 1, NSL):
            if s_ <= PFS + 2:
                wv[s_] += 1

    def pfload():
        k.e("v_min_u32 v7, 447, v0")
        k.e("v_lshlrev_b32 v7, 7, v7")
        k.e("s_lshr_b32 s43, s2, 3")
        k.e("s_mul_i32 s43, s43, 57344")
        k.srd(56, 50, 0, F * D * 2)
        k.e("buffer_load_dword v23, v7, s[56:59], s43 offen")
    for sl in range(NSL):
        k.e(f"s_waitcnt vmcnt({wv[sl]}) lgkmcnt(0)")
        k.e("s_barrier")
        k.stamp()
        P = pieces(cap(k, issue, sl + R - 1)) if sl + R - 1 < NSL else []
        Rd = cap(k, reads, sl)
        M = cap(k, mfmas, sl - 1) if sl >= 1 else []
        X = []
        if sl == 2:
            X = cap(k, stats) + cap(k, csloads)
        if sl == PFS and PF4:
            X = X + cap(k, pfload)
        M = [l for l in M if l is not None]
        if not M:
            for p in P:
                k.L += p
            k.L += Rd
        else:
            xi = 0
            for n in range(16):
                k.L.append(M[n])
                if n < len(P):
                    k.L += P[n]
                if n < 12:
                    k.L += Rd[2 * n:2 * n + 2]
                if n >= 6 and X:
                    cnt = (len(X) + 9) // 10
                    k.L += X[xi:xi + cnt]
                    xi += cnt
            k.L += X[xi:]
    k.e("s_waitcnt lgkmcnt(0)")
    mfmas(NSL - 1)
    k.stamp()
    k.e("s_lshl_b32 s40, s30, 2")
    k.e("s_lshl_b32 s41, s32, 1")
    k.e("s_add_u32 s40, s40, s41")
    k.e("s_mul_i32 s40, s40, 112")
    k.e("s_lshl_b32 s41, s31, 2")
    k.e("s_add_u32 s41, s41, s33")
    k.e("s_lshl_b32 s41, s41, 1")
    k.e("s_add_u32 s40, s40, s41")
    k.e("s_lshl_b32 s40, s40, 10")
    k.nop(16)
    for i in range(2):
        ag = ACC + 16 * (2 * i)
        au = ACC + 16 * (2 * i + 1)
        T = 96
        sel = f"op_sel:[0,{i},{i}] op_sel_hi:[1,{i},{i}]"

        def pk(op, d, a, b, c=None, bsel=None, csel=None):
            if c is None:
                os_ = f"op_sel:[0,{bsel or 0}] op_sel_hi:[1,{1 if bsel is None else bsel}]"
                k.e(f"v_pk_{op}_f32 v[{d}:{d+1}], v[{a}:{a+1}], v[{b}:{b+1}] {os_}")
            else:
                os_ = (f"op_sel:[0,{bsel or 0},{csel or 0}] op_sel_hi:[1,{1 if bsel is None else bsel},"
                       f"{1 if csel is None else csel}]")
                k.e(f"v_pk_{op}_f32 v[{d}:{d+1}], v[{a}:{a+1}], v[{b}:{b+1}], v[{c}:{c+1}] {os_}")
        if PK:
            for r in range(0, 16, 2):
                cg = csreg(0, r >> 2) + (r & 3)
                cu = csreg(1, r >> 2) + (r & 3)
                pk("fma", ag + r, cg, 28, ag + r, bsel=i)
                pk("fma", au + r, cu, 28, au + r, bsel=i)
            for r in range(0, 16, 2):
                pk("mul", T + r, ag + r, ag + r)
            for r in range(0, 16, 2):
                pk("fma", T + r, T + r, 32, 30, bsel=i, csel=i)
            for r in range(0, 16, 2):
                pk("mul", T + r, T + r, ag + r)
            for r in range(16):
                k.e(f"v_exp_f32 v{T+r}, v{T+r}")
            for r in range(0, 16, 2):
                pk("mul", au + r, au + r, ag + r)
            for r in range(0, 16, 2):
                pk("fma", T + r, T + r, 34, 34, bsel=i, csel=i)
            for r in range(16):
                k.e(f"v_rcp_f32 v{T+r}, v{T+r}")
            k.e("s_nop 0")
            for r in range(0, 16, 2):
                pk("mul", au + r, au + r, T + r)
        else:
            for r in range(16):
                cg = csreg(0, r >> 2) + (r & 3)
                cu = csreg(1, r >> 2) + (r & 3)
                k.e(f"v_fma_f32 v{ag+r}, v{28+i}, v{cg}, v{ag+r}")
                k.e(f"v_fma_f32 v{au+r}, v{28+i}, v{cu}, v{au+r}")
            for r in range(16):
                k.e(f"v_mul_f32 v{T+r}, v{ag+r}, v{ag+r}")
            for r in range(16):
                k.e(f"v_fma_f32 v{T+r}, v{T+r}, v{32+i}, v{30+i}")
            for r in range(16):
                k.e(f"v_mul_f32 v{T+r}, v{T+r}, v{ag+r}")
            for r in range(16):
                k.e(f"v_exp_f32 v{T+r}, v{T+r}")
            for r in range(16):
                k.e(f"v_mul_f32 v{au+r}, v{au+r}, v{ag+r}")
            for r in range(16):
                k.e(f"v_fma_f32 v{T+r}, v{T+r}, v{34+i}, v{34+i}")
            for r in range(16):
                k.e(f"v_rcp_f32 v{T+r}, v{T+r}")
            k.e("s_nop 0")
            for r in range(16):
                k.e(f"v_mul_f32 v{au+r}, v{au+r}, v{T+r}")
        for p in range(8):
            k.e(f"v_cvt_pk_bf16_f32 v{T+16+p}, v{au+2*p}, v{au+2*p+1}")
        if i == 1:
            k.e(f"s_add_u32 s40, s40, {112*1024}")
        for g in range(2):
            k.e(f"buffer_store_dwordx4 {vr(T+16+4*g,4)}, v3, s[24:27], s40 offen offset:{1024*g}")
    finish(k)
    return k, 224, R * SLOT, 512


def gen_k1():
    k = K("k1_qkv_kernel")
    SLOT = 28672
    R = 5
    NSL = 7
    ACC = 192
    FR = [64, 128]
    SCR = R * SLOT
    k.e("s_cmp_ge_u32 s2, 256")
    k.e(f"s_cbranch_scc1 {k.name}_end")
    k.e("s_load_dwordx2 s[28:29], s[0:1], 72")
    k.e("s_load_dwordx2 s[4:5], s[0:1], 0")
    k.e("s_load_dwordx2 s[6:7], s[0:1], 8")
    k.e("v_and_b32 v1, 63, v0")
    k.e("v_lshrrev_b32 v2, 6, v0")
    k.e("s_and_b32 s30, s2, 7")
    k.e("s_lshr_b32 s31, s2, 3")
    k.e("v_readfirstlane_b32 s3, v2")
    k.e("s_and_b32 s32, s30, 3")
    k.e("s_lshl_b32 s32, s32, 2")
    k.e("s_and_b32 s33, s31, 3")
    k.e("s_add_u32 s32, s32, s33")
    k.e("s_lshr_b32 s30, s30, 2")
    k.e("s_lshl_b32 s30, s30, 3")
    k.e("s_lshr_b32 s31, s31, 2")
    if ROT & 4:
        k.e("s_lshl_b32 s47, s33, 1")
        k.e("s_add_u32 s47, s47, s31")
        k.e("s_cmp_ge_u32 s47, 7")
        k.e("s_cselect_b32 s48, 7, 0")
        k.e("s_sub_u32 s47, s47, s48")
    k.e("s_add_u32 s31, s31, s30")
    k.e("s_mov_b32 s30, s32")
    k.stamp()
    k.e("v_lshlrev_b32 v3, 4, v1")
    k.e("v_and_b32 v12, 31, v1")
    k.e("v_lshrrev_b32 v8, 5, v1")
    k.e("v_lshrrev_b32 v4, 3, v1")
    k.e("v_and_b32 v5, 7, v1")
    k.e("v_lshrrev_b32 v6, 4, v1")
    k.e("s_and_b32 s33, s3, 1")
    k.e("s_lshl_b32 s33, s33, 2")
    k.e("v_or_b32 v6, s33, v6")
    k.e("v_xor_b32 v5, v5, v6")
    k.e("s_movk_i32 s44, 896")
    k.e("v_mul_u32_u24 v4, s44, v4")
    k.e("v_lshl_add_u32 v4, v5, 4, v4")
    k.e("v_lshrrev_b32 v5, 2, v1")
    k.e("s_movk_i32 s45, 2688")
    k.e("v_mul_u32_u24 v5, s45, v5")
    k.e("v_and_b32 v6, 3, v1")
    k.e("v_lshl_add_u32 v5, v6, 4, v5")
    k.e("s_waitcnt lgkmcnt(0)")
    k.srd(8, 4, 0, S * D * 2)
    k.srd(12, 6, 0, D * 3 * D * 2)
    k.e("s_lshl_b32 s33, s31, 17")
    k.e("s_add_u32 s16, s28, s33")
    k.e("s_addc_u32 s17, s29, 0")
    k.e(f"s_mov_b32 s18, {hex(0x400000 + 0x20000)}")
    k.e("s_mov_b32 s19, 0x00020000")
    k.e("s_lshl_b32 s36, s3, 10")
    k.e("s_lshl_b32 s37, s30, 7")
    k.e("s_lshl_b32 s38, s3, 3")
    k.e("s_add_u32 s37, s37, s38")
    k.e("s_mul_i32 s37, s37, 896")
    k.e(f"s_mul_i32 s38, s3, {16*2688}")
    k.e("s_mul_i32 s39, s31, 56")
    k.e("s_add_u32 s38, s38, s39")
    if ROT & 4:
        k.e("s_lshl_b32 s48, s47, 7")
        k.e("s_add_u32 s37, s37, s48")
        k.e(f"s_mul_i32 s48, s47, {64*2688}")
        k.e("s_add_u32 s38, s38, s48")

    def issue(sl):
        sb = (sl % R) * SLOT
        for i in range(4):
            k.e(f"s_add_u32 m0, s36, {sb+4096*i}")
            k.e(f"s_add_u32 s39, s37, {32*896*i}")
            k.e("buffer_load_dwordx4 v4, s[8:11], s39 offen lds")
        for sg in range(3):
            k.e(f"s_add_u32 m0, s36, {sb+16384+4096*sg}")
            k.e(f"s_add_u32 s39, s38, {896*sg}")
            k.e("buffer_load_dwordx4 v5, s[12:15], s39 offen lds")
        k.e("s_add_u32 s37, s37, 128")
        k.e(f"s_add_u32 s38, s38, {64*2688}")
        if ROT & 4:
            k.e("s_add_u32 s47, s47, 1")
            k.e("s_cmp_eq_u32 s47, 7")
            k.e(f"s_cselect_b32 s48, {7*128}, 0")
            k.e(f"s_cselect_b32 s49, {7*64*2688}, 0")
            k.e("s_sub_u32 s37, s37, s48")
            k.e("s_sub_u32 s38, s38, s49")

    for sl in range(R - 1):
        issue(sl)
    k.e("v_bfe_u32 v9, v1, 1, 3")
    k.e("v_xor_b32 v9, v9, v8")
    k.e("v_lshlrev_b32 v9, 4, v9")
    k.e("v_lshl_add_u32 v9, v12, 7, v9")
    k.e("s_lshl_b32 s40, s3, 12")
    k.e("v_add_u32 v9, s40, v9")
    for grp in range(3):
        for ks in range(4):
            r = 16 + 4 * grp + ks
            k.e(f"v_xor_b32 v{r}, {ks<<5}, v9")
            if grp:
                k.e(f"v_add_u32 v{r}, {2*grp*SLOT}, v{r}")
    k.e("v_lshlrev_b32 v10, 9, v8")
    k.e("v_bfe_u32 v11, v1, 2, 2")
    k.e("v_lshl_add_u32 v10, v11, 6, v10")
    k.e("v_bfe_u32 v11, v1, 4, 1")
    k.e("v_lshl_add_u32 v10, v11, 5, v10")
    k.e("v_and_b32 v11, 3, v1")
    k.e("v_lshl_add_u32 v28, v11, 3, v10")
    k.e(f"v_add_u32 v29, {2*SLOT}, v28")
    k.e(f"v_add_u32 v30, {4*SLOT}, v28")
    for r in range(32, 52):
        k.e(f"v_mov_b32 v{r}, 0")
    k.e("s_mov_b32 s46, 0x3f803f80")

    def reads(sl):
        fr = FR[sl & 1]
        s_ = sl % R
        grp, o = s_ >> 1, (s_ & 1) * SLOT
        for ks in range(4):
            k.e(f"ds_read_b128 {vr(fr+16*ks,4)}, v{16+4*grp+ks} offset:{o}")
            for sg in range(3):
                for h in range(2):
                    r0 = fr + 16 * ks + 4 + 4 * sg + 2 * h
                    k.e(f"ds_read_b64_tr_b16 v[{r0}:{r0+1}], v{28+grp} offset:{o+16384+4096*sg+1024*ks+256*h}")

    def mfmas(sl):
        fr = FR[sl & 1]
        for ks in range(4):
            a = fr + 16 * ks
            c0 = (sl == 0 and ks == 0)
            k.mfma(ACC, a + 4, a, "0" if c0 else ACC)
            for j in range(2):
                k.e(f"v_dot2_f32_bf16 v{32+j}, v{a+j}, s46, v{32+j}")
                k.e(f"v_dot2_f32_bf16 v{36+j}, v{a+j}, v{a+j}, v{36+j}")
            k.mfma(ACC + 16, a + 8, a, "0" if c0 else ACC + 16)
            for j in range(2, 4):
                k.e(f"v_dot2_f32_bf16 v{32+j}, v{a+j}, s46, v{32+j}")
                k.e(f"v_dot2_f32_bf16 v{36+j}, v{a+j}, v{a+j}, v{36+j}")
            k.mfma(ACC + 32, a, a + 12, "0" if c0 else ACC + 32)
        done = k.newlab("csd")
        for w in range(4):
            nx = k.newlab("cs")
            if w < 3:
                k.e(f"s_cmp_eq_u32 s3, {w}")
                k.e(f"s_cbranch_scc0 {nx}")
            for j in range(12):
                k.e(f"v_dot2_f32_bf16 v{40+j}, v{fr+16*w+4+j}, s46, v{40+j}")
            if w < 3:
                k.e(f"s_branch {done}")
                k.lab(nx)
        k.lab(done)

    issued = R - 1
    for sl in range(NSL):
        pend = issued - 1 - sl
        k.e(f"s_waitcnt vmcnt({7*pend}) lgkmcnt(0)")
        k.e("s_barrier")
        k.stamp()
        if issued < NSL:
            issue(issued)
            issued += 1
        reads(sl)
        if sl >= 1:
            mfmas(sl - 1)
    k.e("s_waitcnt lgkmcnt(0)")
    mfmas(NSL - 1)
    k.stamp()
    k.e("s_nop 1")
    k.e("v_add_f32 v32, v32, v33")
    k.e("v_add_f32 v34, v34, v35")
    k.e("v_add_f32 v36, v36, v37")
    k.e("v_add_f32 v38, v38, v39")
    k.e("v_add_f32 v32, v32, v34")
    k.e("v_add_f32 v36, v36, v38")
    for t in range(3):
        k.e(f"v_add_f32 v{40+4*t}, v{40+4*t}, v{41+4*t}")
        k.e(f"v_add_f32 v{42+4*t}, v{42+4*t}, v{43+4*t}")
        k.e(f"v_add_f32 v{40+4*t}, v{40+4*t}, v{42+4*t}")
    k.e("v_mov_b32 v33, v32")
    k.e("v_mov_b32 v37, v36")
    k.e("s_lshl_b32 s40, s3, 3")
    k.e(f"s_add_u32 s40, s40, {SCR}")
    k.e("v_lshlrev_b32 v13, 5, v12")
    k.e("v_lshl_add_u32 v13, v8, 2, v13")
    k.e("v_add_u32 v13, s40, v13")
    for t in range(3):
        k.e(f"ds_write_b32 v13, v{40+4*t} offset:{1024*t}")
    k.e("v_permlane32_swap_b32 v32, v33")
    k.e("v_permlane32_swap_b32 v36, v37")
    k.e("s_nop 1")
    k.e("v_add_f32 v32, v32, v33")
    k.e("v_add_f32 v36, v36, v37")
    k.e(f"s_mov_b32 s40, {hex(f2u(1.0/448))}")
    k.e("v_mul_f32 v32, s40, v32")
    k.e("v_mul_f32 v36, s40, v36")
    k.e("v_fma_f32 v36, -v32, v32, v36")
    k.e("v_max_f32 v36, 0, v36")
    k.e(f"v_add_f32 v36, {hex(f2u(1e-5))}, v36")
    k.e("v_rsq_f32 v33, v36")
    k.e("s_nop 0")
    k.e("v_mov_b32 v34, v32")
    k.e("v_mov_b32 v35, v33")
    k.e("s_lshl_b32 s40, s3, 8")
    k.e(f"s_add_u32 s40, s40, {SCR+4096}")
    k.e("v_lshl_add_u32 v14, v12, 3, s40")
    k.e("ds_write_b64 v14, v[34:35]")
    k.e("s_waitcnt lgkmcnt(0)")
    k.e("s_barrier")
    k.e("v_lshlrev_b32 v13, 5, v1")
    k.e(f"v_add_u32 v13, {SCR}, v13")
    k.e("ds_read_b128 v[40:43], v13")
    k.e("ds_read_b128 v[44:47], v13 offset:16")
    k.e("v_lshlrev_b32 v13, 5, v12")
    k.e(f"v_add_u32 v13, {SCR+2048}, v13")
    k.e("ds_read_b128 v[48:51], v13")
    k.e("ds_read_b128 v[52:55], v13 offset:16")
    k.e("v_lshlrev_b32 v14, 5, v8")
    k.e("v_add_u32 v14, s40, v14")
    for g in range(4):
        k.e(f"ds_read_b128 {vr(128+8*g,4)}, v14 offset:{64*g}")
        k.e(f"ds_read_b128 {vr(132+8*g,4)}, v14 offset:{64*g+16}")
    k.e("s_waitcnt lgkmcnt(8)")
    for b in (40, 48):
        k.e(f"v_add_f32 v{b}, v{b}, v{b+1}")
        k.e(f"v_add_f32 v{b+2}, v{b+2}, v{b+3}")
        k.e(f"v_add_f32 v{b+4}, v{b+4}, v{b+5}")
        k.e(f"v_add_f32 v{b+6}, v{b+6}, v{b+7}")
        k.e(f"v_add_f32 v{b}, v{b}, v{b+2}")
        k.e(f"v_add_f32 v{b+4}, v{b+4}, v{b+6}")
        k.e(f"v_add_f32 v{b}, v{b}, v{b+4}")
    k.e("s_lshl_b32 s41, s3, 8")
    k.e(f"s_add_u32 s41, s41, {SCR+3072}")
    k.e("v_lshlrev_b32 v13, 2, v1")
    k.e("v_add_u32 v13, s41, v13")
    k.e("ds_write_b32 v13, v40")
    k.e("v_lshlrev_b32 v13, 4, v8")
    k.e("v_add_u32 v13, s41, v13")
    k.e("s_waitcnt lgkmcnt(0)")
    for u in range(2):
        for g in range(4):
            k.e(f"ds_read_b128 {vr(64+16*u+4*g,4)}, v13 offset:{128*u+32*g}")
    k.e("s_lshl_b32 s34, s30, 7")
    k.e("s_lshl_b32 s35, s3, 5")
    k.e("s_add_u32 s34, s34, s35")
    k.e("s_lshl_b32 s36, s34, 6")
    k.e("v_lshlrev_b32 v23, 4, v1")
    k.e("v_add_u32 v23, s36, v23")
    k.e(f"v_mul_f32 v34, {hex(f2u(DH ** -0.5 * math.log2(math.e)))}, v33")
    k.e("s_waitcnt lgkmcnt(0)")
    for c in range(2):
        a = ACC + 16 * c
        rs = "v34" if c == 0 else "v33"
        for r in range(16):
            k.e(f"v_fma_f32 v{a+r}, -v32, v{64+16*c+r}, v{a+r}")
            k.e(f"v_mul_f32 v{a+r}, {rs}, v{a+r}")
        k.e("v_cmp_gt_u32 vcc, 32, v1")
        k.e("s_nop 1")
        for r in range(12, 16):
            pad = "1.0" if (c == 1 and r == 12) else "0"
            k.e(f"v_cndmask_b32 v{a+r}, {pad}, v{a+r}, vcc")
        for g in range(4):
            k.e(f"v_cvt_pk_bf16_f32 v{96+8*c+2*g}, v{a+4*g}, v{a+4*g+1}")
            k.e(f"v_cvt_pk_bf16_f32 v{97+8*c+2*g}, v{a+4*g+2}, v{a+4*g+3}")
        k.e(f"s_mov_b32 s37, {hex(c*0x200000)}")
        for g in range(2):
            k.e(f"buffer_store_dwordx4 v[{96+8*c+4*g}:{99+8*c+4*g}], v23, s[16:19], s37 offen offset:{1024*g}")
    a = ACC + 32
    for r in range(16):
        g, j = r >> 2, r & 3
        mreg = 128 + 8 * g + 2 * j
        k.e(f"v_fma_f32 v{a+r}, -v{mreg}, v48, v{a+r}")
        k.e(f"v_mul_f32 v{a+r}, v{mreg+1}, v{a+r}")
    k.e("v_cmp_gt_u32 vcc, 28, v12")
    k.e("v_cmp_eq_u32 s[38:39], 28, v12")
    k.e("v_cndmask_b32 v27, 0, 1.0, s[38:39]")
    k.e("s_nop 1")
    for r in range(16):
        k.e(f"v_cndmask_b32 v{a+r}, v27, v{a+r}, vcc")
    for r in range(8):
        k.e(f"v_cvt_pk_bf16_f32 v{112+r}, v{a+2*r}, v{a+2*r+1}")
    k.e("s_mov_b32 s37, 0x400000")
    for g_ in range(2):
        k.e(f"buffer_store_dwordx4 v[{112+4*g_}:{115+4*g_}], v23, s[16:19], s37 offen offset:{1024*g_}")
    finish(k)
    return k, 256, SCR + 4096 + 1024, 256


def gen_k2():
    G.OFRAG = True
    k = G.gen_k2()
    return k, 256, 4 * 32768 + 64, 512


def build():
    ks = [gen_k1(), gen_k2(), gen_sk(3), gen_k4(), gen_sk(5)]
    out = [HEADER.rstrip("\n")]
    for k, g, lds, blk in ks:
        out.append(f"; @launch kernel={k.name} grid=({g},1,1) block=({blk},1,1) lds={lds}")
    out.append('.amdgcn_target "amdgcn-amd-amdhsa--gfx950"')
    out.append(".text")
    for k, g, lds, blk in ks:
        out.append(f".globl {k.name}")
        out.append(".p2align 8")
        out.append(f".type {k.name},@function")
        out.append(f"{k.name}:")
        idx = [kk[0] for kk in ks].index(k)
        L = [l for l in k.L if l is not None]
        if SC1 & (1 << idx):
            end = len(L)
            for n, l in enumerate(L):
                if l.strip().startswith(k.name + "_end"):
                    end = n
            nst = 0
            L2 = []
            for n, l in enumerate(L):
                if "buffer_store" in l and "s[56:59]" not in l and "s[92:95]" not in l:
                    l = l + " " + SCF
                    nst += 1
                L2.append(l)
            L = L2
            print("sc1 stores in", k.name, nst)
        out += L
    out.append('.section .rodata,"a"')
    for k, g, lds, blk in ks:
        out.append(".p2align 6")
        out.append(f".amdhsa_kernel {k.name}")
        out.append("  .amdhsa_next_free_vgpr 256")
        out.append("  .amdhsa_next_free_sgpr 102")
        out.append("  .amdhsa_accum_offset 256")
        out.append("  .amdhsa_group_segment_fixed_size 0")
        out.append("  .amdhsa_kernarg_size 80")
        out.append("  .amdhsa_user_sgpr_count 2")
        out.append("  .amdhsa_user_sgpr_kernarg_segment_ptr 1")
        out.append("  .amdhsa_system_sgpr_workgroup_id_x 1")
        out.append(".end_amdhsa_kernel")
    return "\n".join(out) + "\n"


if __name__ == "__main__":
    txt = build()
    open(OUT or ("cdna_kernels/" + NAME + ".s"), "w").write(txt)
    print("written", len(txt))
```

```python
import math, sys, os
import gen as G
from gen import K, vr, f2u, finish, NAME, S, D, H, DH, F, HEADER

STAMP = G.STAMP
OUT = os.environ.get("OUT", "")
WS_Q, WS_K, WS_V = 0x0, 0x200000, 0x400000
WS_O = 0x600000
WS_H = 0x800000
WS_ACT = 0xA00000
WS_ST = 0x1200000
ROT = int(os.environ.get("ROT", "7"))
SC1 = int(os.environ.get("SC1", "11"))
EXP = int(os.environ.get("EXP", "0"))
SCF = os.environ.get("SCF", "sc1")


WS_CS = 0x1240000


def cap(k, fn, *a):
    n0 = len(k.L)
    fn(*a)
    out = k.L[n0:]
    del k.L[n0:]
    return out


def pieces(lines):
    out, cur = [], []
    for l in lines:
        cur.append(l)
        if "buffer_load" in l:
            out.append(cur)
            cur = []
    if cur:
        out[-1] += cur
    return out


def dma(k, voff, srd, soff, m0expr):
    k.e(f"buffer_load_dwordx4 {voff}, s[{srd}:{srd+3}], {soff} offen lds")


def gen_sk(which):
    is3 = which == 3
    name = "k3_wo_kernel" if is3 else "k5_down_kernel"
    k = K(name)
    NKS = 32 if is3 else 112
    NST = NKS // 4
    DEP = 8
    ACC = 64
    VAF = 128
    VBF = 192
    k.e("s_cmp_ge_u32 s2, 224")
    k.e(f"s_cbranch_scc1 {k.name}_" + ("cs" if is3 else "end"))
    k.e("s_load_dwordx2 s[28:29], s[0:1], 72")
    k.e(f"s_load_dwordx2 s[6:7], s[0:1], {16 if is3 else 48}")
    if is3:
        k.e("s_load_dwordx2 s[20:21], s[0:1], 0")
    else:
        k.e("s_load_dwordx2 s[20:21], s[0:1], 56")
    k.e("v_and_b32 v1, 63, v0")
    k.e("v_lshrrev_b32 v2, 6, v0")
    k.e("s_and_b32 s30, s2, 7")
    k.e("s_lshr_b32 s31, s2, 3")
    k.e("v_readfirstlane_b32 s3, v2")
    k.e("s_and_b32 s32, s31, 3")
    k.e("s_lshl_b32 s30, s30, 2")
    k.e("s_add_u32 s30, s30, s32")
    k.e("s_lshr_b32 s31, s31, 2")
    k.stamp()
    k.e("v_lshlrev_b32 v3, 4, v1")
    k.e("v_lshrrev_b32 v4, 3, v1")
    k.e("v_and_b32 v5, 7, v1")
    k.e("v_bfe_u32 v6, v1, 4, 1")
    k.e("v_lshlrev_b32 v6, 2, v6")
    k.e("v_xor_b32 v5, v5, v6")
    k.e("s_movk_i32 s44, 896")
    if is3:
        k.e("s_and_b32 s33, s3, 1")
        k.e("s_lshl_b32 s33, s33, 4")
        k.e("v_add_u32 v6, s33, v4")
        k.e("v_add_u32 v7, 8, v6")
        k.e("v_min_u32 v7, 27, v7")
        k.e("v_mul_u32_u24 v6, s44, v6")
        k.e("v_mul_u32_u24 v7, s44, v7")
        k.e("v_lshl_add_u32 v6, v5, 4, v6")
        k.e("v_lshl_add_u32 v7, v5, 4, v7")
    else:
        k.e("v_mul_u32_u24 v6, s44, v4")
        k.e("v_lshl_add_u32 v6, v5, 4, v6")
        k.e(f"v_add_u32 v7, {8*896}, v6")
    k.e("s_waitcnt lgkmcnt(0)")
    k.srd(8, 28, WS_O if is3 else WS_ACT, 64 * NKS * 1024)
    k.srd(12, 6, 0, (D if is3 else F) * D * 2)
    k.e(f"s_mul_i32 s34, s30, {2*NKS*1024}")
    k.e("s_lshl_b32 s35, s3, 10")
    k.e("s_add_u32 s34, s34, s35")
    k.e("s_lshl_b32 s36, s31, 7")
    if is3:
        k.e("s_lshr_b32 s37, s3, 1")
        k.e(f"s_mul_i32 s37, s37, {28*896}")
        bstep = 2 * 28 * 896
    else:
        k.e(f"s_mul_i32 s37, s3, {16*896}")
        bstep = 64 * 896
    k.e("s_add_u32 s36, s36, s37")
    k.e(f"s_mul_i32 s38, s3, {DEP*2048}")
    if ROT & 1:
        ca, cb = (1, 2) if is3 else (4, 7)
        k.e(f"s_mul_i32 s47, s31, {ca}")
        k.e(f"s_mul_i32 s48, s32, {cb}")
        k.e("s_add_u32 s47, s47, s48")
        k.e(f"s_cmp_ge_u32 s47, {NST}")
        k.e(f"s_cselect_b32 s48, {NST}, 0")
        k.e("s_sub_u32 s47, s47, s48")
        k.e("s_lshl_b32 s48, s47, 12")
        k.e("s_add_u32 s34, s34, s48")
        k.e(f"s_mul_i32 s48, s47, {bstep}")
        k.e("s_add_u32 s36, s36, s48")

    def issue(t):
        sl = t % DEP
        a = VAF + 8 * sl
        k.e(f"buffer_load_dwordx4 {vr(a,4)}, v3, s[8:11], s34 offen")
        k.e(f"s_add_u32 s39, s34, {NKS*1024}")
        k.e(f"buffer_load_dwordx4 {vr(a+4,4)}, v3, s[8:11], s39 offen")
        k.e(f"s_add_u32 m0, s38, {sl*2048}")
        k.e("s_add_u32 s34, s34, 4096")
        k.e("buffer_load_dwordx4 v6, s[12:15], s36 offen lds")
        k.e(f"s_add_u32 m0, s38, {sl*2048+1024}")
        k.e("s_nop 0")
        k.e("buffer_load_dwordx4 v7, s[12:15], s36 offen lds")
        k.e(f"s_add_u32 s36, s36, {bstep}")
        if ROT & 1:
            k.e("s_add_u32 s47, s47, 1")
            k.e(f"s_cmp_eq_u32 s47, {NST}")
            k.e(f"s_cselect_b32 s48, {NST*4096}, 0")
            k.e(f"s_cselect_b32 s49, {NST*bstep}, 0")
            k.e("s_sub_u32 s34, s34, s48")
            k.e("s_sub_u32 s36, s36, s49")

    for t in range(min(DEP, NST)):
        issue(t)
    k.e("v_lshrrev_b32 v8, 5, v1")
    k.e("v_bfe_u32 v9, v1, 2, 2")
    k.e("v_lshl_add_u32 v10, v8, 2, v9")
    k.e("v_lshlrev_b32 v10, 7, v10")
    k.e("v_lshrrev_b32 v11, 1, v9")
    k.e("v_lshl_add_u32 v10, v11, 6, v10")
    k.e("v_bfe_u32 v11, v1, 4, 1")
    k.e("v_lshl_add_u32 v10, v11, 5, v10")
    k.e("v_and_b32 v11, 3, v1")
    k.e("v_lshl_add_u32 v10, v11, 3, v10")
    k.e("v_add_u32 v10, s38, v10")
    k.e("v_xor_b32 v11, 64, v10")

    def rdB(t):
        sl = t % DEP
        b = VBF + 8 * (t & 1)
        for ct in range(2):
            for i in range(2):
                k.e(f"ds_read_b64_tr_b16 v[{b+4*ct+2*i}:{b+4*ct+2*i+1}], v{10+ct} offset:{sl*2048+1024*i}")

    def outstanding_after(t):
        return None

    issued = min(DEP, NST)
    k.e(f"s_waitcnt vmcnt({4*(issued-1)})")
    k.stamp()
    rdB(0)
    for t in range(NST):
        if t + 1 < NST:
            k.e(f"s_waitcnt vmcnt({4*(issued-(t+2))})")
            rdB(t + 1)
            k.e("s_waitcnt lgkmcnt(4)")
        else:
            k.e("s_waitcnt lgkmcnt(0)")
        a = VAF + 8 * (t % DEP)
        b = VBF + 8 * (t & 1)
        for rt in range(2):
            for ct in range(2):
                acc = ACC + 16 * (2 * rt + ct)
                k.mfma(acc, b + 4 * ct, a + 4 * rt, "0" if t == 0 else acc)
        if issued < NST:
            issue(issued)
            issued += 1
    k.stamp()
    k.e("s_lshr_b32 s40, s3, 1")
    k.e("s_and_b32 s41, s3, 1")
    k.e("s_lshl_b32 s42, s30, 1")
    k.e("s_add_u32 s42, s42, s40")
    k.e("s_lshl_b32 s43, s31, 1")
    k.e("s_add_u32 s43, s43, s41")
    k.e("v_and_b32 v12, 31, v1")
    if is3:
        k.srd(16, 20, 0, S * D * 2)
        k.srd(24, 28, WS_H, 64 * 28 * 1024)
        k.e("s_lshl_b32 s45, s42, 5")
        k.e("v_add_u32 v13, s45, v12")
        k.e("v_mul_u32_u24 v13, s44, v13")
        k.e("v_lshl_add_u32 v13, v8, 3, v13")
        k.e("s_lshl_b32 s45, s43, 6")
        for g in range(4):
            k.e(f"buffer_load_dwordx2 v[{208+2*g}:{209+2*g}], v13, s[16:19], s45 offen offset:{16*g}")
    else:
        k.srd(16, 28, WS_H, 64 * 28 * 1024)
        k.srd(24, 20, 0, S * D * 2)
        k.e("s_mul_i32 s45, s42, 28")
        k.e("s_lshl_b32 s46, s43, 1")
        k.e("s_add_u32 s45, s45, s46")
        k.e("s_lshl_b32 s45, s45, 10")
        for g in range(2):
            k.e(f"buffer_load_dwordx4 v[{208+4*g}:{211+4*g}], v3, s[16:19], s45 offen offset:{1024*g}")
    k.e("s_barrier")
    k.nop(8)
    for o in range(4):
        skip = k.newlab("own")
        k.e(f"s_cmp_eq_u32 s3, {o}")
        k.e(f"s_cbranch_scc1 {skip}")
        k.e(f"s_sub_u32 s45, s3, {o+1}")
        k.e("s_and_b32 s45, s45, 3")
        k.e("s_lshl_b32 s45, s45, 12")
        k.e(f"s_add_u32 s45, s45, {o*3*4096}")
        k.e("v_add_u32 v14, s45, v3")
        for q in range(4):
            k.e(f"ds_write_b128 v14, {vr(ACC+16*o+4*q,4)} offset:{1024*q}")
        k.lab(skip)
    for o in range(4):
        skip = k.newlab("mv")
        k.e(f"s_cmp_lg_u32 s3, {o}")
        k.e(f"s_cbranch_scc1 {skip}")
        for r in range(16):
            k.e(f"v_mov_b32 v{128+r}, v{ACC+16*o+r}")
        k.lab(skip)
    k.e("s_waitcnt lgkmcnt(0)")
    k.e("s_barrier")
    k.e(f"s_mul_i32 s45, s3, {3*4096}")
    k.e("v_add_u32 v14, s45, v3")
    for sl in range(3):
        for q in range(4):
            k.e(f"ds_read_b128 {vr(144+16*sl+4*q,4)}, v14 offset:{4096*sl+1024*q}")
    for sl in range(3):
        k.e(f"s_waitcnt lgkmcnt({8-4*sl})")
        for r in range(16):
            k.e(f"v_add_f32 v{128+r}, v{128+r}, v{144+16*sl+r}")
    k.e("s_waitcnt vmcnt(0)")
    k.stamp()
    for p in range(8):
        src = 208 + p
        k.e(f"v_lshlrev_b32 v14, 16, v{src}")
        k.e(f"v_and_b32 v15, 0xffff0000, v{src}")
        k.e(f"v_add_f32 v14, v14, v{128+2*p}")
        k.e(f"v_add_f32 v15, v15, v{128+2*p+1}")
        k.e(f"v_cvt_pk_bf16_f32 v{src}, v14, v15")
    if is3:
        k.e("s_mul_i32 s45, s42, 28")
        k.e("s_lshl_b32 s46, s43, 1")
        k.e("s_add_u32 s45, s45, s46")
        k.e("s_lshl_b32 s45, s45, 10")
        for g in range(2):
            k.e(f"buffer_store_dwordx4 v[{208+4*g}:{211+4*g}], v3, s[24:27], s45 offen offset:{1024*g}")
        k.e("v_mov_b32 v16, 0")
        k.e("v_mov_b32 v17, 0")
        k.e("s_mov_b32 s46, 0x3f803f80")
        for p in range(8):
            k.e(f"v_dot2_f32_bf16 v16, v{208+p}, s46, v16")
            k.e(f"v_dot2_f32_bf16 v17, v{208+p}, v{208+p}, v17")
        k.e("s_nop 1")
        k.e("v_mov_b32 v18, v16")
        k.e("v_mov_b32 v19, v17")
        k.e("s_nop 1")
        k.e("v_permlane32_swap_b32 v16, v18")
        k.e("v_permlane32_swap_b32 v17, v19")
        k.e("s_nop 1")
        k.e("v_add_f32 v16, v16, v18")
        k.e("v_add_f32 v17, v17, v19")
        k.srd(16, 28, WS_ST, S * 14 * 8)
        k.e("s_lshl_b32 s45, s42, 5")
        k.e("v_add_u32 v13, s45, v12")
        k.e("v_lshlrev_b32 v13, 3, v13")
        k.e("s_lshl_b32 s45, s43, 14")
        k.e("v_cmp_gt_u32 vcc, 32, v1")
        k.e("s_and_saveexec_b64 s[46:47], vcc")
        k.e("buffer_store_dwordx2 v[16:17], v13, s[16:19], s45 offen")
    else:
        k.e("s_nop 1")
        for g in (0, 2):
            k.e(f"v_permlane32_swap_b32 v{208+2*g}, v{208+2*g+2}")
            k.e(f"v_permlane32_swap_b32 v{208+2*g+1}, v{208+2*g+3}")
        k.e("s_lshl_b32 s45, s42, 5")
        k.e("v_add_u32 v13, s45, v12")
        k.e("v_mul_u32_u24 v13, s44, v13")
        k.e("v_lshl_add_u32 v13, v8, 4, v13")
        k.e("s_lshl_b32 s45, s43, 6")
        k.e("s_nop 0")
        for g in range(2):
            k.e(f"buffer_store_dwordx4 v[{208+4*g}:{211+4*g}], v13, s[24:27], s45 offen offset:{32*g}")
    if is3:
        k.e(f"s_branch {k.name}_fin")
        k.lab(f"{k.name}_cs")
        k.e("s_cmp_ge_u32 s2, 252")
        k.e(f"s_cbranch_scc1 {k.name}_end")
        k.e("s_load_dwordx2 s[28:29], s[0:1], 72")
        k.e("s_load_dwordx2 s[4:5], s[0:1], 32")
        k.e("s_load_dwordx2 s[6:7], s[0:1], 40")
        k.e("v_and_b32 v1, 63, v0")
        k.e("v_lshrrev_b32 v2, 6, v0")
        k.e("s_sub_u32 s30, s2, 224")
        k.e("v_readfirstlane_b32 s3, v2")
        k.e("s_cmp_ge_u32 s30, 14")
        k.e("s_cselect_b32 s31, 14, 0")
        k.e("s_cselect_b32 s33, 1, 0")
        k.e("s_sub_u32 s32, s30, s31")
        k.e("v_lshrrev_b32 v4, 4, v1")
        k.e("v_and_b32 v5, 15, v1")
        k.e("s_movk_i32 s44, 3584")
        k.e("v_mul_u32_u24 v4, s44, v4")
        k.e("v_lshl_add_u32 v4, v5, 4, v4")
        k.e("s_waitcnt lgkmcnt(0)")
        k.e("s_cmp_eq_u32 s33, 1")
        k.e("s_cselect_b32 s4, s6, s4")
        k.e("s_cselect_b32 s5, s7, s5")
        k.srd(8, 4, 0, D * F * 2)
        k.e(f"s_mul_i32 s34, s3, {112*3584}")
        k.e("s_lshl_b32 s35, s32, 8")
        k.e("s_add_u32 s34, s34, s35")
        for n in range(28):
            k.e(f"buffer_load_dwordx4 {vr(64+4*n,4)}, v4, s[8:11], s34 offen")
            k.e(f"s_add_u32 s34, s34, {4*3584}")
        for r in range(8):
            k.e(f"v_mov_b32 v{16+r}, 0")
        for n in range(28):
            k.e(f"s_waitcnt vmcnt({27-n})")
            for d in range(4):
                x = 64 + 4 * n + d
                k.e(f"v_lshlrev_b32 v{24+2*d}, 16, v{x}")
                k.e(f"v_and_b32 v{25+2*d}, 0xffff0000, v{x}")
            for r in range(8):
                k.e(f"v_add_f32 v{16+r}, v{16+r}, v{24+r}")
        k.e("v_lshrrev_b32 v6, 4, v1")
        k.e("s_lshl_b32 s35, s3, 2")
        k.e("v_add_u32 v6, s35, v6")
        k.e("v_lshlrev_b32 v6, 9, v6")
        k.e("v_lshl_add_u32 v6, v5, 5, v6")
        k.e("ds_write_b128 v6, v[16:19]")
        k.e("ds_write_b128 v6, v[20:23] offset:16")
        k.e("s_waitcnt lgkmcnt(0)")
        k.e("s_barrier")
        k.e("s_cmp_ge_u32 s3, 2")
        k.e(f"s_cbranch_scc1 {k.name}_end")
        k.e("v_lshlrev_b32 v6, 2, v0")
        for j in range(16):
            k.e(f"ds_read_b32 v{32+j}, v6 offset:{512*j}")
        k.srd(12, 28, WS_CS, 2 * F * 4)
        k.e(f"s_mul_i32 s35, s33, {F*4}")
        k.e("s_lshl_b32 s36, s32, 9")
        k.e("s_add_u32 s35, s35, s36")
        k.e("s_waitcnt lgkmcnt(0)")
        for st in (8, 4, 2, 1):
            for j in range(st):
                k.e(f"v_add_f32 v{32+j}, v{32+j}, v{32+j+st}")
        k.e("buffer_store_dword v32, v6, s[12:15], s35 offen")
        k.e(f"s_branch {k.name}_end")
        k.lab(f"{k.name}_fin")
    finish(k)
    return k, 252 if is3 else 224, 4 * DEP * 2048 if 4 * DEP * 2048 > 48 * 1024 else 48 * 1024 + 0, 256


def gen_k4():
    k = K("k4_ffn_kernel")
    SLOT = 49152
    R = 3
    NSL = 7
    ACC = 192
    FR = [64, 128]
    PK = int(os.environ.get("PK", "1"))
    k.e("s_cmp_ge_u32 s2, 224")
    k.e(f"s_cbranch_scc1 {k.name}_end")
    k.e("s_load_dwordx2 s[28:29], s[0:1], 72")
    k.e("s_load_dwordx2 s[4:5], s[0:1], 32")
    k.e("s_load_dwordx2 s[6:7], s[0:1], 40")
    PF4 = int(os.environ.get("PF4", "1"))
    if PF4:
        k.e("s_load_dwordx2 s[50:51], s[0:1], 48")
    k.e("v_and_b32 v1, 63, v0")
    k.e("v_lshrrev_b32 v2, 6, v0")
    k.e("s_and_b32 s30, s2, 7")
    k.e("s_lshr_b32 s31, s2, 3")
    k.e("v_readfirstlane_b32 s3, v2")
    k.e("s_and_b32 s32, s30, 3")
    k.e("s_lshl_b32 s32, s32, 2")
    k.e("s_and_b32 s33, s31, 3")
    k.e("s_add_u32 s32, s32, s33")
    k.e("s_lshr_b32 s30, s30, 2")
    k.e("s_mul_i32 s30, s30, 7")
    k.e("s_lshr_b32 s31, s31, 2")
    if ROT & 2:
        k.e("s_lshl_b32 s47, s33, 1")
        k.e("s_add_u32 s47, s47, s31")
        k.e("s_cmp_ge_u32 s47, 7")
        k.e("s_cselect_b32 s48, 7, 0")
        k.e("s_sub_u32 s47, s47, s48")
    k.e("s_add_u32 s31, s31, s30")
    k.e("s_mov_b32 s30, s32")
    k.e("s_lshr_b32 s32, s3, 2")
    k.e("s_and_b32 s33, s3, 3")
    k.stamp()
    k.e("v_lshlrev_b32 v3, 4, v1")
    k.e("v_and_b32 v12, 31, v1")
    k.e("v_lshrrev_b32 v8, 5, v1")
    k.e("v_lshrrev_b32 v4, 4, v1")
    k.e("v_and_b32 v5, 15, v1")
    k.e("v_lshlrev_b32 v6, 2, v4")
    k.e("v_xor_b32 v5, v5, v6")
    k.e("s_movk_i32 s44, 3584")
    k.e("v_mul_u32_u24 v4, s44, v4")
    k.e("v_lshl_add_u32 v4, v5, 4, v4")
    k.e("s_lshl_b32 s36, s3, 10")
    k.e("s_lshl_b32 s37, s30, 2")
    k.e("s_add_u32 s37, s37, s32")
    k.e("s_mul_i32 s37, s37, 28")
    k.e("s_add_u32 s37, s37, s33")
    k.e("s_lshl_b32 s37, s37, 10")
    k.e(f"s_mul_i32 s38, s3, {4*3584}")
    k.e("s_lshl_b32 s39, s31, 8")
    k.e("s_add_u32 s38, s38, s39")
    if ROT & 2:
        k.e("s_lshl_b32 s48, s47, 12")
        k.e("s_add_u32 s37, s37, s48")
        k.e(f"s_mul_i32 s48, s47, {64*3584}")
        k.e("s_add_u32 s38, s38, s48")
    k.e("s_waitcnt lgkmcnt(0)")
    if EXP & 16:
        k.stamp()
    k.srd(8, 28, WS_H, 64 * 28 * 1024)
    k.srd(12, 4, 0, D * F * 2)
    k.srd(16, 6, 0, D * F * 2)

    def issue(sl):
        sb = (sl % R) * SLOT
        k.e(f"s_add_u32 m0, s36, {sb}")
        k.e(f"s_add_u32 s39, s37, {56*1024}")
        k.e("buffer_load_dwordx4 v3, s[8:11], s37 offen lds")
        k.e(f"s_add_u32 m0, s36, {sb+8192}")
        k.e("s_add_u32 s37, s37, 4096")
        k.e("buffer_load_dwordx4 v3, s[8:11], s39 offen lds")
        for u in range(2):
            k.e(f"s_add_u32 m0, s36, {sb+16384*(1+u)}")
            k.e(f"s_add_u32 s39, s38, {32*3584}")
            k.e(f"buffer_load_dwordx4 v4, s[{12+4*u}:{15+4*u}], s38 offen lds")
            k.e(f"s_add_u32 m0, s36, {sb+16384*(1+u)+8192}")
            k.e("s_nop 0")
            k.e(f"buffer_load_dwordx4 v4, s[{12+4*u}:{15+4*u}], s39 offen lds")
        k.e(f"s_add_u32 s38, s38, {64*3584}")
        if ROT & 2:
            k.e("s_add_u32 s47, s47, 1")
            k.e("s_cmp_eq_u32 s47, 7")
            k.e(f"s_cselect_b32 s48, {7*4096}, 0")
            k.e(f"s_cselect_b32 s49, {7*64*3584}, 0")
            k.e("s_sub_u32 s37, s37, s48")
            k.e("s_sub_u32 s38, s38, s49")

    issue(0)
    issue(1)
    if EXP & 16:
        k.stamp()
    k.srd(20, 28, WS_ST, S * 14 * 8)
    k.srd(24, 28, WS_ACT, 64 * 112 * 1024)
    k.srd(52, 28, WS_CS, 2 * F * 4)
    k.e("s_lshl_b32 s34, s30, 7")
    k.e("s_lshl_b32 s35, s32, 6")
    k.e("s_add_u32 s34, s34, s35")
    k.e("v_add_u32 v5, s34, v1")
    k.e("v_lshlrev_b32 v5, 3, v5")
    for q in range(14):
        k.e(f"s_mov_b32 s40, {q*16384}")
        k.e(f"buffer_load_dwordx2 v[{36+2*q}:{37+2*q}], v5, s[20:23], s40 offen")
    k.e("s_lshl_b32 s40, s32, 13")
    k.e("v_add_u32 v20, s40, v3")
    k.e(f"v_add_u32 v21, {SLOT}, v20")
    k.e(f"v_add_u32 v22, {2*SLOT}, v20")
    k.e("v_bfe_u32 v9, v1, 2, 2")
    k.e("v_lshl_add_u32 v10, v8, 2, v9")
    k.e("v_lshlrev_b32 v10, 8, v10")
    k.e("v_xor_b32 v11, s33, v9")
    k.e("v_lshl_add_u32 v10, v11, 6, v10")
    k.e("v_bfe_u32 v11, v1, 4, 1")
    k.e("v_lshl_add_u32 v10, v11, 5, v10")
    k.e("v_and_b32 v11, 3, v1")
    k.e("v_lshl_add_u32 v24, v11, 3, v10")
    k.e(f"v_add_u32 v25, {SLOT}, v24")
    k.e(f"v_add_u32 v26, {2*SLOT}, v24")
    k.e("v_lshlrev_b32 v6, 4, v8")
    k.e("s_lshl_b32 s41, s31, 9")
    k.e("s_lshl_b32 s42, s33, 7")
    k.e("s_add_u32 s41, s41, s42")
    k.e(f"s_add_u32 s42, s41, {F*4}")

    if EXP & 16:
        k.stamp()
    k1 = -2.0 * math.sqrt(2.0 / math.pi) * math.log2(math.e)
    k3 = k1 * 0.044715

    def csreg(u, g):
        idx = 4 * u + g
        return 36 + 4 * idx if idx < 7 else 16

    def stats():
        for st in (7,):
            for q in range(7):
                k.e(f"v_add_f32 v{36+2*q}, v{36+2*q}, v{50+2*q}")
                k.e(f"v_add_f32 v{37+2*q}, v{37+2*q}, v{51+2*q}")
        for (a, b) in ((0, 4), (1, 5), (2, 6), (0, 2), (1, 3), (0, 1)):
            k.e(f"v_add_f32 v{36+2*a}, v{36+2*a}, v{36+2*b}")
            k.e(f"v_add_f32 v{37+2*a}, v{37+2*a}, v{36+2*b+1}")
        k.e(f"s_mov_b32 s40, {hex(f2u(1.0/448))}")
        k.e("v_mul_f32 v13, s40, v36")
        k.e("v_mul_f32 v14, s40, v37")
        k.e("v_fma_f32 v14, -v13, v13, v14")
        k.e("v_max_f32 v14, 0, v14")
        k.e(f"v_add_f32 v34, {hex(f2u(1e-5))}, v14")
        k.e("v_rsq_f32 v15, v34")
        k.e("v_sub_f32 v28, 0, v13")
        k.e("v_mul_f32 v7, v15, v15")
        k.e("v_mul_f32 v7, v7, v15")
        k.e(f"v_mul_f32 v30, {hex(f2u(k1))}, v15")
        k.e(f"v_mul_f32 v32, {hex(f2u(k3))}, v7")
        for r in (28, 30, 32, 34):
            k.e(f"v_mov_b32 v{r+1}, v{r}")
        k.e("s_nop 1")
        for r in (34, 28, 30, 32):
            k.e(f"v_permlane32_swap_b32 v{r}, v{r+1}")

    def csloads():
        for u in range(2):
            for g in range(4):
                k.e(f"buffer_load_dwordx4 {vr(csreg(u,g),4)}, v6, s[52:55], s{41+u} offen offset:{32*g}")

    def reads(sl):
        fr = FR[sl & 1]
        s_ = sl % R
        for ks in range(4):
            for i in range(2):
                k.e(f"ds_read_b128 {vr(fr+16*ks+4*i,4)}, v{20+s_} offset:{4096*i+1024*ks}")
            for u in range(2):
                for h in range(2):
                    r0 = fr + 16 * ks + 8 + 4 * u + 2 * h
                    k.e(f"ds_read_b64_tr_b16 v[{r0}:{r0+1}], v{24+s_} offset:{16384*(1+u)+4096*ks+2048*h}")

    def mfmas(sl):
        fr = FR[sl & 1]
        for ks in range(4):
            for i in range(2):
                for u in range(2):
                    acc = ACC + 16 * (2 * i + u)
                    k.mfma(acc, fr + 16 * ks + 8 + 4 * u, fr + 16 * ks + 4 * i, "0" if (sl == 0 and ks == 0) else acc)

    wv = {0: 20, 1: 20, 2: 6, 3: 14, 4: 14, 5: 6, 6: 0}
    PFS = int(os.environ.get("PFS", "5"))
    if PF4:
        for s_ in range(PFS + 1, NSL):
            if s_ <= PFS + 2:
                wv[s_] += 1

    def pfload():
        k.e("v_min_u32 v7, 447, v0")
        k.e("v_lshlrev_b32 v7, 7, v7")
        k.e("s_lshr_b32 s43, s2, 3")
        k.e("s_mul_i32 s43, s43, 57344")
        k.srd(56, 50, 0, F * D * 2)
        k.e("buffer_load_dword v23, v7, s[56:59], s43 offen")
    for sl in range(NSL):
        k.e(f"s_waitcnt vmcnt({wv[sl]}) lgkmcnt(0)")
        k.e("s_barrier")
        k.stamp()
        P = pieces(cap(k, issue, sl + R - 1)) if sl + R - 1 < NSL else []
        Rd = cap(k, reads, sl)
        M = cap(k, mfmas, sl - 1) if sl >= 1 else []
        X = []
        if sl == 2:
            X = cap(k, stats) + cap(k, csloads)
        if sl == PFS and PF4:
            X = X + cap(k, pfload)
        M = [l for l in M if l is not None]
        if not M:
            for p in P:
                k.L += p
            k.L += Rd
        else:
            xi = 0
            for n in range(16):
                k.L.append(M[n])
                if n < len(P):
                    k.L += P[n]
                if n < 12:
                    k.L += Rd[2 * n:2 * n + 2]
                if n >= 6 and X:
                    cnt = (len(X) + 9) // 10
                    k.L += X[xi:xi + cnt]
                    xi += cnt
            k.L += X[xi:]
    k.e("s_waitcnt lgkmcnt(0)")
    mfmas(NSL - 1)
    k.stamp()
    k.e("s_lshl_b32 s40, s30, 2")
    k.e("s_lshl_b32 s41, s32, 1")
    k.e("s_add_u32 s40, s40, s41")
    k.e("s_mul_i32 s40, s40, 112")
    k.e("s_lshl_b32 s41, s31, 2")
    k.e("s_add_u32 s41, s41, s33")
    k.e("s_lshl_b32 s41, s41, 1")
    k.e("s_add_u32 s40, s40, s41")
    k.e("s_lshl_b32 s40, s40, 10")
    k.nop(16)
    for i in range(2):
        ag = ACC + 16 * (2 * i)
        au = ACC + 16 * (2 * i + 1)
        T = 96
        sel = f"op_sel:[0,{i},{i}] op_sel_hi:[1,{i},{i}]"

        def pk(op, d, a, b, c=None, bsel=None, csel=None):
            if c is None:
                os_ = f"op_sel:[0,{bsel or 0}] op_sel_hi:[1,{1 if bsel is None else bsel}]"
                k.e(f"v_pk_{op}_f32 v[{d}:{d+1}], v[{a}:{a+1}], v[{b}:{b+1}] {os_}")
            else:
                os_ = (f"op_sel:[0,{bsel or 0},{csel or 0}] op_sel_hi:[1,{1 if bsel is None else bsel},"
                       f"{1 if csel is None else csel}]")
                k.e(f"v_pk_{op}_f32 v[{d}:{d+1}], v[{a}:{a+1}], v[{b}:{b+1}], v[{c}:{c+1}] {os_}")
        if PK:
            for r in range(0, 16, 2):
                cg = csreg(0, r >> 2) + (r & 3)
                cu = csreg(1, r >> 2) + (r & 3)
                pk("fma", ag + r, cg, 28, ag + r, bsel=i)
                pk("fma", au + r, cu, 28, au + r, bsel=i)
            for r in range(0, 16, 2):
                pk("mul", T + r, ag + r, ag + r)
            for r in range(0, 16, 2):
                pk("fma", T + r, T + r, 32, 30, bsel=i, csel=i)
            for r in range(0, 16, 2):
                pk("mul", T + r, T + r, ag + r)
            for r in range(16):
                k.e(f"v_exp_f32 v{T+r}, v{T+r}")
            for r in range(0, 16, 2):
                pk("mul", au + r, au + r, ag + r)
            for r in range(0, 16, 2):
                pk("fma", T + r, T + r, 34, 34, bsel=i, csel=i)
            for r in range(16):
                k.e(f"v_rcp_f32 v{T+r}, v{T+r}")
            k.e("s_nop 0")
            for r in range(0, 16, 2):
                pk("mul", au + r, au + r, T + r)
        else:
            for r in range(16):
                cg = csreg(0, r >> 2) + (r & 3)
                cu = csreg(1, r >> 2) + (r & 3)
                k.e(f"v_fma_f32 v{ag+r}, v{28+i}, v{cg}, v{ag+r}")
                k.e(f"v_fma_f32 v{au+r}, v{28+i}, v{cu}, v{au+r}")
            for r in range(16):
                k.e(f"v_mul_f32 v{T+r}, v{ag+r}, v{ag+r}")
            for r in range(16):
                k.e(f"v_fma_f32 v{T+r}, v{T+r}, v{32+i}, v{30+i}")
            for r in range(16):
                k.e(f"v_mul_f32 v{T+r}, v{T+r}, v{ag+r}")
            for r in range(16):
                k.e(f"v_exp_f32 v{T+r}, v{T+r}")
            for r in range(16):
                k.e(f"v_mul_f32 v{au+r}, v{au+r}, v{ag+r}")
            for r in range(16):
                k.e(f"v_fma_f32 v{T+r}, v{T+r}, v{34+i}, v{34+i}")
            for r in range(16):
                k.e(f"v_rcp_f32 v{T+r}, v{T+r}")
            k.e("s_nop 0")
            for r in range(16):
                k.e(f"v_mul_f32 v{au+r}, v{au+r}, v{T+r}")
        for p in range(8):
            k.e(f"v_cvt_pk_bf16_f32 v{T+16+p}, v{au+2*p}, v{au+2*p+1}")
        if i == 1:
            k.e(f"s_add_u32 s40, s40, {112*1024}")
        for g in range(2):
            k.e(f"buffer_store_dwordx4 {vr(T+16+4*g,4)}, v3, s[24:27], s40 offen offset:{1024*g}")
    finish(k)
    return k, 224, R * SLOT, 512


def gen_k1():
    k = K("k1_qkv_kernel")
    K1G = int(os.environ.get("K1G", "3"))
    SLOT = 32256 if K1G == 3 else 28672
    R = 5
    NSL = 7
    ACC = 192
    FR = [64, 128]
    SCR = 0 if K1G == 3 else R * SLOT
    k.e("s_cmp_ge_u32 s2, 256")
    k.e(f"s_cbranch_scc1 {k.name}_end")
    k.e("s_load_dwordx2 s[28:29], s[0:1], 72")
    k.e("s_load_dwordx2 s[4:5], s[0:1], 0")
    k.e("s_load_dwordx2 s[6:7], s[0:1], 8")
    k.e("v_and_b32 v1, 63, v0")
    k.e("v_lshrrev_b32 v2, 6, v0")
    k.e("s_and_b32 s30, s2, 7")
    k.e("s_lshr_b32 s31, s2, 3")
    k.e("v_readfirstlane_b32 s3, v2")
    k.e("s_and_b32 s32, s30, 3")
    k.e("s_lshl_b32 s32, s32, 2")
    k.e("s_and_b32 s33, s31, 3")
    k.e("s_add_u32 s32, s32, s33")
    k.e("s_lshr_b32 s30, s30, 2")
    k.e("s_lshl_b32 s30, s30, 3")
    k.e("s_lshr_b32 s31, s31, 2")
    if ROT & 4:
        k.e("s_lshl_b32 s47, s33, 1")
        k.e("s_add_u32 s47, s47, s31")
        k.e("s_cmp_ge_u32 s47, 7")
        k.e("s_cselect_b32 s48, 7, 0")
        k.e("s_sub_u32 s47, s47, s48")
    k.e("s_add_u32 s31, s31, s30")
    k.e("s_mov_b32 s30, s32")
    k.stamp()
    k.e("v_lshlrev_b32 v3, 4, v1")
    k.e("v_and_b32 v12, 31, v1")
    k.e("v_lshrrev_b32 v8, 5, v1")
    k.e("v_lshrrev_b32 v4, 3, v1")
    k.e("v_and_b32 v5, 7, v1")
    k.e("v_lshrrev_b32 v6, 4, v1")
    k.e("s_and_b32 s33, s3, 1")
    k.e("s_lshl_b32 s33, s33, 2")
    k.e("v_or_b32 v6, s33, v6")
    k.e("v_xor_b32 v5, v5, v6")
    k.e("s_movk_i32 s44, 896")
    k.e("v_mul_u32_u24 v4, s44, v4")
    k.e("v_lshl_add_u32 v4, v5, 4, v4")
    k.e("v_lshrrev_b32 v5, 2, v1")
    k.e("s_movk_i32 s45, 2688")
    k.e("v_mul_u32_u24 v5, s45, v5")
    k.e("v_and_b32 v6, 3, v1")
    k.e("v_lshl_add_u32 v5, v6, 4, v5")
    if K1G == 3:
        k.e("v_min_u32 v13, 223, v0")
        k.e("v_lshlrev_b32 v13, 4, v13")
        k.e("v_add_u32 v13, 28672, v13")
        for r in range(52, 56):
            k.e(f"v_mov_b32 v{r}, 0x3f803f80")
        k.e(f"v_add_u32 v14, {2*SLOT}, v13")
        k.e(f"v_add_u32 v15, {4*SLOT}, v13")
        k.e("ds_write_b128 v13, v[52:55]")
        k.e(f"ds_write_b128 v13, v[52:55] offset:{SLOT}")
        k.e("ds_write_b128 v14, v[52:55]")
        k.e(f"ds_write_b128 v14, v[52:55] offset:{SLOT}")
        k.e("ds_write_b128 v15, v[52:55]")
    k.e("s_waitcnt lgkmcnt(0)")
    k.srd(8, 4, 0, S * D * 2)
    k.srd(12, 6, 0, D * 3 * D * 2)
    k.e("s_lshl_b32 s33, s31, 17")
    k.e("s_add_u32 s16, s28, s33")
    k.e("s_addc_u32 s17, s29, 0")
    k.e(f"s_mov_b32 s18, {hex(0x400000 + 0x20000)}")
    k.e("s_mov_b32 s19, 0x00020000")
    k.e("s_lshl_b32 s36, s3, 10")
    k.e("s_lshl_b32 s37, s30, 7")
    k.e("s_lshl_b32 s38, s3, 3")
    k.e("s_add_u32 s37, s37, s38")
    k.e("s_mul_i32 s37, s37, 896")
    k.e(f"s_mul_i32 s38, s3, {16*2688}")
    k.e("s_mul_i32 s39, s31, 56")
    k.e("s_add_u32 s38, s38, s39")
    if ROT & 4:
        k.e("s_lshl_b32 s48, s47, 7")
        k.e("s_add_u32 s37, s37, s48")
        k.e(f"s_mul_i32 s48, s47, {64*2688}")
        k.e("s_add_u32 s38, s38, s48")

    def issue(sl):
        sb = (sl % R) * SLOT
        for i in range(4):
            k.e(f"s_add_u32 m0, s36, {sb+4096*i}")
            k.e(f"s_add_u32 s39, s37, {32*896*i}")
            k.e("buffer_load_dwordx4 v4, s[8:11], s39 offen lds")
        for sg in range(3):
            k.e(f"s_add_u32 m0, s36, {sb+16384+4096*sg}")
            k.e(f"s_add_u32 s39, s38, {896*sg}")
            k.e("buffer_load_dwordx4 v5, s[12:15], s39 offen lds")
        k.e("s_add_u32 s37, s37, 128")
        k.e(f"s_add_u32 s38, s38, {64*2688}")
        if ROT & 4:
            k.e("s_add_u32 s47, s47, 1")
            k.e("s_cmp_eq_u32 s47, 7")
            k.e(f"s_cselect_b32 s48, {7*128}, 0")
            k.e(f"s_cselect_b32 s49, {7*64*2688}, 0")
            k.e("s_sub_u32 s37, s37, s48")
            k.e("s_sub_u32 s38, s38, s49")

    K1P = int(os.environ.get("K1P", "4"))
    K1N = int(os.environ.get("K1N", "1"))
    K1R = int(os.environ.get("K1R", "3"))
    K1C = int(os.environ.get("K1C", "12"))
    for sl in range(K1P):
        issue(sl)
    k.stamp()
    k.e("v_bfe_u32 v9, v1, 1, 3")
    k.e("v_xor_b32 v9, v9, v8")
    k.e("v_lshlrev_b32 v9, 4, v9")
    k.e("v_lshl_add_u32 v9, v12, 7, v9")
    k.e("s_lshl_b32 s40, s3, 12")
    k.e("v_add_u32 v9, s40, v9")
    for grp in range(3):
        for ks in range(4):
            r = 16 + 4 * grp + ks
            k.e(f"v_xor_b32 v{r}, {ks<<5}, v9")
            if grp:
                k.e(f"v_add_u32 v{r}, {2*grp*SLOT}, v{r}")
    k.e("v_lshlrev_b32 v10, 9, v8")
    k.e("v_bfe_u32 v11, v1, 2, 2")
    k.e("v_lshl_add_u32 v10, v11, 6, v10")
    k.e("v_bfe_u32 v11, v1, 4, 1")
    k.e("v_lshl_add_u32 v10, v11, 5, v10")
    k.e("v_and_b32 v11, 3, v1")
    k.e("v_lshl_add_u32 v28, v11, 3, v10")
    k.e(f"v_add_u32 v29, {2*SLOT}, v28")
    k.e(f"v_add_u32 v30, {4*SLOT}, v28")
    if K1G == 3:
        k.e("v_and_b32 v10, 19, v1")
        k.e("v_cmp_eq_u32 vcc, 19, v10")
        k.e("v_mov_b32 v11, 12288")
        k.e("v_cndmask_b32 v56, v28, v11, vcc")
        k.e(f"v_add_u32 v57, {2*SLOT}, v56")
        k.e(f"v_add_u32 v58, {4*SLOT}, v56")
    for r in range(32, 52):
        k.e(f"v_mov_b32 v{r}, 0")
    k.e("s_mov_b32 s46, 0x3f803f80")
    for r in range(52, 56):
        k.e(f"v_mov_b32 v{r}, s46")

    def reads(sl):
        fr = FR[sl & 1]
        s_ = sl % R
        grp, o = s_ >> 1, (s_ & 1) * SLOT
        for ks in range(4):
            k.e(f"ds_read_b128 {vr(fr+16*ks,4)}, v{16+4*grp+ks} offset:{o}")
            for sg in range(3):
                for h in range(2):
                    r0 = fr + 16 * ks + 4 + 4 * sg + 2 * h
                    ar = 56 + grp if (K1G == 3 and sg == 0) else 28 + grp
                    k.e(f"ds_read_b64_tr_b16 v[{r0}:{r0+1}], v{ar} offset:{o+16384+4096*sg+1024*ks+256*h}")

    def mfm(sl, stat=True):
        fr = FR[sl & 1]
        for ks in range(4):
            a = fr + 16 * ks
            c0 = (sl == 0 and ks == 0)
            k.mfma(ACC, a + 4, a, "0" if c0 else ACC)
            k.mfma(ACC + 16, a + 8, a, "0" if c0 else ACC + 16)
            k.mfma(ACC + 32, a, a + 12, "0" if c0 else ACC + 32)
            if K1G in (1, 2) and stat:
                stm(sl, ks)

    def stm(sl, ks):
        a = FR[sl & 1] + 16 * ks
        c0 = (sl == 0 and ks == 0)
        if K1G == 1:
            k.e(f"v_mfma_f32_32x32x16_bf16 a[0:15], v[52:55], v[{a}:{a+3}], " + ("0" if c0 else "a[0:15]"))
        k.e(f"v_mfma_f32_32x32x16_bf16 a[16:31], v[{a}:{a+3}], v[{a}:{a+3}], " + ("0" if c0 else "a[16:31]"))

    def dots(sl):
        if K1G == 1:
            return
        fr = FR[sl & 1]
        for ks in range(4):
            a = fr + 16 * ks
            for j in range(4):
                if K1G != 3:
                    k.e(f"v_dot2_f32_bf16 v{32+j}, v{a+j}, s46, v{32+j}")
                if K1G in (0, 3):
                    k.e(f"v_dot2_f32_bf16 v{36+j}, v{a+j}, v{a+j}, v{36+j}")

    def csum(sl):
        fr = FR[sl & 1]
        done = k.newlab("csd")
        for w in range(4):
            nx = k.newlab("cs")
            if w < 3:
                k.e(f"s_cmp_eq_u32 s3, {w}")
                k.e(f"s_cbranch_scc0 {nx}")
            for j in range(12):
                k.e(f"v_dot2_f32_bf16 v{40+j}, v{fr+16*w+4+j}, s46, v{40+j}")
            if w < 3:
                k.e(f"s_branch {done}")
                k.lab(nx)
        k.lab(done)

    issued = K1P
    for sl in range(NSL):
        pend = issued - 1 - sl
        k.e(f"s_waitcnt vmcnt({7*pend}) lgkmcnt(0)")
        k.e("s_barrier")
        k.stamp()
        P = []
        for _ in range(K1N):
            if issued < min(NSL, sl + R):
                P += pieces(cap(k, issue, issued))
                issued += 1
        Rd = cap(k, reads, sl)
        if sl == 0:
            k.L += Rd
            for p in P:
                k.L += p
        else:
            M = [l for l in cap(k, mfm, sl - 1) if l is not None]
            Dd = cap(k, dots, sl - 1)
            assert len(M) == (12, 20, 16, 12)[K1G], M
            ri = di = 0
            for n in range(len(M)):
                k.L.append(M[n])
                per = (len(P) + 11) // 12
                for p in P[n * per:(n + 1) * per]:
                    k.L += p
                c = (3 if n < 4 else 2) if K1R == 0 else K1R
                k.L += Rd[ri:ri + c]
                ri += c
                c = (2 if n < 8 else 4) if K1R == 0 else (0 if n < 4 else 4)
                if K1G == 2:
                    c = 1
                if K1G == 3:
                    c = 0 if n < 4 else 2
                k.L += Dd[di:di + c]
                di += c
                if K1G in (1, 2) and n == K1C:
                    csum(sl - 1)
            assert ri >= 28 and di >= len(Dd)
            if K1G in (0, 3):
                csum(sl - 1)
    k.e("s_waitcnt lgkmcnt(0)")
    Ml = [l for l in cap(k, mfm, NSL - 1, False) if l is not None]
    if K1G == 3:
        k.L += Ml[0::3]
        Ml = [m for i, m in enumerate(Ml) if i % 3]
    dots(NSL - 1)
    if K1G in (1, 2):
        for ks in range(4):
            stm(NSL - 1, ks)
    csum(NSL - 1)
    n_e0 = len(k.L)
    if K1G == 3:
        k.e("v_cmp_le_u32 vcc, 32, v1")
        k.e("v_add_f32 v36, v36, v37")
        k.e("v_add_f32 v38, v38, v39")
        k.e(f"v_cndmask_b32 v32, 0, v{ACC+12}, vcc")
        k.e("v_add_f32 v36, v36, v38")
    if K1G in (1, 2):
        k.nop(32)
        if K1G == 1:
            k.e("v_accvgpr_read_b32 v32, a0")
        else:
            k.e("v_add_f32 v32, v32, v33")
            k.e("v_add_f32 v34, v34, v35")
            k.e("v_add_f32 v32, v32, v34")
        for r in range(16):
            k.e(f"v_accvgpr_read_b32 v{160+r}, a{16+r}")
        k.e("v_cmp_gt_u32 vcc, 32, v1")
        k.e("v_and_b32 v13, 1, v1")
        k.e("s_nop 1")
        if K1G == 1:
            k.e("v_cndmask_b32 v32, 0, v32, vcc")
        k.e("v_cmp_eq_u32 vcc, 1, v13")
        k.e("v_and_b32 v13, 2, v1")
        k.e("v_cmp_eq_u32 s[38:39], 2, v13")
        k.e("v_and_b32 v13, 8, v1")
        k.e("v_cmp_eq_u32 s[40:41], 8, v13")
        for r in range(8):
            k.e(f"v_cndmask_b32 v{160+2*r}, v{160+2*r}, v{161+2*r}, vcc")
        k.e("v_and_b32 v13, 16, v1")
        k.e("v_cmp_eq_u32 vcc, 16, v13")
        for r in range(4):
            k.e(f"v_cndmask_b32 v{160+4*r}, v{160+4*r}, v{162+4*r}, s[38:39]")
        k.e("v_bfe_u32 v13, v1, 2, 1")
        k.e("v_cmp_eq_u32 s[38:39], v13, v8")
        for r in range(2):
            k.e(f"v_cndmask_b32 v{160+8*r}, v{160+8*r}, v{164+8*r}, s[40:41]")
        k.e("s_nop 0")
        k.e("v_cndmask_b32 v160, v160, v168, vcc")
        k.e("v_cndmask_b32 v36, 0, v160, s[38:39]")
    k.stamp()
    k.e("s_nop 1")
    if not K1G:
        k.e("v_add_f32 v32, v32, v33")
        k.e("v_add_f32 v34, v34, v35")
        k.e("v_add_f32 v36, v36, v37")
        k.e("v_add_f32 v38, v38, v39")
        k.e("v_add_f32 v32, v32, v34")
        k.e("v_add_f32 v36, v36, v38")
    for t in range(3):
        k.e(f"v_add_f32 v{40+4*t}, v{40+4*t}, v{41+4*t}")
        k.e(f"v_add_f32 v{42+4*t}, v{42+4*t}, v{43+4*t}")
        k.e(f"v_add_f32 v{40+4*t}, v{40+4*t}, v{42+4*t}")
    k.e("v_mov_b32 v33, v32")
    k.e("v_mov_b32 v37, v36")
    k.e("s_lshl_b32 s40, s3, 3")
    k.e(f"s_add_u32 s40, s40, {SCR}")
    k.e("v_lshlrev_b32 v13, 5, v12")
    k.e("v_lshl_add_u32 v13, v8, 2, v13")
    k.e("v_add_u32 v13, s40, v13")
    for t in range(3):
        k.e(f"ds_write_b32 v13, v{40+4*t} offset:{1024*t}")
    k.e("v_permlane32_swap_b32 v32, v33")
    k.e("v_permlane32_swap_b32 v36, v37")
    k.e("s_nop 1")
    k.e("v_add_f32 v32, v32, v33")
    k.e("v_add_f32 v36, v36, v37")
    k.e(f"s_mov_b32 s40, {hex(f2u(1.0/448))}")
    k.e("v_mul_f32 v32, s40, v32")
    k.e("v_mul_f32 v36, s40, v36")
    k.e("v_fma_f32 v36, -v32, v32, v36")
    k.e("v_max_f32 v36, 0, v36")
    k.e(f"v_add_f32 v36, {hex(f2u(1e-5))}, v36")
    k.e("v_rsq_f32 v33, v36")
    k.e("s_nop 0")
    k.e("v_mov_b32 v34, v32")
    k.e("v_mov_b32 v35, v33")
    k.e("s_lshl_b32 s40, s3, 8")
    k.e(f"s_add_u32 s40, s40, {SCR+4096}")
    k.e("v_lshl_add_u32 v14, v12, 3, s40")
    k.e("ds_write_b64 v14, v[34:35]")
    k.e("s_waitcnt lgkmcnt(0)")
    k.e("s_barrier")
    k.e("v_lshlrev_b32 v13, 5, v1")
    k.e(f"v_add_u32 v13, {SCR}, v13")
    k.e("ds_read_b128 v[40:43], v13")
    k.e("ds_read_b128 v[44:47], v13 offset:16")
    k.e("v_lshlrev_b32 v13, 5, v12")
    k.e(f"v_add_u32 v13, {SCR+2048}, v13")
    k.e("ds_read_b128 v[48:51], v13")
    k.e("ds_read_b128 v[52:55], v13 offset:16")
    k.e("v_lshlrev_b32 v14, 5, v8")
    k.e("v_add_u32 v14, s40, v14")
    for g in range(4):
        k.e(f"ds_read_b128 {vr(128+8*g,4)}, v14 offset:{64*g}")
        k.e(f"ds_read_b128 {vr(132+8*g,4)}, v14 offset:{64*g+16}")
    k.e("s_waitcnt lgkmcnt(8)")
    for b in (40, 48):
        k.e(f"v_add_f32 v{b}, v{b}, v{b+1}")
        k.e(f"v_add_f32 v{b+2}, v{b+2}, v{b+3}")
        k.e(f"v_add_f32 v{b+4}, v{b+4}, v{b+5}")
        k.e(f"v_add_f32 v{b+6}, v{b+6}, v{b+7}")
        k.e(f"v_add_f32 v{b}, v{b}, v{b+2}")
        k.e(f"v_add_f32 v{b+4}, v{b+4}, v{b+6}")
        k.e(f"v_add_f32 v{b}, v{b}, v{b+4}")
    k.e("s_lshl_b32 s41, s3, 8")
    k.e(f"s_add_u32 s41, s41, {SCR+3072}")
    k.e("v_lshlrev_b32 v13, 2, v1")
    k.e("v_add_u32 v13, s41, v13")
    k.e("ds_write_b32 v13, v40")
    k.e("v_lshlrev_b32 v13, 4, v8")
    k.e("v_add_u32 v13, s41, v13")
    k.e("s_waitcnt lgkmcnt(0)")
    for u in range(2):
        for g in range(4):
            k.e(f"ds_read_b128 {vr(160+16*u+4*g,4)}, v13 offset:{128*u+32*g}")
    k.e("s_lshl_b32 s34, s30, 7")
    k.e("s_lshl_b32 s35, s3, 5")
    k.e("s_add_u32 s34, s34, s35")
    k.e("s_lshl_b32 s36, s34, 6")
    k.e("v_lshlrev_b32 v23, 4, v1")
    k.e("v_add_u32 v23, s36, v23")
    k.e(f"v_mul_f32 v34, {hex(f2u(DH ** -0.5 * math.log2(math.e)))}, v33")
    E = k.L[n_e0:]
    del k.L[n_e0:]
    M = Ml
    K1E = int(os.environ.get("K1E", "7" if K1G == 3 else "5"))
    ei = 0
    for n in range(len(M)):
        k.L.append(M[n])
        k.L += E[ei:ei + K1E]
        ei += K1E
    k.L += E[ei:]
    k.nop(16)
    k.e("s_waitcnt lgkmcnt(0)")
    for c in range(2):
        a = ACC + 16 * c
        rs = "v34" if c == 0 else "v33"
        for r in range(16):
            k.e(f"v_fma_f32 v{a+r}, -v32, v{160+16*c+r}, v{a+r}")
            k.e(f"v_mul_f32 v{a+r}, {rs}, v{a+r}")
        k.e("v_cmp_gt_u32 vcc, 32, v1")
        k.e("s_nop 1")
        for r in range(12, 16):
            pad = "1.0" if (c == 1 and r == 12) else "0"
            k.e(f"v_cndmask_b32 v{a+r}, {pad}, v{a+r}, vcc")
        for g in range(4):
            k.e(f"v_cvt_pk_bf16_f32 v{96+8*c+2*g}, v{a+4*g}, v{a+4*g+1}")
            k.e(f"v_cvt_pk_bf16_f32 v{97+8*c+2*g}, v{a+4*g+2}, v{a+4*g+3}")
        k.e(f"s_mov_b32 s37, {hex(c*0x200000)}")
        for g in range(2):
            k.e(f"buffer_store_dwordx4 v[{96+8*c+4*g}:{99+8*c+4*g}], v23, s[16:19], s37 offen offset:{1024*g}")
    a = ACC + 32
    for r in range(16):
        g, j = r >> 2, r & 3
        mreg = 128 + 8 * g + 2 * j
        k.e(f"v_fma_f32 v{a+r}, -v{mreg}, v48, v{a+r}")
        k.e(f"v_mul_f32 v{a+r}, v{mreg+1}, v{a+r}")
    k.e("v_cmp_gt_u32 vcc, 28, v12")
    k.e("v_cmp_eq_u32 s[38:39], 28, v12")
    k.e("v_cndmask_b32 v27, 0, 1.0, s[38:39]")
    k.e("s_nop 1")
    for r in range(16):
        k.e(f"v_cndmask_b32 v{a+r}, v27, v{a+r}, vcc")
    for r in range(8):
        k.e(f"v_cvt_pk_bf16_f32 v{112+r}, v{a+2*r}, v{a+2*r+1}")
    k.e("s_mov_b32 s37, 0x400000")
    for g_ in range(2):
        k.e(f"buffer_store_dwordx4 v[{112+4*g_}:{115+4*g_}], v23, s[16:19], s37 offen offset:{1024*g_}")
    finish(k)
    return k, 256, (R * SLOT if K1G == 3 else SCR + 4096 + 1024), 256


def gen_k2():
    G.OFRAG = True
    k = G.gen_k2()
    return k, 256, 4 * 32768 + 64, 512


def build():
    ks = [gen_k1(), gen_k2(), gen_sk(3), gen_k4(), gen_sk(5)]
    out = [HEADER.rstrip("\n")]
    for k, g, lds, blk in ks:
        out.append(f"; @launch kernel={k.name} grid=({g},1,1) block=({blk},1,1) lds={lds}")
    out.append('.amdgcn_target "amdgcn-amd-amdhsa--gfx950"')
    out.append(".text")
    for k, g, lds, blk in ks:
        out.append(f".globl {k.name}")
        out.append(".p2align 8")
        out.append(f".type {k.name},@function")
        out.append(f"{k.name}:")
        idx = [kk[0] for kk in ks].index(k)
        L = [l for l in k.L if l is not None]
        if SC1 & (1 << idx):
            end = len(L)
            for n, l in enumerate(L):
                if l.strip().startswith(k.name + "_end"):
                    end = n
            nst = 0
            L2 = []
            for n, l in enumerate(L):
                if "buffer_store" in l and "s[56:59]" not in l and "s[92:95]" not in l:
                    l = l + " " + SCF
                    nst += 1
                L2.append(l)
            L = L2
            print("sc1 stores in", k.name, nst)
        out += L
    out.append('.section .rodata,"a"')
    for k, g, lds, blk in ks:
        out.append(".p2align 6")
        out.append(f".amdhsa_kernel {k.name}")
        out.append("  .amdhsa_next_free_vgpr " + ("512" if k.name.startswith("k1") else "256"))
        out.append("  .amdhsa_next_free_sgpr 102")
        out.append("  .amdhsa_accum_offset 256")
        out.append("  .amdhsa_group_segment_fixed_size 0")
        out.append("  .amdhsa_kernarg_size 80")
        out.append("  .amdhsa_user_sgpr_count 2")
        out.append("  .amdhsa_user_sgpr_kernarg_segment_ptr 1")
        out.append("  .amdhsa_system_sgpr_workgroup_id_x 1")
        out.append(".end_amdhsa_kernel")
    return "\n".join(out) + "\n"


if __name__ == "__main__":
    txt = build()
    open(OUT or ("cdna_kernels/" + NAME + ".s"), "w").write(txt)
    print("written", len(txt))
```

```python
import math, sys, os
STAMP = int(os.environ.get("STAMP", "0"))
EXPT = int(os.environ.get("EXPT", "0"))
OFRAG = False
OUT = os.environ.get("OUT", "")

NAME = "sequential_preLN__softmax_full_mha__geglu_ffn__prompt"
S, D, H, DH, F = 2048, 448, 16, 28, 1792
WS_Q, WS_K, WS_V, WS_O, WS_H, WS_ACT = 0x0, 0x200000, 0x400000, 0x600000, 0x800000, 0xA00000
WS_SIZE = 268435456


def f2u(x):
    import struct
    return struct.unpack("<I", struct.pack("<f", x))[0]


class K:
    def __init__(s, name):
        s.name = name
        s.L = []
        s.nlab = 0
        s.nst = 0

    def e(s, x):
        s.L.append("    " + x)

    def lab(s, l):
        s.L.append(l + ":")

    def newlab(s, p="L"):
        s.nlab += 1
        return f"{s.name}_{p}{s.nlab}"

    def nop(s, n):
        while n > 0:
            k = min(n, 16)
            s.e(f"s_nop {k-1}")
            n -= k

    def stamp(s):
        if STAMP == 2:
            if s.nst == 0:
                s.e("s_memrealtime s[90:91]")
                s.nst = 1
            return
        if not STAMP:
            return
        i = s.nst
        s.nst += 1
        s.e("s_memtime s[60:61]")
        s.e("s_waitcnt lgkmcnt(0)")
        s.e(f"s_mov_b32 s{64+i}, s60")

    def srd(s, sd, sb, off, nbytes):
        if off:
            s.e(f"s_add_u32 s{sd}, s{sb}, {hex(off)}")
            s.e(f"s_addc_u32 s{sd+1}, s{sb+1}, 0")
        else:
            s.e(f"s_mov_b32 s{sd}, s{sb}")
            s.e(f"s_mov_b32 s{sd+1}, s{sb+1}")
        s.e(f"s_mov_b32 s{sd+2}, {hex(nbytes)}")
        s.e(f"s_mov_b32 s{sd+3}, 0x00020000")

    def mfma(s, d, a, b, c):
        cs = f"v[{c}:{c+15}]" if isinstance(c, int) else c
        s.e(f"v_mfma_f32_32x32x16_bf16 v[{d}:{d+15}], v[{a}:{a+3}], v[{b}:{b+3}], {cs}")


def vr(a, n):
    return f"v[{a}:{a+n-1}]"


VA = 64
VACC0 = 176
VACC1 = 192
VB = 208
VPF = 224
A_STRIDE = 912
A_WAVE = 32 * A_STRIDE
BBUF = 28672


def tmpl_prologue(k, nwg, a_arg, a_off, a_bytes):
    k.e(f"s_cmp_ge_u32 s2, {nwg}")
    k.e(f"s_cbranch_scc1 {k.name}_end")
    k.e(f"s_load_dwordx2 s[4:5], s[0:1], {a_arg}")
    k.e(f"s_load_dwordx2 s[28:29], s[0:1], 72")
    k.e("v_and_b32 v1, 63, v0")
    k.e("v_lshrrev_b32 v2, 6, v0")
    k.e("s_nop 0")
    k.e("v_readfirstlane_b32 s3, v2")
    k.stamp()


def b_loads(k, srd, colbytes_sreg_or_imm, stride):
    if isinstance(colbytes_sreg_or_imm, str):
        k.e(f"s_mov_b32 s40, {colbytes_sreg_or_imm}")
    else:
        k.e(f"s_mov_b32 s40, {hex(colbytes_sreg_or_imm)}")
    for i in range(7):
        k.e(f"buffer_load_dwordx4 {vr(VPF+4*i,4)}, v3, s[{srd}:{srd+3}], s40 offen")
        if i < 6:
            k.e(f"s_add_u32 s40, s40, {hex(64*stride)}")


def b_writes(k, buf):
    for i in range(7):
        k.e(f"ds_write_b128 v4, {vr(VPF+4*i,4)} offset:{buf*BBUF + i*4096}")


def a_stage(k, do_ln):
    k.e("v_lshlrev_b32 v5, 4, v1")
    for i in range(28):
        if i % 4 == 0:
            if i == 0:
                k.e("s_mov_b32 s42, s41")
            else:
                k.e("s_add_u32 s42, s42, 4096")
        k.e(f"buffer_load_dwordx4 {vr(VA+4*i,4)}, v5, s[8:11], s42 offen offset:{(i%4)*1024}")
    k.e(f"s_mul_i32 s43, s3, {A_WAVE}")
    k.e("s_movk_i32 s44, 2341")
    addr_regs = []
    for i in range(28):
        pass
    k.e("s_waitcnt vmcnt(0)")
    k.stamp()
    for i in range(28):
        k.e(f"v_add_u32 v7, {i*64}, v1")
        k.e("v_mul_u32_u24 v8, s44, v7")
        k.e("v_lshrrev_b32 v8, 17, v8")
        k.e("v_add_lshl_u32 v7, v7, v8, 4")
        k.e("v_add_u32 v7, s43, v7")
        k.e(f"ds_write_b128 v7, {vr(VA+4*i,4)}")
    k.e("v_and_b32 v7, 31, v1")
    k.e(f"v_mul_u32_u24 v7, {A_STRIDE}, v7")
    k.e("v_lshrrev_b32 v8, 5, v1")
    k.e("v_lshl_add_u32 v7, v8, 4, v7")
    k.e("v_add_u32 v7, s43, v7")
    k.e("s_waitcnt lgkmcnt(0)")
    for s_ in range(28):
        k.e(f"ds_read_b128 {vr(VA+4*s_,4)}, v7 offset:{32*s_}")
    k.e("s_waitcnt lgkmcnt(0)")
    k.stamp()


def a_ln(k):
    k.e("s_mov_b32 s44, 0x3f803f80")
    for r in (8, 9, 10, 11):
        k.e(f"v_mov_b32 v{r}, 0")
    for r in range(112):
        k.e(f"v_dot2_f32_bf16 v{8+(r&1)}, v{VA+r}, s44, v{8+(r&1)}")
        k.e(f"v_dot2_f32_bf16 v{10+(r&1)}, v{VA+r}, v{VA+r}, v{10+(r&1)}")
    k.e("s_nop 1")
    k.e("v_add_f32 v8, v8, v9")
    k.e("v_add_f32 v10, v10, v11")
    k.e("s_nop 0")
    k.e("v_mov_b32 v9, v8")
    k.e("v_mov_b32 v11, v10")
    k.e("s_nop 1")
    k.e("v_permlane32_swap_b32 v8, v9")
    k.e("v_permlane32_swap_b32 v10, v11")
    k.e("s_nop 1")
    k.e("v_add_f32 v8, v8, v9")
    k.e("v_add_f32 v10, v10, v11")
    k.e(f"s_mov_b32 s44, {hex(f2u(1.0/448))}")
    k.e("v_mul_f32 v8, s44, v8")
    k.e("v_mul_f32 v10, s44, v10")
    k.e("v_fma_f32 v10, -v8, v8, v10")
    k.e("v_max_f32 v10, 0, v10")
    k.e(f"v_add_f32 v10, {hex(f2u(1e-5))}, v10")
    k.e("v_rsq_f32 v12, v10")
    k.e("s_nop 0")
    k.e("v_mov_b32 v13, v12")
    k.e("v_mul_f32 v14, v8, v12")
    k.e("v_sub_f32 v14, 0, v14")
    k.e("v_mov_b32 v15, v14")
    for r in range(112):
        t = 16 + 2 * (r & 1)
        k.e(f"v_lshlrev_b32 v{t}, 16, v{VA+r}")
        k.e(f"v_and_b32 v{t+1}, 0xffff0000, v{VA+r}")
        k.e(f"v_pk_fma_f32 v[{t}:{t+1}], v[{t}:{t+1}], v[12:13], v[14:15]")
        k.e(f"v_cvt_pk_bf16_f32 v{VA+r}, v{t}, v{t+1}")
    k.stamp()


def chunk_mfma(k, buf, acc, w_first):
    def rd(s_):
        b = VB + 4 * (s_ % 4)
        k.e(f"ds_read_b64_tr_b16 v[{b}:{b+1}], v21 offset:{buf*BBUF + 1024*s_}")
        k.e(f"ds_read_b64_tr_b16 v[{b+2}:{b+3}], v21 offset:{buf*BBUF + 1024*s_ + 256}")
    for s_ in range(3):
        rd(s_)
    for s_ in range(28):
        if s_ + 3 < 28:
            rd(s_ + 3)
            k.e("s_waitcnt lgkmcnt(6)")
        else:
            k.e(f"s_waitcnt lgkmcnt({2*(27-s_)})")
        b = VB + 4 * (s_ % 4)
        a = VA + 4 * s_
        c = "0" if s_ == 0 else acc
        if w_first:
            k.mfma(acc, b, a, c)
        else:
            k.mfma(acc, a, b, c)
    k.stamp()


def tr_addr(k):
    k.e("v_lshrrev_b32 v22, 5, v1")
    k.e("v_lshlrev_b32 v21, 9, v22")
    k.e("v_bfe_u32 v22, v1, 2, 2")
    k.e("v_lshl_add_u32 v21, v22, 6, v21")
    k.e("v_bfe_u32 v22, v1, 4, 1")
    k.e("v_lshl_add_u32 v21, v22, 5, v21")
    k.e("v_and_b32 v22, 3, v1")
    k.e("v_lshl_add_u32 v21, v22, 3, v21")


def b_thread_addr(k, stride):
    k.e("v_lshrrev_b32 v3, 2, v0")
    k.e(f"s_movk_i32 s44, {stride}" if stride < 32768 else f"s_mov_b32 s44, {stride}")
    k.e("v_mul_u32_u24 v3, s44, v3")
    k.e("v_and_b32 v4, 3, v0")
    k.e("v_lshl_add_u32 v3, v4, 4, v3")
    k.e("v_lshlrev_b32 v4, 4, v0")


KIDX = {"k1": 0, "k2": 1, "k3": 2, "k4": 3, "k5": 4}
def finish(k):
    if STAMP == 2:
        k.e("s_cmp_lg_u32 s3, 0")
        k.e(f"s_cbranch_scc1 {k.name}_end")
        k.e("s_waitcnt vmcnt(0)")
        k.e("s_memrealtime s[92:93]")
        k.srd(56, 28, 0x1F00000 + 8192 * KIDX[k.name[:2]], 8192)
        k.e("s_mov_b64 exec, -1")
        k.e("s_waitcnt lgkmcnt(0)")
        k.e("s_lshl_b32 s63, s2, 4")
        k.e("v_mov_b32 v1, s63")
        k.e("v_mov_b32 v4, s90")
        k.e("v_mov_b32 v5, s92")
        k.e("buffer_store_dwordx2 v[4:5], v1, s[56:59], 0 offen")
    elif STAMP and k.nst:
        k.stamp()
        k.e("s_cmp_lg_u32 s2, 0")
        k.e(f"s_cbranch_scc1 {k.name}_end")
        if os.environ.get("SW"):
            k.e("s_load_dwordx2 s[60:61], s[0:1], 64")
            k.e("s_waitcnt lgkmcnt(0)")
            k.srd(56, 60, 0, 256)
            k.e("s_mov_b64 exec, -1")
            k.e("s_lshl_b32 s63, s3, 5")
            k.e("v_mov_b32 v1, s63")
            for i in range(min(8, k.nst)):
                k.e(f"v_mov_b32 v2, s{64+i}")
                k.e(f"buffer_store_dword v2, v1, s[56:59], 0 offen offset:{4*i}")
            k.lab(f"{k.name}_end")
            k.e("s_endpgm")
            return
        k.e("s_cmp_lg_u32 s3, 0")
        k.e(f"s_cbranch_scc1 {k.name}_end")
        k.e("s_load_dwordx2 s[60:61], s[0:1], 64")
        k.e("s_waitcnt lgkmcnt(0)")
        k.srd(56, 60, 0, 256)
        k.e("s_mov_b64 exec, -1")
        k.e("v_mov_b32 v1, 0")
        for i in range(k.nst):
            k.e(f"s_sub_u32 s63, s{64+i}, s64")
            k.e("v_mov_b32 v2, s63")
            k.e(f"buffer_store_dword v2, v1, s[56:59], 0 offen offset:{4*i}")
    k.lab(f"{k.name}_end")
    k.e("s_endpgm")


def gen_k1():
    k = K("k1_qkv_kernel")
    tmpl_prologue(k, 256, 0, 0, 0)
    k.e("s_load_dwordx2 s[6:7], s[0:1], 8")
    k.e("s_and_b32 s30, s2, 15")
    k.e("s_lshr_b32 s31, s2, 4")
    k.e("s_waitcnt lgkmcnt(0)")
    k.srd(8, 4, 0, S * D * 2)
    k.srd(12, 6, 0, D * 3 * D * 2)
    k.e("s_lshl_b32 s32, s31, 17")
    k.e("s_add_u32 s16, s28, s32")
    k.e("s_addc_u32 s17, s29, 0")
    k.e(f"s_mov_b32 s18, {hex(0x400000 + 0x20000)}")
    k.e("s_mov_b32 s19, 0x00020000")
    b_thread_addr(k, 2688)
    tr_addr(k)
    k.e("s_mul_i32 s33, s31, 56")
    b_loads(k, 12, "s33", 2688)
    k.e("s_lshl_b32 s41, s30, 2")
    k.e("s_add_u32 s41, s41, s3")
    k.e("s_lshl_b32 s34, s41, 5")
    k.e(f"s_mul_i32 s41, s41, {32*896}")
    a_stage(k, True)
    k.e("s_barrier")
    b_writes(k, 0)
    k.e("s_add_u32 s35, s33, 896")
    b_loads(k, 12, "s35", 2688)
    a_ln(k)
    k.e("v_and_b32 v25, 31, v1")
    k.e("v_lshrrev_b32 v26, 5, v1")
    k.e("v_add_u32 v23, s34, v25")
    k.e("v_lshlrev_b32 v23, 6, v23")
    k.e("v_lshl_add_u32 v23, v26, 3, v23")
    k.e("v_lshlrev_b32 v24, 12, v25")
    k.e("v_lshl_add_u32 v24, v26, 4, v24")
    k.e("s_lshl_b32 s36, s34, 1")
    k.e("v_add_u32 v24, s36, v24")
    k.e("s_waitcnt lgkmcnt(0)")
    k.e("s_barrier")
    for c in range(3):
        chunk_mfma(k, c & 1, VACC0, w_first=(c < 2))
        if c < 2:
            k.e("s_waitcnt vmcnt(0)")
            b_writes(k, (c + 1) & 1)
            if c == 0:
                k.e("s_add_u32 s35, s33, 1792")
                b_loads(k, 12, "s35", 2688)
        k.nop(16)
        if c < 2:
            k.e("v_cmp_gt_u32 vcc, 32, v1")
            k.e("s_nop 1")
            if c == 0:
                k.e(f"s_mov_b32 s37, {hex(f2u(DH ** -0.5 * math.log2(math.e)))}")
                for r in range(16):
                    k.e(f"v_mul_f32 v{VACC0+r}, s37, v{VACC0+r}")
            for r in range(12, 16):
                pad = "1.0" if (c == 1 and r == 12) else "0"
                k.e(f"v_cndmask_b32 v{VACC0+r}, {pad}, v{VACC0+r}, vcc")
            for g in range(4):
                k.e(f"v_cvt_pk_bf16_f32 v{28+2*g}, v{VACC0+4*g}, v{VACC0+4*g+1}")
                k.e(f"v_cvt_pk_bf16_f32 v{29+2*g}, v{VACC0+4*g+2}, v{VACC0+4*g+3}")
            k.e(f"s_mov_b32 s37, {hex(c*0x200000)}")
            for g in range(4):
                k.e(f"buffer_store_dwordx2 v[{28+2*g}:{29+2*g}], v23, s[16:19], s37 offen offset:{16*g}")
        else:
            k.e("v_cmp_gt_u32 vcc, 28, v25")
            k.e("v_cmp_eq_u32 s[38:39], 28, v25")
            k.e("v_cndmask_b32 v27, 0, 1.0, s[38:39]")
            k.e("s_nop 1")
            for r in range(16):
                k.e(f"v_cndmask_b32 v{VACC0+r}, v27, v{VACC0+r}, vcc")
            for r in range(8):
                k.e(f"v_cvt_pk_bf16_f32 v{28+r}, v{VACC0+2*r}, v{VACC0+2*r+1}")
            k.e("s_mov_b32 s37, 0x400000")
            for G in range(2):
                k.e(f"buffer_store_dwordx4 v[{28+4*G}:{31+4*G}], v24, s[16:19], s37 offen offset:{32*G}")
        if c < 2:
            k.e("s_waitcnt lgkmcnt(0)")
            k.e("s_barrier")
    finish(k)
    return k


def gen_k2():
    k = K("k2_attn_kernel")
    VQ = 8
    VS = 64
    VO = 128
    VP = 144
    VKF = 176
    VVF = 192
    VPFK = 224
    VPFV = 232
    KB = 256 * 80
    VST = 528
    VBS = 32 * VST
    BUF = KB + VBS
    T = 6.0
    k.e("s_cmp_ge_u32 s2, 256")
    k.e(f"s_cbranch_scc1 {k.name}_end")
    k.e("s_load_dwordx2 s[28:29], s[0:1], 72")
    k.e("v_and_b32 v1, 63, v0")
    k.e("v_lshrrev_b32 v2, 6, v0")
    K2M = int(os.environ.get("K2M", "1"))
    PF = int(os.environ.get("PF", "3"))
    PFC = int(os.environ.get("PFC", "5"))
    if PF:
        k.e("s_load_dwordx2 s[48:49], s[0:1], 16")
        k.e("s_load_dwordx2 s[50:51], s[0:1], 32")
        k.e("s_load_dwordx2 s[52:53], s[0:1], 40")
        k.e("s_load_dwordx2 s[54:55], s[0:1], 48")
    if K2M:
        k.e("s_and_b32 s31, s2, 7")
        k.e("s_lshl_b32 s31, s31, 1")
        k.e("s_lshr_b32 s30, s2, 7")
        k.e("s_add_u32 s31, s31, s30")
        k.e("s_bfe_u32 s30, s2, 0x40003")
    else:
        k.e("s_and_b32 s30, s2, 15")
        k.e("s_lshr_b32 s31, s2, 4")
    k.e("v_readfirstlane_b32 s3, v2")
    k.e("s_lshl_b32 s32, s31, 17")
    k.e("s_and_b32 s33, s3, 3")
    k.e("s_lshr_b32 s44, s3, 2")
    k.e("s_waitcnt lgkmcnt(0)")
    k.e("s_add_u32 s8, s28, s32")
    k.e("s_addc_u32 s9, s29, 0")
    k.e(f"s_mov_b32 s10, {hex(0x400000 + 0x20000)}")
    k.e("s_mov_b32 s11, 0x00020000")
    k.srd(16, 28, WS_O, 64 * 32 * 1024 if OFRAG else S * D * 2)
    k.e("s_lshl_b32 s34, s30, 2")
    k.e("s_add_u32 s34, s34, s33")
    k.e("s_lshl_b32 s34, s34, 5")
    k.e("v_and_b32 v25, 31, v1")
    k.e("v_lshrrev_b32 v26, 5, v1")
    k.e("s_lshl_b32 s45, s34, 6")
    k.e("v_lshlrev_b32 v4, 4, v1")
    k.e("v_add_u32 v3, s45, v4")
    k.e("buffer_load_dwordx4 v[8:11], v3, s[8:11], 0 offen")
    k.e("buffer_load_dwordx4 v[12:15], v3, s[8:11], 0 offen offset:1024")
    k.e("s_lshl_b32 s45, s44, 13")
    k.e("v_add_u32 v18, s45, v4")
    k.e("v_add_u32 v42, 0x10000, v18")
    k.e("s_lshl_b32 s43, s3, 11")
    k.e("s_mov_b32 s46, 0")
    k.e("s_mov_b32 s47, -1")

    CB = 32768

    def g_loads(buf):
        k.e(f"s_add_u32 m0, s43, {buf*CB}")
        k.e("s_add_u32 s36, s35, 0x200000")
        k.e("buffer_load_dwordx4 v4, s[8:11], s35 offen lds")
        k.e("buffer_load_dwordx4 v4, s[8:11], s35 offen offset:1024 lds")
        k.e(f"s_add_u32 m0, s43, {buf*CB+16384}")
        k.e("s_add_u32 s35, s35, 16384")
        k.e("buffer_load_dwordx4 v4, s[8:11], s36 offen lds")
        k.e("buffer_load_dwordx4 v4, s[8:11], s36 offen offset:1024 lds")

    def chunk(buf, first):
        k.e("s_waitcnt vmcnt(0)")
        k.e("s_barrier")
        skip = k.newlab("skip")
        k.e(f"s_cmp_ge_u32 s35, {hex(0x200000 + 8*16384)}")
        k.e(f"s_cbranch_scc1 {skip}")
        g_loads(buf ^ 1)
        k.lab(skip)
        for kt in range(4):
            kf = VKF + 8 * (kt & 1)
            k.e(f"ds_read_b128 {vr(kf,4)}, v18 offset:{buf*CB + kt*2048}")
            k.e(f"ds_read_b128 {vr(kf+4,4)}, v18 offset:{buf*CB + kt*2048 + 1024}")
            if kt >= 1:
                pk = VKF + 8 * ((kt - 1) & 1)
                k.e("s_waitcnt lgkmcnt(2)")
                k.mfma(VS + 16 * (kt - 1), pk, VQ, "0")
                k.mfma(VS + 16 * (kt - 1), pk + 4, VQ + 4, VS + 16 * (kt - 1))
        k.e("s_waitcnt lgkmcnt(0)")
        k.mfma(VS + 48, VKF + 8, VQ, "0")
        k.mfma(VS + 48, VKF + 12, VQ + 4, VS + 48)
        for kt in range(4):
            for G in range(2):
                k.e(f"ds_read_b128 {vr(VVF+4*(2*kt+G),4)}, v18 offset:{buf*CB + 16384 + kt*2048 + 1024*G}")
        k.nop(12)
        k.e(f"v_max3_f32 v21, v{VS}, v{VS+1}, v{VS+2}")
        for i in range(3, 63, 2):
            k.e(f"v_max3_f32 v21, v21, v{VS+i}, v{VS+i+1}")
        k.e(f"v_max_f32 v21, v21, v{VS+63}")
        fast = k.newlab("fast")
        if not first:
            k.e("v_cmp_lt_f32 vcc, s38, v21")
            k.e(f"s_cbranch_vccz {fast}")
        k.e("v_mov_b32 v22, v21")
        k.e("s_nop 1")
        k.e("v_permlane32_swap_b32 v21, v22")
        k.e("s_nop 1")
        k.e("v_max_f32 v21, v21, v22")
        if not first:
            k.e("v_max_f32 v21, 0, v21")
        k.e("v_add_f32 v22, v20, v21")
        k.e("v_cvt_pk_bf16_f32 v23, v22, v22")
        k.e("v_lshlrev_b32 v22, 16, v23")
        k.e("v_sub_f32 v21, v22, v20")
        k.e("v_mov_b32 v20, v22")
        for i in range(64):
            k.e(f"v_sub_f32 v{VS+i}, v{VS+i}, v21")
        if not first:
            k.e("v_exp_f32 v24, -v21")
            k.e("s_nop 0")
            for r in range(16):
                k.e(f"v_mul_f32 v{VO+r}, v{VO+r}, v24")
        k.e("v_xor_b32 v23, 0x8000, v23")
        k.e("v_and_b32 v23, 0xffff, v23")
        k.e(f"v_cndmask_b32 v{VQ+6}, v{VQ+6}, v23, s[46:47]")
        k.lab(fast)
        for i in range(64):
            k.e(f"v_exp_f32 v{VS+i}, v{VS+i}")
        k.e("s_nop 0")
        for i in range(32):
            k.e(f"v_cvt_pk_bf16_f32 v{VP+i}, v{VS+2*i}, v{VS+2*i+1}")
        k.e("s_waitcnt lgkmcnt(0)")
        k.e("s_nop 1")
        for kt in range(4):
            for G in range(2):
                j = 2 * kt + G
                k.mfma(VO, VVF + 4 * j, VP + 4 * j, VO)

    FS = [64, 80]
    FP = [96, 104]
    FK = [112, 120]
    FV = [128, 136]
    FO = 144
    FLAG = 4 * CB
    vq = []

    def fdma(c, part):
        buf = c % 4
        k.e(f"s_add_u32 m0, s43, {buf*CB + 16384*part}")
        k.e(f"s_add_u32 s35, s43, {hex(0x200000*(part+1) + c*16384)}")
        k.e("buffer_load_dwordx4 v4, s[8:11], s35 offen lds")
        k.e("buffer_load_dwordx4 v4, s[8:11], s35 offen offset:1024 lds")
        vq.extend([c, c])

    def vwait(c):
        idx = max(i for i, t_ in enumerate(vq) if t_ == c)
        k.e(f"s_waitcnt vmcnt({len(vq) - 1 - idx})")

    def rdK(t):
        c, kt = t >> 2, t & 3
        kf = FK[t & 1]
        a, o = ("v18" if (c % 4) < 2 else "v42"), (c & 1) * CB
        k.e(f"ds_read_b128 {vr(kf,4)}, {a} offset:{o + kt*2048}")
        k.e(f"ds_read_b128 {vr(kf+4,4)}, {a} offset:{o + kt*2048 + 1024}")

    def rdV(t):
        c, kt = t >> 2, t & 3
        vf = FV[t & 1]
        for G in range(2):
            a, o = ("v18" if (c % 4) < 2 else "v42"), (c & 1) * CB
            k.e(f"ds_read_b128 {vr(vf+4*G,4)}, {a} offset:{o + 16384 + kt*2048 + 1024*G}")

    k.stamp()
    for c_ in range(3):
        fdma(c_, 0)
        fdma(c_, 1)
    vwait(0)
    k.stamp()
    k.e("s_barrier")
    for kt in range(4):
        k.e(f"ds_read_b128 {vr(128+8*kt,4)}, v18 offset:{kt*2048}")
        k.e(f"ds_read_b128 {vr(132+8*kt,4)}, v18 offset:{kt*2048 + 1024}")
    for kt in range(4):
        k.e(f"s_waitcnt lgkmcnt({6-2*kt})")
        k.mfma(64 + 16 * kt, 128 + 8 * kt, VQ, "0")
        k.mfma(64 + 16 * kt, 132 + 8 * kt, VQ + 4, 64 + 16 * kt)
    rdK(0)
    rdK(1)
    k.nop(12)
    k.e("v_max3_f32 v21, v64, v65, v66")
    for i in range(3, 63, 2):
        k.e(f"v_max3_f32 v21, v21, v{64+i}, v{64+i+1}")
    k.e("v_max_f32 v21, v21, v127")
    k.e("v_mov_b32 v22, v21")
    k.e("s_nop 1")
    k.e("v_permlane32_swap_b32 v21, v22")
    k.e("s_nop 1")
    k.e("v_max_f32 v21, v21, v22")
    k.e("v_cvt_pk_bf16_f32 v23, v21, v21")
    k.e("v_lshlrev_b32 v20, 16, v23")
    k.e("v_xor_b32 v23, 0x8000, v23")
    k.e("v_and_b32 v23, 0xffff, v23")
    k.e(f"v_cndmask_b32 v{VQ+6}, v{VQ+6}, v23, s[46:47]")
    k.e("s_waitcnt lgkmcnt(0)")
    k.e("s_nop 1")
    k.mfma(FS[0], FK[0], VQ, "0")
    k.mfma(FS[0], FK[0] + 4, VQ + 4, FS[0])
    k.nop(16)
    NT = 32
    for t in range(NT):
        c, kt = t >> 2, t & 3
        if kt == 0:
            k.stamp()
        if kt == 1 and EXPT != 6:
            if c + 1 < 8:
                vwait(c + 1)
            k.e("s_barrier")
        nrd = 0
        if EXPT != 4:
            if t + 2 < NT:
                rdK(t + 2); nrd += 2
            rdV(t); nrd += 2
            k.e(f"s_waitcnt lgkmcnt({nrd})")
        if EXPT == 7:
            sv_mfma = k.mfma
            k.mfma = lambda *a: None
        s = FS[t & 1]
        sn = FS[(t + 1) & 1]
        p = FP[t & 1]
        pp = FP[(t - 1) & 1]
        kf = FK[(t + 1) & 1]
        vf = FV[(t - 1) & 1]
        def ex(a, b):
            for i in range(a, b):
                if EXPT == 1:
                    k.e(f"v_mul_f32 v{s+i}, v{s+i}, v{s+i}")
                elif EXPT in (2, 4, 5, 6):
                    pass
                else:
                    k.e(f"v_exp_f32 v{s+i}, v{s+i}")
        def cv(a, b):
            for i in range(a, b):
                if EXPT not in (3, 5):
                    k.e(f"v_cvt_pk_bf16_f32 v{p+i}, v{s+2*i}, v{s+2*i+1}")
        if t + 1 < NT:
            k.mfma(sn, kf, VQ, "0")
        ex(0, 4)
        if t + 1 < NT:
            k.mfma(sn, kf + 4, VQ + 4, sn)
        ex(4, 8)
        cv(0, 2)
        if t >= 1:
            k.mfma(FO, vf, pp, "0" if t == 1 else FO)
        ex(8, 12)
        cv(2, 4)
        if t >= 1:
            k.mfma(FO, vf + 4, pp + 4, FO)
        ex(12, 16)
        cv(4, 8)
        if EXPT == 7:
            k.mfma = sv_mfma
        if kt in (1, 2) and c + 3 < 8:
            fdma(c + 3, kt - 1)
        if kt == 2:
            if c == PFC and PF:
                k.e("s_and_b32 s80, s2, 7")
                if os.environ.get("PFX"):
                    k.e("s_xor_b32 s80, s80, 4")
                k.e("s_lshr_b32 s81, s2, 3")
                k.e("v_lshrrev_b32 v244, 4, v1")
                k.e("s_lshl_b32 s82, s33, 2")
                k.e("v_add_u32 v244, s82, v244")
                k.e("v_min_u32 v244, 13, v244")
                k.e("s_mul_i32 s82, s81, 14")
                k.e("v_add_u32 v244, s82, v244")
                k.e("s_movk_i32 s82, 3584")
                k.e("v_mul_u32_u24 v244, s82, v244")
                k.e("v_and_b32 v245, 15, v1")
                k.e("v_min_u32 v245, 13, v245")
                k.e("v_lshl_add_u32 v244, v245, 7, v244")
                k.e("s_lshr_b32 s82, s80, 2")
                k.e("s_mul_i32 s82, s82, 1792")
                k.e("s_cmp_eq_u32 s44, 0")
                k.e("s_cselect_b32 s84, s50, s52")
                k.e("s_cselect_b32 s85, s51, s53")
                k.e(f"s_mov_b32 s86, {D*F*2}")
                k.e("s_mov_b32 s87, 0x00020000")
                if PF & 1:
                    k.e("buffer_load_dword v240, v244, s[84:87], s82 offen")
                    vq.append("pf")
                k.e("v_min_u32 v245, 97, v0")
                k.e("v_lshlrev_b32 v245, 7, v245")
                k.e("s_mul_i32 s82, s81, 12544")
                k.srd(84, 48, 0, D * D * 2)
                if PF & 2:
                    k.e("buffer_load_dword v241, v245, s[84:87], s82 offen")
                    vq.append("pf")
                k.e("v_min_u32 v246, 391, v0")
                k.e("v_lshlrev_b32 v246, 7, v246")
                k.e("s_mul_i32 s82, s81, 50176")
                k.srd(84, 54, 0, D * F * 2)
                if PF & 4:
                    k.e("buffer_load_dword v242, v246, s[84:87], s82 offen")
                    vq.append("pf")
    k.stamp()
    k.e("s_waitcnt lgkmcnt(0)")
    k.e("s_nop 1")
    k.mfma(FO, FV[(NT - 1) & 1], FP[(NT - 1) & 1], FO)
    k.mfma(FO, FV[(NT - 1) & 1] + 4, FP[(NT - 1) & 1] + 4, FO)
    k.nop(16)
    for r in range(16):
        k.e(f"v_mov_b32 v{VO+r}, v{FO+r}") if VO != FO else None
    k.e(f"s_mov_b32 s38, {hex(f2u(2.0**40))}")
    k.e(f"v_cmp_nlt_f32 vcc, v{FO+12}, s38")
    k.e("s_and_b64 vcc, vcc, s[46:47]")
    k.e("s_cmp_lg_u64 vcc, 0")
    k.e("s_cselect_b32 s38, 1, 0")
    k.e("v_mov_b32 v21, s38")
    k.e("v_lshlrev_b32 v22, 2, v2")
    k.e(f"v_add_u32 v22, {FLAG}, v22")
    k.e(f"ds_write_b32 v22, v21")
    k.e("s_waitcnt lgkmcnt(0)")
    k.e("s_barrier")
    k.e("v_and_b32 v22, 7, v1")
    k.e("v_lshlrev_b32 v22, 2, v22")
    k.e(f"v_add_u32 v22, {FLAG}, v22")
    k.e(f"ds_read_b32 v21, v22")
    k.e("s_waitcnt lgkmcnt(0)")
    k.e("v_cmp_ne_u32 vcc, 0, v21")
    combine = k.newlab("combine")
    k.e(f"s_cbranch_vccz {combine}")
    k.e(f"v_cndmask_b32 v{VQ+6}, v{VQ+6}, 0, s[46:47]")
    k.e("s_waitcnt vmcnt(0)")
    k.e("s_barrier")
    k.e("s_add_u32 s35, s43, 0x200000")
    g_loads(0)
    for r in range(16):
        k.e(f"v_mov_b32 v{VO+r}, 0")
    k.e("v_mov_b32 v20, 0")
    k.e(f"s_mov_b32 s38, {hex(f2u(T))}")
    chunk(0, True)
    chunk(1, False)
    k.e("s_mov_b32 s39, 0")
    loop = k.newlab("loop")
    k.lab(loop)
    chunk(0, False)
    chunk(1, False)
    k.e("s_add_u32 s39, s39, 1")
    k.e("s_cmp_lt_u32 s39, 3")
    k.e(f"s_cbranch_scc1 {loop}")
    k.nop(16)
    k.lab(combine)
    k.e("v_lshlrev_b32 v3, 2, v1")
    k.e(f"s_mul_i32 s45, s33, {17*256}")
    k.e("v_add_u32 v3, s45, v3")
    up = k.newlab("up")
    k.e("s_cmp_eq_u32 s44, 0")
    k.e(f"s_cbranch_scc1 {up}")
    for r in range(16):
        k.e(f"ds_write_b32 v3, v{VO+r} offset:{256*r}")
    k.e(f"ds_write_b32 v3, v20 offset:{256*16}")
    k.e("s_waitcnt lgkmcnt(0)")
    k.e("s_barrier")
    k.e("s_endpgm")
    k.lab(up)
    k.e("s_barrier")
    for r in range(16):
        k.e(f"ds_read_b32 v{VS+r}, v3 offset:{256*r}")
    k.e(f"ds_read_b32 v{VS+16}, v3 offset:{256*16}")
    k.e("s_waitcnt lgkmcnt(0)")
    k.e(f"v_max_f32 v21, v20, v{VS+16}")
    k.e("v_sub_f32 v22, v20, v21")
    k.e(f"v_sub_f32 v23, v{VS+16}, v21")
    k.e("v_exp_f32 v22, v22")
    k.e("v_exp_f32 v23, v23")
    k.e("s_nop 0")
    for r in range(16):
        k.e(f"v_mul_f32 v{VO+r}, v{VO+r}, v22")
        k.e(f"v_fma_f32 v{VO+r}, v{VS+r}, v23, v{VO+r}")
    k.e("s_nop 0")
    k.e(f"v_mov_b32 v21, v{VO+12}")
    k.e(f"v_mov_b32 v22, v{VO+12}")
    k.e("s_nop 1")
    k.e("v_permlane32_swap_b32 v21, v22")
    k.e("s_nop 1")
    k.e("v_rcp_f32 v22, v22")
    k.e("s_nop 0")
    for r in range(16):
        k.e(f"v_mul_f32 v{VO+r}, v{VO+r}, v22")
    if OFRAG:
        for r in range(12, 16):
            k.e(f"v_cndmask_b32 v{VO+r}, v{VO+r}, 0, s[46:47]")
    for g in range(4):
        k.e(f"v_cvt_pk_bf16_f32 v{28+2*g}, v{VO+4*g}, v{VO+4*g+1}")
        k.e(f"v_cvt_pk_bf16_f32 v{29+2*g}, v{VO+4*g+2}, v{VO+4*g+3}")
    if OFRAG:
        k.e("v_lshlrev_b32 v3, 4, v1")
        k.e("s_lshr_b32 s40, s34, 5")
        k.e("s_lshl_b32 s40, s40, 5")
        k.e("s_lshl_b32 s41, s31, 1")
        k.e("s_add_u32 s40, s40, s41")
        k.e("s_lshl_b32 s40, s40, 10")
        for g in range(2):
            k.e(f"buffer_store_dwordx4 v[{28+4*g}:{31+4*g}], v3, s[16:19], s40 offen offset:{1024*g}")
        finish(k)
        return k
    k.e("v_add_u32 v3, s34, v25")
    k.e("s_movk_i32 s40, 896")
    k.e("v_mul_u32_u24 v3, s40, v3")
    k.e("v_lshl_add_u32 v3, v26, 3, v3")
    k.e("s_mul_i32 s40, s31, 56")
    for g in range(3):
        k.e(f"buffer_store_dwordx2 v[{28+2*g}:{29+2*g}], v3, s[16:19], s40 offen offset:{16*g}")
    k.e("v_cmp_gt_u32 vcc, 32, v1")
    k.e("s_and_saveexec_b64 s[42:43], vcc")
    k.e(f"buffer_store_dwordx2 v[34:35], v3, s[16:19], s40 offen offset:48")
    finish(k)
    return k


def gen_k3():
    k = K("k3_wo_kernel")
    tmpl_prologue(k, 224, 72, 0, 0)
    k.e("s_load_dwordx2 s[6:7], s[0:1], 16")
    k.e("s_load_dwordx2 s[20:21], s[0:1], 0")
    k.e("s_and_b32 s30, s2, 15")
    k.e("s_lshr_b32 s31, s2, 4")
    k.e("s_waitcnt lgkmcnt(0)")
    k.srd(8, 4, WS_O, S * D * 2)
    k.srd(12, 6, 0, D * D * 2)
    k.srd(16, 28, WS_H, S * D * 2)
    k.srd(24, 20, 0, S * D * 2)
    b_thread_addr(k, 896)
    tr_addr(k)
    k.e("s_lshl_b32 s33, s31, 6")
    b_loads(k, 12, "s33", 896)
    k.e("s_lshl_b32 s41, s30, 2")
    k.e("s_add_u32 s41, s41, s3")
    k.e("s_lshl_b32 s34, s41, 5")
    k.e(f"s_mul_i32 s41, s41, {32*896}")
    a_stage(k, False)
    k.e("s_barrier")
    b_writes(k, 0)
    k.e("v_and_b32 v25, 31, v1")
    k.e("v_lshrrev_b32 v26, 5, v1")
    k.e("v_add_u32 v23, s34, v25")
    k.e("s_movk_i32 s40, 896")
    k.e("v_mul_u32_u24 v23, s40, v23")
    k.e("v_lshl_add_u32 v23, v26, 3, v23")
    for g in range(4):
        k.e(f"buffer_load_dwordx2 v[{28+2*g}:{29+2*g}], v23, s[24:27], s33 offen offset:{16*g}")
    k.e("s_waitcnt lgkmcnt(0)")
    k.e("s_barrier")
    chunk_mfma(k, 0, VACC0, True)
    k.nop(16)
    k.e("s_waitcnt vmcnt(0)")
    for g in range(4):
        for h in range(2):
            src = 28 + 2 * g + h
            k.e(f"v_lshlrev_b32 v36, 16, v{src}")
            k.e(f"v_and_b32 v37, 0xffff0000, v{src}")
            k.e(f"v_add_f32 v36, v36, v{VACC0+4*g+2*h}")
            k.e(f"v_add_f32 v37, v37, v{VACC0+4*g+2*h+1}")
            k.e(f"v_cvt_pk_bf16_f32 v{src}, v36, v37")
    for g in range(4):
        k.e(f"buffer_store_dwordx2 v[{28+2*g}:{29+2*g}], v23, s[16:19], s33 offen offset:{16*g}")
    finish(k)
    return k


def gen_k4():
    k = K("k4_ffn1_kernel")
    tmpl_prologue(k, 224, 72, 0, 0)
    k.e("s_load_dwordx2 s[6:7], s[0:1], 32")
    k.e("s_load_dwordx2 s[20:21], s[0:1], 40")
    k.e("s_and_b32 s30, s2, 15")
    k.e("s_lshr_b32 s31, s2, 4")
    k.e("s_waitcnt lgkmcnt(0)")
    k.srd(8, 4, WS_H, S * D * 2)
    k.srd(12, 6, 0, D * F * 2)
    k.srd(24, 20, 0, D * F * 2)
    k.srd(16, 28, WS_ACT, S * F * 2)
    b_thread_addr(k, 3584)
    tr_addr(k)
    k.e("s_lshl_b32 s33, s31, 8")
    b_loads(k, 12, "s33", 3584)
    k.e("s_lshl_b32 s41, s30, 2")
    k.e("s_add_u32 s41, s41, s3")
    k.e("s_lshl_b32 s34, s41, 5")
    k.e(f"s_mul_i32 s41, s41, {32*896}")
    a_stage(k, True)
    k.e("s_barrier")
    b_writes(k, 0)
    b_loads(k, 24, "s33", 3584)
    a_ln(k)
    k.e("v_and_b32 v25, 31, v1")
    k.e("v_lshrrev_b32 v26, 5, v1")
    k.e("v_add_u32 v23, s34, v25")
    k.e("s_movk_i32 s40, 3584")
    k.e("v_mul_u32_u24 v23, s40, v23")
    k.e("v_lshl_add_u32 v23, v26, 3, v23")
    c0 = -2.0 * math.log2(math.e) * math.sqrt(2.0 / math.pi)
    c1 = c0 * 0.044715
    k.e(f"s_mov_b32 s45, {hex(f2u(c0))}")
    k.e(f"s_mov_b32 s46, {hex(f2u(c1))}")
    k.e("s_waitcnt lgkmcnt(0)")
    k.e("s_barrier")
    nch = 8
    for c in range(nch):
        acc = VACC0 if c % 2 == 0 else VACC1
        chunk_mfma(k, c & 1, acc, True)
        if c + 1 < nch:
            k.e("s_waitcnt vmcnt(0)")
            b_writes(k, (c + 1) & 1)
            if c + 2 < nch:
                j = (c + 2) // 2
                k.e(f"s_add_u32 s35, s33, {64*j}")
                b_loads(k, 12 if (c + 2) % 2 == 0 else 24, "s35", 3584)
        if c % 2 == 1:
            k.nop(16)
            for r in range(16):
                g_, u_ = VACC0 + r, VACC1 + r
                t = 36 + (r & 3)
                k.e(f"v_mul_f32 v{t}, v{g_}, v{g_}")
                k.e(f"v_fma_f32 v{t}, v{t}, s46, v47")
                k.e(f"v_mul_f32 v{t}, v{t}, v{g_}")
                k.e(f"v_exp_f32 v{t}, v{t}")
                k.e("s_nop 0")
                k.e(f"v_add_f32 v{t}, 1.0, v{t}")
                k.e(f"v_rcp_f32 v{t}, v{t}")
                k.e("s_nop 0")
                k.e(f"v_mul_f32 v{t}, v{t}, v{g_}")
                k.e(f"v_mul_f32 v{g_}, v{t}, v{u_}")
            for g in range(4):
                k.e(f"v_cvt_pk_bf16_f32 v{28+2*g}, v{VACC0+4*g}, v{VACC0+4*g+1}")
                k.e(f"v_cvt_pk_bf16_f32 v{29+2*g}, v{VACC0+4*g+2}, v{VACC0+4*g+3}")
            k.e(f"s_add_u32 s37, s33, {64*(c//2)}")
            for g in range(4):
                k.e(f"buffer_store_dwordx2 v[{28+2*g}:{29+2*g}], v23, s[16:19], s37 offen offset:{16*g}")
        if c + 1 < nch:
            k.e("s_waitcnt lgkmcnt(0)")
            k.e("s_barrier")
        if c == 0:
            k.e("v_mov_b32 v47, s45")
    finish(k)
    return k


def gen_k5():
    k = K("k5_down_kernel")
    AST = 464
    ABUF = 64 * AST
    BB = 2 * 224 * 64
    BUF = ABUF + BB
    VPA = 64
    VPB = 96
    VAF = 128
    VBF = 144
    ACC = 160
    k.e("s_cmp_ge_u32 s2, 224")
    k.e(f"s_cbranch_scc1 {k.name}_end")
    k.e("s_load_dwordx2 s[28:29], s[0:1], 72")
    k.e("s_load_dwordx2 s[6:7], s[0:1], 48")
    k.e("s_load_dwordx2 s[20:21], s[0:1], 56")
    k.e("v_and_b32 v1, 63, v0")
    k.e("v_lshrrev_b32 v2, 6, v0")
    k.e("s_and_b32 s30, s2, 31")
    k.e("s_lshr_b32 s31, s2, 5")
    k.e("v_readfirstlane_b32 s3, v2")
    k.e("s_waitcnt lgkmcnt(0)")
    k.srd(8, 28, WS_ACT, S * F * 2)
    k.srd(12, 6, 0, F * D * 2)
    k.srd(16, 20, 0, S * D * 2)
    k.srd(24, 28, WS_H, S * D * 2)
    k.e("s_movk_i32 s44, 2341")
    k.e("s_movk_i32 s44, 4682")
    for i in range(7):
        k.e(f"v_add_u32 v7, {i*256}, v0")
        k.e("v_mul_u32_u24 v8, s44, v7")
        k.e("v_lshrrev_b32 v8, 17, v8")
        k.e("v_mul_u32_u24 v9, 28, v8")
        k.e("v_sub_u32 v9, v7, v9")
        k.e("v_mul_u32_u24 v10, s45, v8") if False else None
        k.e(f"v_lshlrev_b32 v10, 4, v9")
        k.e(f"s_movk_i32 s45, 3584")
        k.e(f"v_mad_u32_u24 v{32+i}, v8, s45, v10")
        k.e(f"s_movk_i32 s45, {AST}")
        k.e(f"v_mad_u32_u24 v{40+i}, v8, s45, v10")
    k.e("v_lshrrev_b32 v7, 3, v0")
    k.e("v_and_b32 v8, 7, v0")
    k.e("s_movk_i32 s45, 896")
    k.e("v_mul_u32_u24 v48, s45, v7")
    k.e("v_lshl_add_u32 v48, v8, 4, v48")
    k.e("v_lshlrev_b32 v49, 6, v7")
    k.e("v_and_b32 v9, 3, v8")
    k.e("v_lshl_add_u32 v49, v9, 4, v49")
    k.e("v_lshrrev_b32 v9, 2, v8")
    k.e(f"s_movk_i32 s45, {224*64}")
    k.e("v_mad_u32_u24 v49, v9, s45, v49")
    k.e(f"v_add_u32 v49, {ABUF}, v49")
    k.e(f"s_mul_i32 s35, s30, {64*3584}")
    k.e("s_lshl_b32 s36, s31, 7")

    def g_loads():
        for i in range(7):
            k.e(f"buffer_load_dwordx4 {vr(VPA+4*i,4)}, v{32+i}, s[8:11], s35 offen")
        k.e("s_mov_b32 s37, s36")
        for i in range(7):
            k.e(f"buffer_load_dwordx4 {vr(VPB+4*i,4)}, v48, s[12:15], s37 offen")
            if i < 6:
                k.e(f"s_add_u32 s37, s37, {32*896}")
        k.e("s_add_u32 s35, s35, 448")
        k.e(f"s_add_u32 s36, s36, {224*896}")

    def l_writes(buf):
        for i in range(7):
            k.e(f"ds_write_b128 v{(50 if buf else 40)+i}, {vr(VPA+4*i,4)}")
        for i in range(7):
            k.e(f"ds_write_b128 v{57 if buf else 49}, {vr(VPB+4*i,4)} offset:{i*32*64}")

    g_loads()
    for i in range(7):
        k.e(f"v_add_u32 v{50+i}, {BUF}, v{40+i}")
    k.e(f"v_add_u32 v57, {BUF}, v49")
    tr_addr(k)
    k.e("s_and_b32 s38, s3, 1")
    k.e(f"s_mul_i32 s38, s38, {224*64}")
    k.e(f"s_add_u32 s38, s38, {ABUF}")
    k.e("v_add_u32 v21, s38, v21")
    k.e("s_lshr_b32 s39, s3, 1")
    k.e("v_and_b32 v25, 31, v1")
    k.e("v_lshrrev_b32 v26, 5, v1")
    k.e("s_lshl_b32 s40, s39, 5")
    k.e("v_add_u32 v20, s40, v25")
    k.e(f"s_movk_i32 s45, {AST}")
    k.e("v_mul_u32_u24 v20, s45, v20")
    k.e("v_lshl_add_u32 v20, v26, 4, v20")
    k.e(f"v_add_u32 v58, {BUF}, v20")
    k.e(f"v_add_u32 v59, {BUF}, v21")
    k.e("s_waitcnt vmcnt(0)")
    l_writes(0)
    g_loads()
    k.e("s_waitcnt lgkmcnt(0)")
    k.e("s_barrier")
    for c in range(8):
        buf = c & 1

        def rd(s_):
            a = VAF + 4 * (s_ % 4)
            b = VBF + 4 * (s_ % 4)
            k.e(f"ds_read_b128 {vr(a,4)}, v{58 if buf else 20} offset:{32*s_}")
            k.e(f"ds_read_b64_tr_b16 v[{b}:{b+1}], v{59 if buf else 21} offset:{1024*s_}")
            k.e(f"ds_read_b64_tr_b16 v[{b+2}:{b+3}], v{59 if buf else 21} offset:{1024*s_ + 256}")
        for s_ in range(3):
            rd(s_)
        for s_ in range(14):
            if s_ + 3 < 14:
                rd(s_ + 3)
                k.e("s_waitcnt lgkmcnt(9)")
            else:
                k.e(f"s_waitcnt lgkmcnt({3*(13-s_)})")
            a = VAF + 4 * (s_ % 4)
            b = VBF + 4 * (s_ % 4)
            k.mfma(ACC, b, a, "0" if (c == 0 and s_ == 0) else ACC)
        if c + 1 < 8:
            k.e("s_waitcnt vmcnt(0)")
            l_writes(buf ^ 1)
            if c + 2 < 8:
                g_loads()
            k.e("s_waitcnt lgkmcnt(0)")
            k.e("s_barrier")
    k.e("s_lshl_b32 s41, s30, 6")
    k.e("s_add_u32 s41, s41, s40")
    k.e("v_add_u32 v23, s41, v25")
    k.e("s_movk_i32 s45, 896")
    k.e("v_mul_u32_u24 v23, s45, v23")
    k.e("v_lshl_add_u32 v23, v26, 3, v23")
    k.e("s_lshl_b32 s42, s31, 7")
    k.e("s_and_b32 s43, s3, 1")
    k.e("s_lshl_b32 s43, s43, 6")
    k.e("s_add_u32 s42, s42, s43")
    for g in range(4):
        k.e(f"buffer_load_dwordx2 v[{28+2*g}:{29+2*g}], v23, s[24:27], s42 offen offset:{16*g}")
    k.nop(16)
    k.e("s_waitcnt vmcnt(0)")
    for g in range(4):
        for h in range(2):
            src = 28 + 2 * g + h
            k.e(f"v_lshlrev_b32 v36, 16, v{src}")
            k.e(f"v_and_b32 v37, 0xffff0000, v{src}")
            k.e(f"v_add_f32 v36, v36, v{ACC+4*g+2*h}")
            k.e(f"v_add_f32 v37, v37, v{ACC+4*g+2*h+1}")
            k.e(f"v_cvt_pk_bf16_f32 v{src}, v36, v37")
    for g in range(4):
        k.e(f"buffer_store_dwordx2 v[{28+2*g}:{29+2*g}], v23, s[16:19], s42 offen offset:{16*g}")
    finish(k)
    return k


HEADER = open("cdna_kernels/" + NAME + ".s.ref").read().split("; Override")[0]


def build(nk=5):
    ks = [(gen_k1(), 256, 4 * A_WAVE, 256), (gen_k2(), 256, 3 * (256 * 80 + 32 * 528) + 64, 512), (gen_k3(), 224, 4 * A_WAVE, 256),
          (gen_k4(), 224, 4 * A_WAVE, 256), (gen_k5(), 224, 2 * (64 * 464 + 28672), 256)][:nk]
    out = [HEADER.rstrip("\n")]
    for k, g, lds, blk in ks:
        out.append(f"; @launch kernel={k.name} grid=({g},1,1) block=({blk},1,1) lds={lds}")
    out.append('.amdgcn_target "amdgcn-amd-amdhsa--gfx950"')
    out.append(".text")
    for k, g, lds, blk in ks:
        out.append(f".globl {k.name}")
        out.append(".p2align 8")
        out.append(f".type {k.name},@function")
        out.append(f"{k.name}:")
        out += [l for l in k.L if l is not None]
    out.append('.section .rodata,"a"')
    for k, g, lds, blk in ks:
        out.append(".p2align 6")
        out.append(f".amdhsa_kernel {k.name}")
        out.append("  .amdhsa_next_free_vgpr 256")
        out.append("  .amdhsa_next_free_sgpr 102")
        out.append("  .amdhsa_accum_offset 256")
        out.append("  .amdhsa_group_segment_fixed_size 0")
        out.append("  .amdhsa_kernarg_size 80")
        out.append("  .amdhsa_user_sgpr_count 2")
        out.append("  .amdhsa_user_sgpr_kernarg_segment_ptr 1")
        out.append("  .amdhsa_system_sgpr_workgroup_id_x 1")
        out.append(".end_amdhsa_kernel")
    return "\n".join(out) + "\n"


if __name__ == "__main__":
    txt = build()
    open(OUT or ("cdna_kernels/" + NAME + ".s"), "w").write(txt)
    print("written", len(txt))
```

```python
import math, sys, os
import gen as G
from gen import K, vr, f2u, finish, NAME, S, D, H, DH, F, HEADER

STAMP = G.STAMP
OUT = os.environ.get("OUT", "")
WS_Q, WS_K, WS_V = 0x0, 0x200000, 0x400000
WS_O = 0x600000
WS_H = 0x800000
WS_ACT = 0xA00000
WS_ST = 0x1200000
ROT = int(os.environ.get("ROT", "7"))
SC1 = int(os.environ.get("SC1", "11"))
EXP = int(os.environ.get("EXP", "0"))
SCF = os.environ.get("SCF", "sc1")


WS_CS = 0x1240000


def cap(k, fn, *a):
    n0 = len(k.L)
    fn(*a)
    out = k.L[n0:]
    del k.L[n0:]
    return out


def pieces(lines):
    out, cur = [], []
    for l in lines:
        cur.append(l)
        if "buffer_load" in l:
            out.append(cur)
            cur = []
    if cur:
        out[-1] += cur
    return out


def dma(k, voff, srd, soff, m0expr):
    k.e(f"buffer_load_dwordx4 {voff}, s[{srd}:{srd+3}], {soff} offen lds")


def gen_sk(which):
    is3 = which == 3
    name = "k3_wo_kernel" if is3 else "k5_down_kernel"
    k = K(name)
    NKS = 32 if is3 else 112
    NST = NKS // 4
    DEP = int(os.environ.get("DEP3" if is3 else "DEP5", "8"))
    ACC = 64
    VAF = 128
    VBF = 192
    k.e("s_cmp_ge_u32 s2, 224")
    k.e(f"s_cbranch_scc1 {k.name}_" + ("cs" if is3 else "end"))
    k.e("s_load_dwordx2 s[28:29], s[0:1], 72")
    k.e(f"s_load_dwordx2 s[6:7], s[0:1], {16 if is3 else 48}")
    if is3:
        k.e("s_load_dwordx2 s[20:21], s[0:1], 0")
    else:
        k.e("s_load_dwordx2 s[20:21], s[0:1], 56")
    k.e("v_and_b32 v1, 63, v0")
    k.e("v_lshrrev_b32 v2, 6, v0")
    k.e("s_and_b32 s30, s2, 7")
    k.e("s_lshr_b32 s31, s2, 3")
    k.e("v_readfirstlane_b32 s3, v2")
    k.e("s_and_b32 s32, s31, 3")
    k.e("s_lshl_b32 s30, s30, 2")
    k.e("s_add_u32 s30, s30, s32")
    k.e("s_lshr_b32 s31, s31, 2")
    k.stamp()
    k.e("v_lshlrev_b32 v3, 4, v1")
    k.e("v_lshrrev_b32 v4, 3, v1")
    k.e("v_and_b32 v5, 7, v1")
    k.e("v_bfe_u32 v6, v1, 4, 1")
    k.e("v_lshlrev_b32 v6, 2, v6")
    k.e("v_xor_b32 v5, v5, v6")
    k.e("s_movk_i32 s44, 896")
    if is3:
        k.e("s_and_b32 s33, s3, 1")
        k.e("s_lshl_b32 s33, s33, 4")
        k.e("v_add_u32 v6, s33, v4")
        k.e("v_add_u32 v7, 8, v6")
        k.e("v_min_u32 v7, 27, v7")
        k.e("v_mul_u32_u24 v6, s44, v6")
        k.e("v_mul_u32_u24 v7, s44, v7")
        k.e("v_lshl_add_u32 v6, v5, 4, v6")
        k.e("v_lshl_add_u32 v7, v5, 4, v7")
    else:
        k.e("v_mul_u32_u24 v6, s44, v4")
        k.e("v_lshl_add_u32 v6, v5, 4, v6")
        k.e(f"v_add_u32 v7, {8*896}, v6")
    k.e("s_waitcnt lgkmcnt(0)")
    k.srd(8, 28, WS_O if is3 else WS_ACT, 64 * NKS * 1024)
    k.srd(12, 6, 0, (D if is3 else F) * D * 2)
    k.e(f"s_mul_i32 s34, s30, {2*NKS*1024}")
    k.e("s_lshl_b32 s35, s3, 10")
    k.e("s_add_u32 s34, s34, s35")
    k.e("s_lshl_b32 s36, s31, 7")
    if is3:
        k.e("s_lshr_b32 s37, s3, 1")
        k.e(f"s_mul_i32 s37, s37, {28*896}")
        bstep = 2 * 28 * 896
    else:
        k.e(f"s_mul_i32 s37, s3, {16*896}")
        bstep = 64 * 896
    k.e("s_add_u32 s36, s36, s37")
    k.e(f"s_mul_i32 s38, s3, {DEP*2048}")
    if ROT & 1:
        ca, cb = (1, 2) if is3 else (4, 7)
        k.e(f"s_mul_i32 s47, s31, {ca}")
        k.e(f"s_mul_i32 s48, s32, {cb}")
        k.e("s_add_u32 s47, s47, s48")
        k.e(f"s_cmp_ge_u32 s47, {NST}")
        k.e(f"s_cselect_b32 s48, {NST}, 0")
        k.e("s_sub_u32 s47, s47, s48")
        k.e("s_lshl_b32 s48, s47, 12")
        k.e("s_add_u32 s34, s34, s48")
        k.e(f"s_mul_i32 s48, s47, {bstep}")
        k.e("s_add_u32 s36, s36, s48")

    def issue(t):
        sl = t % DEP
        a = VAF + 8 * sl
        k.e(f"buffer_load_dwordx4 {vr(a,4)}, v3, s[8:11], s34 offen")
        k.e(f"s_add_u32 s39, s34, {NKS*1024}")
        k.e(f"buffer_load_dwordx4 {vr(a+4,4)}, v3, s[8:11], s39 offen")
        k.e(f"s_add_u32 m0, s38, {sl*2048}")
        k.e("s_add_u32 s34, s34, 4096")
        k.e("buffer_load_dwordx4 v6, s[12:15], s36 offen lds")
        k.e(f"s_add_u32 m0, s38, {sl*2048+1024}")
        k.e("s_nop 0")
        k.e("buffer_load_dwordx4 v7, s[12:15], s36 offen lds")
        k.e(f"s_add_u32 s36, s36, {bstep}")
        if ROT & 1:
            k.e("s_add_u32 s47, s47, 1")
            k.e(f"s_cmp_eq_u32 s47, {NST}")
            k.e(f"s_cselect_b32 s48, {NST*4096}, 0")
            k.e(f"s_cselect_b32 s49, {NST*bstep}, 0")
            k.e("s_sub_u32 s34, s34, s48")
            k.e("s_sub_u32 s36, s36, s49")

    for t in range(min(DEP, NST)):
        issue(t)
    k.e("v_lshrrev_b32 v8, 5, v1")
    k.e("v_bfe_u32 v9, v1, 2, 2")
    k.e("v_lshl_add_u32 v10, v8, 2, v9")
    k.e("v_lshlrev_b32 v10, 7, v10")
    k.e("v_lshrrev_b32 v11, 1, v9")
    k.e("v_lshl_add_u32 v10, v11, 6, v10")
    k.e("v_bfe_u32 v11, v1, 4, 1")
    k.e("v_lshl_add_u32 v10, v11, 5, v10")
    k.e("v_and_b32 v11, 3, v1")
    k.e("v_lshl_add_u32 v10, v11, 3, v10")
    k.e("v_add_u32 v10, s38, v10")
    k.e("v_xor_b32 v11, 64, v10")

    def rdB(t):
        sl = t % DEP
        b = VBF + 8 * (t & 1)
        for ct in range(2):
            for i in range(2):
                k.e(f"ds_read_b64_tr_b16 v[{b+4*ct+2*i}:{b+4*ct+2*i+1}], v{10+ct} offset:{sl*2048+1024*i}")

    def outstanding_after(t):
        return None

    issued = min(DEP, NST)
    k.e(f"s_waitcnt vmcnt({4*(issued-1)})")
    k.stamp()
    rdB(0)
    for t in range(NST):
        if t + 1 < NST:
            k.e(f"s_waitcnt vmcnt({4*(issued-(t+2))})")
            rdB(t + 1)
            k.e("s_waitcnt lgkmcnt(4)")
        else:
            k.e("s_waitcnt lgkmcnt(0)")
        a = VAF + 8 * (t % DEP)
        b = VBF + 8 * (t & 1)
        for rt in range(2):
            for ct in range(2):
                acc = ACC + 16 * (2 * rt + ct)
                k.mfma(acc, b + 4 * ct, a + 4 * rt, "0" if t == 0 else acc)
        if issued < NST:
            issue(issued)
            issued += 1
    k.stamp()
    k.e("s_lshr_b32 s40, s3, 1")
    k.e("s_and_b32 s41, s3, 1")
    k.e("s_lshl_b32 s42, s30, 1")
    k.e("s_add_u32 s42, s42, s40")
    k.e("s_lshl_b32 s43, s31, 1")
    k.e("s_add_u32 s43, s43, s41")
    k.e("v_and_b32 v12, 31, v1")
    if is3:
        k.srd(16, 20, 0, S * D * 2)
        k.srd(24, 28, WS_H, 64 * 28 * 1024)
        k.e("s_lshl_b32 s45, s42, 5")
        k.e("v_add_u32 v13, s45, v12")
        k.e("v_mul_u32_u24 v13, s44, v13")
        k.e("v_lshl_add_u32 v13, v8, 3, v13")
        k.e("s_lshl_b32 s45, s43, 6")
        for g in range(4):
            k.e(f"buffer_load_dwordx2 v[{208+2*g}:{209+2*g}], v13, s[16:19], s45 offen offset:{16*g}")
    else:
        k.srd(16, 28, WS_H, 64 * 28 * 1024)
        k.srd(24, 20, 0, S * D * 2)
        k.e("s_mul_i32 s45, s42, 28")
        k.e("s_lshl_b32 s46, s43, 1")
        k.e("s_add_u32 s45, s45, s46")
        k.e("s_lshl_b32 s45, s45, 10")
        for g in range(2):
            k.e(f"buffer_load_dwordx4 v[{208+4*g}:{211+4*g}], v3, s[16:19], s45 offen offset:{1024*g}")
    k.e("s_barrier")
    k.nop(8)
    for o in range(4):
        skip = k.newlab("own")
        k.e(f"s_cmp_eq_u32 s3, {o}")
        k.e(f"s_cbranch_scc1 {skip}")
        k.e(f"s_sub_u32 s45, s3, {o+1}")
        k.e("s_and_b32 s45, s45, 3")
        k.e("s_lshl_b32 s45, s45, 12")
        k.e(f"s_add_u32 s45, s45, {o*3*4096}")
        k.e("v_add_u32 v14, s45, v3")
        for q in range(4):
            k.e(f"ds_write_b128 v14, {vr(ACC+16*o+4*q,4)} offset:{1024*q}")
        k.lab(skip)
    for o in range(4):
        skip = k.newlab("mv")
        k.e(f"s_cmp_lg_u32 s3, {o}")
        k.e(f"s_cbranch_scc1 {skip}")
        for r in range(16):
            k.e(f"v_mov_b32 v{128+r}, v{ACC+16*o+r}")
        k.lab(skip)
    k.e("s_waitcnt lgkmcnt(0)")
    k.e("s_barrier")
    k.e(f"s_mul_i32 s45, s3, {3*4096}")
    k.e("v_add_u32 v14, s45, v3")
    for sl in range(3):
        for q in range(4):
            k.e(f"ds_read_b128 {vr(144+16*sl+4*q,4)}, v14 offset:{4096*sl+1024*q}")
    for sl in range(3):
        k.e(f"s_waitcnt lgkmcnt({8-4*sl})")
        for r in range(16):
            k.e(f"v_add_f32 v{128+r}, v{128+r}, v{144+16*sl+r}")
    k.e("s_waitcnt vmcnt(0)")
    k.stamp()
    for p in range(8):
        src = 208 + p
        k.e(f"v_lshlrev_b32 v14, 16, v{src}")
        k.e(f"v_and_b32 v15, 0xffff0000, v{src}")
        k.e(f"v_add_f32 v14, v14, v{128+2*p}")
        k.e(f"v_add_f32 v15, v15, v{128+2*p+1}")
        k.e(f"v_cvt_pk_bf16_f32 v{src}, v14, v15")
    if is3:
        k.e("s_mul_i32 s45, s42, 28")
        k.e("s_lshl_b32 s46, s43, 1")
        k.e("s_add_u32 s45, s45, s46")
        k.e("s_lshl_b32 s45, s45, 10")
        for g in range(2):
            k.e(f"buffer_store_dwordx4 v[{208+4*g}:{211+4*g}], v3, s[24:27], s45 offen offset:{1024*g}")
        k.e("v_mov_b32 v16, 0")
        k.e("v_mov_b32 v17, 0")
        k.e("s_mov_b32 s46, 0x3f803f80")
        for p in range(8):
            k.e(f"v_dot2_f32_bf16 v16, v{208+p}, s46, v16")
            k.e(f"v_dot2_f32_bf16 v17, v{208+p}, v{208+p}, v17")
        k.e("s_nop 1")
        k.e("v_mov_b32 v18, v16")
        k.e("v_mov_b32 v19, v17")
        k.e("s_nop 1")
        k.e("v_permlane32_swap_b32 v16, v18")
        k.e("v_permlane32_swap_b32 v17, v19")
        k.e("s_nop 1")
        k.e("v_add_f32 v16, v16, v18")
        k.e("v_add_f32 v17, v17, v19")
        k.srd(16, 28, WS_ST, S * 14 * 8)
        k.e("s_lshl_b32 s45, s42, 5")
        k.e("v_add_u32 v13, s45, v12")
        k.e("v_lshlrev_b32 v13, 3, v13")
        k.e("s_lshl_b32 s45, s43, 14")
        k.e("v_cmp_gt_u32 vcc, 32, v1")
        k.e("s_and_saveexec_b64 s[46:47], vcc")
        k.e("buffer_store_dwordx2 v[16:17], v13, s[16:19], s45 offen")
    else:
        k.e("s_nop 1")
        for g in (0, 2):
            k.e(f"v_permlane32_swap_b32 v{208+2*g}, v{208+2*g+2}")
            k.e(f"v_permlane32_swap_b32 v{208+2*g+1}, v{208+2*g+3}")
        k.e("s_lshl_b32 s45, s42, 5")
        k.e("v_add_u32 v13, s45, v12")
        k.e("v_mul_u32_u24 v13, s44, v13")
        k.e("v_lshl_add_u32 v13, v8, 4, v13")
        k.e("s_lshl_b32 s45, s43, 6")
        k.e("s_nop 0")
        for g in range(2):
            k.e(f"buffer_store_dwordx4 v[{208+4*g}:{211+4*g}], v13, s[24:27], s45 offen offset:{32*g}")
    if is3:
        k.e(f"s_branch {k.name}_fin")
        k.lab(f"{k.name}_cs")
        k.e("s_cmp_ge_u32 s2, 252")
        k.e(f"s_cbranch_scc1 {k.name}_end")
        k.e("s_load_dwordx2 s[28:29], s[0:1], 72")
        k.e("s_load_dwordx2 s[4:5], s[0:1], 32")
        k.e("s_load_dwordx2 s[6:7], s[0:1], 40")
        k.e("v_and_b32 v1, 63, v0")
        k.e("v_lshrrev_b32 v2, 6, v0")
        k.e("s_sub_u32 s30, s2, 224")
        k.e("v_readfirstlane_b32 s3, v2")
        k.e("s_cmp_ge_u32 s30, 14")
        k.e("s_cselect_b32 s31, 14, 0")
        k.e("s_cselect_b32 s33, 1, 0")
        k.e("s_sub_u32 s32, s30, s31")
        k.e("v_lshrrev_b32 v4, 4, v1")
        k.e("v_and_b32 v5, 15, v1")
        k.e("s_movk_i32 s44, 3584")
        k.e("v_mul_u32_u24 v4, s44, v4")
        k.e("v_lshl_add_u32 v4, v5, 4, v4")
        k.e("s_waitcnt lgkmcnt(0)")
        k.e("s_cmp_eq_u32 s33, 1")
        k.e("s_cselect_b32 s4, s6, s4")
        k.e("s_cselect_b32 s5, s7, s5")
        k.srd(8, 4, 0, D * F * 2)
        k.e(f"s_mul_i32 s34, s3, {112*3584}")
        k.e("s_lshl_b32 s35, s32, 8")
        k.e("s_add_u32 s34, s34, s35")
        for n in range(28):
            k.e(f"buffer_load_dwordx4 {vr(64+4*n,4)}, v4, s[8:11], s34 offen")
            k.e(f"s_add_u32 s34, s34, {4*3584}")
        for r in range(8):
            k.e(f"v_mov_b32 v{16+r}, 0")
        for n in range(28):
            k.e(f"s_waitcnt vmcnt({27-n})")
            for d in range(4):
                x = 64 + 4 * n + d
                k.e(f"v_lshlrev_b32 v{24+2*d}, 16, v{x}")
                k.e(f"v_and_b32 v{25+2*d}, 0xffff0000, v{x}")
            for r in range(8):
                k.e(f"v_add_f32 v{16+r}, v{16+r}, v{24+r}")
        k.e("v_lshrrev_b32 v6, 4, v1")
        k.e("s_lshl_b32 s35, s3, 2")
        k.e("v_add_u32 v6, s35, v6")
        k.e("v_lshlrev_b32 v6, 9, v6")
        k.e("v_lshl_add_u32 v6, v5, 5, v6")
        k.e("ds_write_b128 v6, v[16:19]")
        k.e("ds_write_b128 v6, v[20:23] offset:16")
        k.e("s_waitcnt lgkmcnt(0)")
        k.e("s_barrier")
        k.e("s_cmp_ge_u32 s3, 2")
        k.e(f"s_cbranch_scc1 {k.name}_end")
        k.e("v_lshlrev_b32 v6, 2, v0")
        for j in range(16):
            k.e(f"ds_read_b32 v{32+j}, v6 offset:{512*j}")
        k.srd(12, 28, WS_CS, 2 * F * 4)
        k.e(f"s_mul_i32 s35, s33, {F*4}")
        k.e("s_lshl_b32 s36, s32, 9")
        k.e("s_add_u32 s35, s35, s36")
        k.e("s_waitcnt lgkmcnt(0)")
        for st in (8, 4, 2, 1):
            for j in range(st):
                k.e(f"v_add_f32 v{32+j}, v{32+j}, v{32+j+st}")
        k.e("buffer_store_dword v32, v6, s[12:15], s35 offen")
        k.e(f"s_branch {k.name}_end")
        k.lab(f"{k.name}_fin")
    finish(k)
    return k, 252 if is3 else 224, 4 * DEP * 2048 if 4 * DEP * 2048 > 48 * 1024 else 48 * 1024 + 0, 256


def gen_k4():
    k = K("k4_ffn_kernel")
    SLOT = 49152
    R = 3
    NSL = 7
    ACC = 192
    FR = [64, 128]
    PK = int(os.environ.get("PK", "1"))
    k.e("s_cmp_ge_u32 s2, 224")
    k.e(f"s_cbranch_scc1 {k.name}_end")
    k.e("s_load_dwordx2 s[28:29], s[0:1], 72")
    k.e("s_load_dwordx2 s[4:5], s[0:1], 32")
    k.e("s_load_dwordx2 s[6:7], s[0:1], 40")
    PF4 = int(os.environ.get("PF4", "1"))
    if PF4:
        k.e("s_load_dwordx2 s[50:51], s[0:1], 48")
    k.e("v_and_b32 v1, 63, v0")
    k.e("v_lshrrev_b32 v2, 6, v0")
    k.e("s_and_b32 s30, s2, 7")
    k.e("s_lshr_b32 s31, s2, 3")
    k.e("v_readfirstlane_b32 s3, v2")
    k.e("s_and_b32 s32, s30, 3")
    k.e("s_lshl_b32 s32, s32, 2")
    k.e("s_and_b32 s33, s31, 3")
    k.e("s_add_u32 s32, s32, s33")
    k.e("s_lshr_b32 s30, s30, 2")
    k.e("s_mul_i32 s30, s30, 7")
    k.e("s_lshr_b32 s31, s31, 2")
    if ROT & 2:
        k.e("s_lshl_b32 s47, s33, 1")
        k.e("s_add_u32 s47, s47, s31")
        k.e("s_cmp_ge_u32 s47, 7")
        k.e("s_cselect_b32 s48, 7, 0")
        k.e("s_sub_u32 s47, s47, s48")
    k.e("s_add_u32 s31, s31, s30")
    k.e("s_mov_b32 s30, s32")
    k.e("s_lshr_b32 s32, s3, 2")
    k.e("s_and_b32 s33, s3, 3")
    k.stamp()
    k.e("v_lshlrev_b32 v3, 4, v1")
    k.e("v_and_b32 v12, 31, v1")
    k.e("v_lshrrev_b32 v8, 5, v1")
    k.e("v_lshrrev_b32 v4, 4, v1")
    k.e("v_and_b32 v5, 15, v1")
    k.e("v_lshlrev_b32 v6, 2, v4")
    k.e("v_xor_b32 v5, v5, v6")
    k.e("s_movk_i32 s44, 3584")
    k.e("v_mul_u32_u24 v4, s44, v4")
    k.e("v_lshl_add_u32 v4, v5, 4, v4")
    k.e("s_lshl_b32 s36, s3, 10")
    k.e("s_lshl_b32 s37, s30, 2")
    k.e("s_add_u32 s37, s37, s32")
    k.e("s_mul_i32 s37, s37, 28")
    k.e("s_add_u32 s37, s37, s33")
    k.e("s_lshl_b32 s37, s37, 10")
    k.e(f"s_mul_i32 s38, s3, {4*3584}")
    k.e("s_lshl_b32 s39, s31, 8")
    k.e("s_add_u32 s38, s38, s39")
    if ROT & 2:
        k.e("s_lshl_b32 s48, s47, 12")
        k.e("s_add_u32 s37, s37, s48")
        k.e(f"s_mul_i32 s48, s47, {64*3584}")
        k.e("s_add_u32 s38, s38, s48")
    k.e("s_waitcnt lgkmcnt(0)")
    if EXP & 16:
        k.stamp()
    k.srd(8, 28, WS_H, 64 * 28 * 1024)
    k.srd(12, 4, 0, D * F * 2)
    k.srd(16, 6, 0, D * F * 2)

    def issue(sl):
        sb = (sl % R) * SLOT
        k.e(f"s_add_u32 m0, s36, {sb}")
        k.e(f"s_add_u32 s39, s37, {56*1024}")
        k.e("buffer_load_dwordx4 v3, s[8:11], s37 offen lds")
        k.e(f"s_add_u32 m0, s36, {sb+8192}")
        k.e("s_add_u32 s37, s37, 4096")
        k.e("buffer_load_dwordx4 v3, s[8:11], s39 offen lds")
        for u in range(2):
            k.e(f"s_add_u32 m0, s36, {sb+16384*(1+u)}")
            k.e(f"s_add_u32 s39, s38, {32*3584}")
            k.e(f"buffer_load_dwordx4 v4, s[{12+4*u}:{15+4*u}], s38 offen lds")
            k.e(f"s_add_u32 m0, s36, {sb+16384*(1+u)+8192}")
            k.e("s_nop 0")
            k.e(f"buffer_load_dwordx4 v4, s[{12+4*u}:{15+4*u}], s39 offen lds")
        k.e(f"s_add_u32 s38, s38, {64*3584}")
        if ROT & 2:
            k.e("s_add_u32 s47, s47, 1")
            k.e("s_cmp_eq_u32 s47, 7")
            k.e(f"s_cselect_b32 s48, {7*4096}, 0")
            k.e(f"s_cselect_b32 s49, {7*64*3584}, 0")
            k.e("s_sub_u32 s37, s37, s48")
            k.e("s_sub_u32 s38, s38, s49")

    K4S = int(os.environ.get("K4S", "1"))
    K4Q = int(os.environ.get("K4Q", "1")) if K4S else 0
    XB = R * SLOT
    issue(0)
    if int(os.environ.get("K4B", "1")) & 1:
        k.e("s_barrier")
    if not K4S:
        issue(1)
    if EXP & 16:
        k.stamp()
    k.srd(20, 28, WS_ST, S * 14 * 8)
    k.srd(24, 28, WS_ACT, 64 * 112 * 1024)
    k.srd(52, 28, WS_CS, 2 * F * 4)
    k.e("s_lshl_b32 s34, s30, 7")
    k.e("s_lshl_b32 s35, s32, 6")
    k.e("s_add_u32 s34, s34, s35")
    k.e("v_add_u32 v5, s34, v1")
    k.e("v_lshlrev_b32 v5, 3, v5")
    if K4S:
        k.e("s_lshl_b32 s40, s33, 14")
        for j in range(4):
            k.e(f"buffer_load_dwordx2 v[{36+2*j}:{37+2*j}], v5, s[20:23], s40 offen")
            if j < 3:
                k.e("s_add_u32 s40, s40, 65536")
        if not K4Q:
            issue(1)
        k.e("v_lshlrev_b32 v16, 3, v0")
        k.e(f"v_add_u32 v16, {XB}, v16")
        k.e("s_lshl_b32 s40, s32, 11")
        k.e("v_lshlrev_b32 v17, 3, v1")
        k.e("v_add_u32 v17, s40, v17")
        k.e(f"v_add_u32 v17, {XB}, v17")
    else:
        for q in range(14):
            k.e(f"s_mov_b32 s40, {q*16384}")
            k.e(f"buffer_load_dwordx2 v[{36+2*q}:{37+2*q}], v5, s[20:23], s40 offen")
    k.e("s_lshl_b32 s40, s32, 13")
    k.e("v_add_u32 v20, s40, v3")
    k.e(f"v_add_u32 v21, {SLOT}, v20")
    k.e(f"v_add_u32 v22, {2*SLOT}, v20")
    k.e("v_bfe_u32 v9, v1, 2, 2")
    k.e("v_lshl_add_u32 v10, v8, 2, v9")
    k.e("v_lshlrev_b32 v10, 8, v10")
    k.e("v_xor_b32 v11, s33, v9")
    k.e("v_lshl_add_u32 v10, v11, 6, v10")
    k.e("v_bfe_u32 v11, v1, 4, 1")
    k.e("v_lshl_add_u32 v10, v11, 5, v10")
    k.e("v_and_b32 v11, 3, v1")
    k.e("v_lshl_add_u32 v24, v11, 3, v10")
    k.e(f"v_add_u32 v25, {SLOT}, v24")
    k.e(f"v_add_u32 v26, {2*SLOT}, v24")
    k.e("v_lshlrev_b32 v6, 4, v8")
    k.e("s_lshl_b32 s41, s31, 9")
    k.e("s_lshl_b32 s42, s33, 7")
    k.e("s_add_u32 s41, s41, s42")
    k.e(f"s_add_u32 s42, s41, {F*4}")

    if EXP & 16:
        k.stamp()
    k1 = -2.0 * math.sqrt(2.0 / math.pi) * math.log2(math.e)
    k3 = k1 * 0.044715

    def csreg(u, g):
        idx = 4 * u + g
        return 36 + 4 * idx if idx < 7 else 16

    def stats():
        if K4S:
            k.e("v_add_f32 v44, v44, v46")
            k.e("v_add_f32 v45, v45, v47")
            k.e("v_add_f32 v48, v48, v50")
            k.e("v_add_f32 v49, v49, v51")
            k.e("v_add_f32 v36, v44, v48")
            k.e("v_add_f32 v37, v45, v49")
        else:
            for q in range(7):
                k.e(f"v_add_f32 v{36+2*q}, v{36+2*q}, v{50+2*q}")
                k.e(f"v_add_f32 v{37+2*q}, v{37+2*q}, v{51+2*q}")
            for (a, b) in ((0, 4), (1, 5), (2, 6), (0, 2), (1, 3), (0, 1)):
                k.e(f"v_add_f32 v{36+2*a}, v{36+2*a}, v{36+2*b}")
                k.e(f"v_add_f32 v{37+2*a}, v{37+2*a}, v{36+2*b+1}")
        k.e(f"s_mov_b32 s40, {hex(f2u(1.0/448))}")
        k.e("v_mul_f32 v13, s40, v36")
        k.e("v_mul_f32 v14, s40, v37")
        k.e("v_fma_f32 v14, -v13, v13, v14")
        k.e("v_max_f32 v14, 0, v14")
        k.e(f"v_add_f32 v34, {hex(f2u(1e-5))}, v14")
        k.e("v_rsq_f32 v15, v34")
        k.e("v_sub_f32 v28, 0, v13")
        k.e("v_mul_f32 v7, v15, v15")
        k.e("v_mul_f32 v7, v7, v15")
        k.e(f"v_mul_f32 v30, {hex(f2u(k1))}, v15")
        k.e(f"v_mul_f32 v32, {hex(f2u(k3))}, v7")
        for r in (28, 30, 32, 34):
            k.e(f"v_mov_b32 v{r+1}, v{r}")
        k.e("s_nop 1")
        for r in (34, 28, 30, 32):
            k.e(f"v_permlane32_swap_b32 v{r}, v{r+1}")

    def csloads():
        for u in range(2):
            for g in range(4):
                k.e(f"buffer_load_dwordx4 {vr(csreg(u,g),4)}, v6, s[52:55], s{41+u} offen offset:{32*g}")

    def reads(sl):
        fr = FR[sl & 1]
        s_ = sl % R
        for ks in range(4):
            for i in range(2):
                k.e(f"ds_read_b128 {vr(fr+16*ks+4*i,4)}, v{20+s_} offset:{4096*i+1024*ks}")
            for u in range(2):
                for h in range(2):
                    r0 = fr + 16 * ks + 8 + 4 * u + 2 * h
                    k.e(f"ds_read_b64_tr_b16 v[{r0}:{r0+1}], v{24+s_} offset:{16384*(1+u)+4096*ks+2048*h}")

    def mfmas(sl):
        fr = FR[sl & 1]
        for ks in range(4):
            for i in range(2):
                for u in range(2):
                    acc = ACC + 16 * (2 * i + u)
                    k.mfma(acc, fr + 16 * ks + 8 + 4 * u, fr + 16 * ks + 4 * i, "0" if (sl == 0 and ks == 0) else acc)

    wv = {0: 20, 1: 20, 2: 6, 3: 14, 4: 14, 5: 6, 6: 0}
    if K4S:
        wv = {0: 4 if K4Q else 10, 1: 6, 2: 6, 3: 6, 4: 14, 5: 14, 6: 0}

    def st_part():
        k.e("v_add_f32 v36, v36, v38")
        k.e("v_add_f32 v37, v37, v39")
        k.e("v_add_f32 v40, v40, v42")
        k.e("v_add_f32 v41, v41, v43")
        k.e("v_add_f32 v36, v36, v40")
        k.e("v_add_f32 v37, v37, v41")
        k.e("ds_write_b64 v16, v[36:37]")

    def st_read():
        for j in range(4):
            k.e(f"ds_read_b64 v[{44+2*j}:{45+2*j}], v17 offset:{512*j}")
    PFS = int(os.environ.get("PFS", "5"))
    if PF4:
        for s_ in range(PFS + 1, NSL):
            if s_ <= PFS + 2:
                wv[s_] += 1

    def pfload():
        k.e("v_min_u32 v7, 447, v0")
        k.e("v_lshlrev_b32 v7, 7, v7")
        k.e("s_lshr_b32 s43, s2, 3")
        k.e("s_mul_i32 s43, s43, 57344")
        k.srd(56, 50, 0, F * D * 2)
        k.e("buffer_load_dword v23, v7, s[56:59], s43 offen")
    for sl in range(NSL):
        if sl == 0 and EXP & 32:
            for c_ in (24, 20):
                k.e(f"s_waitcnt vmcnt({c_})")
                k.stamp()
        k.e(f"s_waitcnt vmcnt({wv[sl]}) lgkmcnt(0)")
        k.e("s_barrier")
        k.stamp()
        if K4Q and sl == 0:
            Rd = cap(k, reads, 0)
            P1 = pieces(cap(k, issue, 1))
            P2 = pieces(cap(k, issue, 2))
            M0 = [l for l in cap(k, mfmas, 0) if l is not None]
            k.L += Rd
            k.L += P1[0] + P1[1]
            k.e("s_waitcnt lgkmcnt(0)")
            for n in range(8):
                k.L.append(M0[n])
                if n < 4:
                    k.L += P1[2 + n]
            for p in P2:
                k.L += p
            continue
        if K4Q and sl == 1:
            Rd = cap(k, reads, 1)
            P3 = pieces(cap(k, issue, 3))
            X = cap(k, st_part)
            for n in range(8):
                k.L.append(M0[8 + n])
                k.L += Rd[3 * n:3 * n + 3]
                if n == 7:
                    k.L += X
            for p in P3:
                k.L += p
            continue
        P = pieces(cap(k, issue, sl + R - 1)) if sl + R - 1 < NSL else []
        Rd = cap(k, reads, sl)
        M = cap(k, mfmas, sl - 1) if sl >= 1 else []
        X = []
        if K4S:
            if sl == 1:
                X = cap(k, st_part)
            if sl == 2:
                X = cap(k, st_read)
            if sl == 3:
                X = cap(k, stats) + cap(k, csloads)
        elif sl == 2:
            X = cap(k, stats) + cap(k, csloads)
        if sl == PFS and PF4:
            X = X + cap(k, pfload)
        M = [l for l in M if l is not None]
        if not M:
            for p in P:
                k.L += p
            k.L += Rd
        else:
            xi = 0
            for n in range(16):
                k.L.append(M[n])
                if n < len(P):
                    k.L += P[n]
                if n < 12:
                    k.L += Rd[2 * n:2 * n + 2]
                if n >= 6 and X:
                    cnt = (len(X) + 9) // 10
                    k.L += X[xi:xi + cnt]
                    xi += cnt
            k.L += X[xi:]
    k.e("s_waitcnt lgkmcnt(0)")
    mfmas(NSL - 1)
    k.stamp()
    k.e("s_lshl_b32 s40, s30, 2")
    k.e("s_lshl_b32 s41, s32, 1")
    k.e("s_add_u32 s40, s40, s41")
    k.e("s_mul_i32 s40, s40, 112")
    k.e("s_lshl_b32 s41, s31, 2")
    k.e("s_add_u32 s41, s41, s33")
    k.e("s_lshl_b32 s41, s41, 1")
    k.e("s_add_u32 s40, s40, s41")
    k.e("s_lshl_b32 s40, s40, 10")
    k.nop(16)
    for i in range(2):
        ag = ACC + 16 * (2 * i)
        au = ACC + 16 * (2 * i + 1)
        T = 96
        sel = f"op_sel:[0,{i},{i}] op_sel_hi:[1,{i},{i}]"

        def pk(op, d, a, b, c=None, bsel=None, csel=None):
            if c is None:
                os_ = f"op_sel:[0,{bsel or 0}] op_sel_hi:[1,{1 if bsel is None else bsel}]"
                k.e(f"v_pk_{op}_f32 v[{d}:{d+1}], v[{a}:{a+1}], v[{b}:{b+1}] {os_}")
            else:
                os_ = (f"op_sel:[0,{bsel or 0},{csel or 0}] op_sel_hi:[1,{1 if bsel is None else bsel},"
                       f"{1 if csel is None else csel}]")
                k.e(f"v_pk_{op}_f32 v[{d}:{d+1}], v[{a}:{a+1}], v[{b}:{b+1}], v[{c}:{c+1}] {os_}")
        if PK:
            for r in range(0, 16, 2):
                cg = csreg(0, r >> 2) + (r & 3)
                cu = csreg(1, r >> 2) + (r & 3)
                pk("fma", ag + r, cg, 28, ag + r, bsel=i)
                pk("fma", au + r, cu, 28, au + r, bsel=i)
            for r in range(0, 16, 2):
                pk("mul", T + r, ag + r, ag + r)
            for r in range(0, 16, 2):
                pk("fma", T + r, T + r, 32, 30, bsel=i, csel=i)
            for r in range(0, 16, 2):
                pk("mul", T + r, T + r, ag + r)
            for r in range(16):
                k.e(f"v_exp_f32 v{T+r}, v{T+r}")
            for r in range(0, 16, 2):
                pk("mul", au + r, au + r, ag + r)
            for r in range(0, 16, 2):
                pk("fma", T + r, T + r, 34, 34, bsel=i, csel=i)
            for r in range(16):
                k.e(f"v_rcp_f32 v{T+r}, v{T+r}")
            k.e("s_nop 0")
            for r in range(0, 16, 2):
                pk("mul", au + r, au + r, T + r)
        else:
            for r in range(16):
                cg = csreg(0, r >> 2) + (r & 3)
                cu = csreg(1, r >> 2) + (r & 3)
                k.e(f"v_fma_f32 v{ag+r}, v{28+i}, v{cg}, v{ag+r}")
                k.e(f"v_fma_f32 v{au+r}, v{28+i}, v{cu}, v{au+r}")
            for r in range(16):
                k.e(f"v_mul_f32 v{T+r}, v{ag+r}, v{ag+r}")
            for r in range(16):
                k.e(f"v_fma_f32 v{T+r}, v{T+r}, v{32+i}, v{30+i}")
            for r in range(16):
                k.e(f"v_mul_f32 v{T+r}, v{T+r}, v{ag+r}")
            for r in range(16):
                k.e(f"v_exp_f32 v{T+r}, v{T+r}")
            for r in range(16):
                k.e(f"v_mul_f32 v{au+r}, v{au+r}, v{ag+r}")
            for r in range(16):
                k.e(f"v_fma_f32 v{T+r}, v{T+r}, v{34+i}, v{34+i}")
            for r in range(16):
                k.e(f"v_rcp_f32 v{T+r}, v{T+r}")
            k.e("s_nop 0")
            for r in range(16):
                k.e(f"v_mul_f32 v{au+r}, v{au+r}, v{T+r}")
        for p in range(8):
            k.e(f"v_cvt_pk_bf16_f32 v{T+16+p}, v{au+2*p}, v{au+2*p+1}")
        if i == 1:
            k.e(f"s_add_u32 s40, s40, {112*1024}")
        for g in range(2):
            k.e(f"buffer_store_dwordx4 {vr(T+16+4*g,4)}, v3, s[24:27], s40 offen offset:{1024*g}")
    finish(k)
    return k, 224, R * SLOT + (4096 if K4S else 0), 512


def gen_k1():
    k = K("k1_qkv_kernel")
    K1G = int(os.environ.get("K1G", "3"))
    SLOT = 32256 if K1G == 3 else 28672
    R = 5
    NSL = 7
    ACC = 192
    FR = [64, 128]
    SCR = 0 if K1G == 3 else R * SLOT
    k.e("s_cmp_ge_u32 s2, 256")
    k.e(f"s_cbranch_scc1 {k.name}_end")
    k.e("s_load_dwordx2 s[28:29], s[0:1], 72")
    k.e("s_load_dwordx2 s[4:5], s[0:1], 0")
    k.e("s_load_dwordx2 s[6:7], s[0:1], 8")
    k.e("v_and_b32 v1, 63, v0")
    k.e("v_lshrrev_b32 v2, 6, v0")
    k.e("s_and_b32 s30, s2, 7")
    k.e("s_lshr_b32 s31, s2, 3")
    k.e("v_readfirstlane_b32 s3, v2")
    k.e("s_and_b32 s32, s30, 3")
    k.e("s_lshl_b32 s32, s32, 2")
    k.e("s_and_b32 s33, s31, 3")
    k.e("s_add_u32 s32, s32, s33")
    k.e("s_lshr_b32 s30, s30, 2")
    k.e("s_lshl_b32 s30, s30, 3")
    k.e("s_lshr_b32 s31, s31, 2")
    if ROT & 4:
        k.e("s_lshl_b32 s47, s33, 1")
        k.e("s_add_u32 s47, s47, s31")
        k.e("s_cmp_ge_u32 s47, 7")
        k.e("s_cselect_b32 s48, 7, 0")
        k.e("s_sub_u32 s47, s47, s48")
    k.e("s_add_u32 s31, s31, s30")
    k.e("s_mov_b32 s30, s32")
    k.stamp()
    k.e("v_lshlrev_b32 v3, 4, v1")
    k.e("v_and_b32 v12, 31, v1")
    k.e("v_lshrrev_b32 v8, 5, v1")
    k.e("v_lshrrev_b32 v4, 3, v1")
    k.e("v_and_b32 v5, 7, v1")
    k.e("v_lshrrev_b32 v6, 4, v1")
    k.e("s_and_b32 s33, s3, 1")
    k.e("s_lshl_b32 s33, s33, 2")
    k.e("v_or_b32 v6, s33, v6")
    k.e("v_xor_b32 v5, v5, v6")
    k.e("s_movk_i32 s44, 896")
    k.e("v_mul_u32_u24 v4, s44, v4")
    k.e("v_lshl_add_u32 v4, v5, 4, v4")
    k.e("v_lshrrev_b32 v5, 2, v1")
    k.e("s_movk_i32 s45, 2688")
    k.e("v_mul_u32_u24 v5, s45, v5")
    k.e("v_and_b32 v6, 3, v1")
    k.e("v_lshl_add_u32 v5, v6, 4, v5")
    if K1G == 3:
        k.e("v_min_u32 v13, 223, v0")
        k.e("v_lshlrev_b32 v13, 4, v13")
        k.e("v_add_u32 v13, 28672, v13")
        for r in range(52, 56):
            k.e(f"v_mov_b32 v{r}, 0x3f803f80")
        k.e(f"v_add_u32 v14, {2*SLOT}, v13")
        k.e(f"v_add_u32 v15, {4*SLOT}, v13")
        k.e("ds_write_b128 v13, v[52:55]")
        k.e(f"ds_write_b128 v13, v[52:55] offset:{SLOT}")
        k.e("ds_write_b128 v14, v[52:55]")
        k.e(f"ds_write_b128 v14, v[52:55] offset:{SLOT}")
        k.e("ds_write_b128 v15, v[52:55]")
    k.e("s_waitcnt lgkmcnt(0)")
    k.srd(8, 4, 0, S * D * 2)
    k.srd(12, 6, 0, D * 3 * D * 2)
    k.e("s_lshl_b32 s33, s31, 17")
    k.e("s_add_u32 s16, s28, s33")
    k.e("s_addc_u32 s17, s29, 0")
    k.e(f"s_mov_b32 s18, {hex(0x400000 + 0x20000)}")
    k.e("s_mov_b32 s19, 0x00020000")
    k.e("s_lshl_b32 s36, s3, 10")
    k.e("s_lshl_b32 s37, s30, 7")
    k.e("s_lshl_b32 s38, s3, 3")
    k.e("s_add_u32 s37, s37, s38")
    k.e("s_mul_i32 s37, s37, 896")
    k.e(f"s_mul_i32 s38, s3, {16*2688}")
    k.e("s_mul_i32 s39, s31, 56")
    k.e("s_add_u32 s38, s38, s39")
    if ROT & 4:
        k.e("s_lshl_b32 s48, s47, 7")
        k.e("s_add_u32 s37, s37, s48")
        k.e(f"s_mul_i32 s48, s47, {64*2688}")
        k.e("s_add_u32 s38, s38, s48")

    def issue(sl):
        sb = (sl % R) * SLOT
        for i in range(4):
            k.e(f"s_add_u32 m0, s36, {sb+4096*i}")
            k.e(f"s_add_u32 s39, s37, {32*896*i}")
            k.e("buffer_load_dwordx4 v4, s[8:11], s39 offen lds")
        for sg in range(3):
            k.e(f"s_add_u32 m0, s36, {sb+16384+4096*sg}")
            k.e(f"s_add_u32 s39, s38, {896*sg}")
            k.e("buffer_load_dwordx4 v5, s[12:15], s39 offen lds")
        k.e("s_add_u32 s37, s37, 128")
        k.e(f"s_add_u32 s38, s38, {64*2688}")
        if ROT & 4:
            k.e("s_add_u32 s47, s47, 1")
            k.e("s_cmp_eq_u32 s47, 7")
            k.e(f"s_cselect_b32 s48, {7*128}, 0")
            k.e(f"s_cselect_b32 s49, {7*64*2688}, 0")
            k.e("s_sub_u32 s37, s37, s48")
            k.e("s_sub_u32 s38, s38, s49")

    K1P = int(os.environ.get("K1P", "4"))
    K1N = int(os.environ.get("K1N", "1"))
    K1R = int(os.environ.get("K1R", "3"))
    K1C = int(os.environ.get("K1C", "12"))
    for sl in range(K1P):
        issue(sl)
    k.stamp()
    k.e("v_bfe_u32 v9, v1, 1, 3")
    k.e("v_xor_b32 v9, v9, v8")
    k.e("v_lshlrev_b32 v9, 4, v9")
    k.e("v_lshl_add_u32 v9, v12, 7, v9")
    k.e("s_lshl_b32 s40, s3, 12")
    k.e("v_add_u32 v9, s40, v9")
    for grp in range(3):
        for ks in range(4):
            r = 16 + 4 * grp + ks
            k.e(f"v_xor_b32 v{r}, {ks<<5}, v9")
            if grp:
                k.e(f"v_add_u32 v{r}, {2*grp*SLOT}, v{r}")
    k.e("v_lshlrev_b32 v10, 9, v8")
    k.e("v_bfe_u32 v11, v1, 2, 2")
    k.e("v_lshl_add_u32 v10, v11, 6, v10")
    k.e("v_bfe_u32 v11, v1, 4, 1")
    k.e("v_lshl_add_u32 v10, v11, 5, v10")
    k.e("v_and_b32 v11, 3, v1")
    k.e("v_lshl_add_u32 v28, v11, 3, v10")
    k.e(f"v_add_u32 v29, {2*SLOT}, v28")
    k.e(f"v_add_u32 v30, {4*SLOT}, v28")
    if K1G == 3:
        k.e("v_and_b32 v10, 19, v1")
        k.e("v_cmp_eq_u32 vcc, 19, v10")
        k.e("v_mov_b32 v11, 12288")
        k.e("v_cndmask_b32 v56, v28, v11, vcc")
        k.e(f"v_add_u32 v57, {2*SLOT}, v56")
        k.e(f"v_add_u32 v58, {4*SLOT}, v56")
    for r in range(32, 52):
        k.e(f"v_mov_b32 v{r}, 0")
    k.e("s_mov_b32 s46, 0x3f803f80")
    for r in range(52, 56):
        k.e(f"v_mov_b32 v{r}, s46")

    def reads(sl):
        fr = FR[sl & 1]
        s_ = sl % R
        grp, o = s_ >> 1, (s_ & 1) * SLOT
        for ks in range(4):
            k.e(f"ds_read_b128 {vr(fr+16*ks,4)}, v{16+4*grp+ks} offset:{o}")
            for sg in range(3):
                for h in range(2):
                    r0 = fr + 16 * ks + 4 + 4 * sg + 2 * h
                    ar = 56 + grp if (K1G == 3 and sg == 0) else 28 + grp
                    k.e(f"ds_read_b64_tr_b16 v[{r0}:{r0+1}], v{ar} offset:{o+16384+4096*sg+1024*ks+256*h}")

    def mfm(sl, stat=True):
        fr = FR[sl & 1]
        for ks in range(4):
            a = fr + 16 * ks
            c0 = (sl == 0 and ks == 0)
            k.mfma(ACC, a + 4, a, "0" if c0 else ACC)
            k.mfma(ACC + 16, a + 8, a, "0" if c0 else ACC + 16)
            k.mfma(ACC + 32, a, a + 12, "0" if c0 else ACC + 32)
            if K1G in (1, 2) and stat:
                stm(sl, ks)

    def stm(sl, ks):
        a = FR[sl & 1] + 16 * ks
        c0 = (sl == 0 and ks == 0)
        if K1G == 1:
            k.e(f"v_mfma_f32_32x32x16_bf16 a[0:15], v[52:55], v[{a}:{a+3}], " + ("0" if c0 else "a[0:15]"))
        k.e(f"v_mfma_f32_32x32x16_bf16 a[16:31], v[{a}:{a+3}], v[{a}:{a+3}], " + ("0" if c0 else "a[16:31]"))

    def dots(sl):
        if K1G == 1:
            return
        fr = FR[sl & 1]
        for ks in range(4):
            a = fr + 16 * ks
            for j in range(4):
                if K1G != 3:
                    k.e(f"v_dot2_f32_bf16 v{32+j}, v{a+j}, s46, v{32+j}")
                if K1G in (0, 3):
                    k.e(f"v_dot2_f32_bf16 v{36+j}, v{a+j}, v{a+j}, v{36+j}")

    def csum(sl):
        fr = FR[sl & 1]
        done = k.newlab("csd")
        for w in range(4):
            nx = k.newlab("cs")
            if w < 3:
                k.e(f"s_cmp_eq_u32 s3, {w}")
                k.e(f"s_cbranch_scc0 {nx}")
            for j in range(12):
                k.e(f"v_dot2_f32_bf16 v{40+j}, v{fr+16*w+4+j}, s46, v{40+j}")
            if w < 3:
                k.e(f"s_branch {done}")
                k.lab(nx)
        k.lab(done)

    issued = K1P
    for sl in range(NSL):
        pend = issued - 1 - sl
        k.e(f"s_waitcnt vmcnt({7*pend}) lgkmcnt(0)")
        k.e("s_barrier")
        k.stamp()
        P = []
        for _ in range(K1N):
            if issued < min(NSL, sl + R):
                P += pieces(cap(k, issue, issued))
                issued += 1
        Rd = cap(k, reads, sl)
        if sl == 0:
            k.L += Rd
            for p in P:
                k.L += p
        else:
            M = [l for l in cap(k, mfm, sl - 1) if l is not None]
            Dd = cap(k, dots, sl - 1)
            assert len(M) == (12, 20, 16, 12)[K1G], M
            ri = di = 0
            for n in range(len(M)):
                k.L.append(M[n])
                per = (len(P) + 11) // 12
                for p in P[n * per:(n + 1) * per]:
                    k.L += p
                c = (3 if n < 4 else 2) if K1R == 0 else K1R
                k.L += Rd[ri:ri + c]
                ri += c
                c = (2 if n < 8 else 4) if K1R == 0 else (0 if n < 4 else 4)
                if K1G == 2:
                    c = 1
                if K1G == 3:
                    c = 0 if n < 4 else 2
                k.L += Dd[di:di + c]
                di += c
                if K1G in (1, 2) and n == K1C:
                    csum(sl - 1)
            assert ri >= 28 and di >= len(Dd)
            if K1G in (0, 3):
                csum(sl - 1)
    k.e("s_waitcnt lgkmcnt(0)")
    Ml = [l for l in cap(k, mfm, NSL - 1, False) if l is not None]
    if K1G == 3:
        k.L += Ml[0::3]
        Ml = [m for i, m in enumerate(Ml) if i % 3]
    dots(NSL - 1)
    if K1G in (1, 2):
        for ks in range(4):
            stm(NSL - 1, ks)
    csum(NSL - 1)
    n_e0 = len(k.L)
    if K1G == 3:
        k.e("v_cmp_le_u32 vcc, 32, v1")
        k.e("v_add_f32 v36, v36, v37")
        k.e("v_add_f32 v38, v38, v39")
        k.e(f"v_cndmask_b32 v32, 0, v{ACC+12}, vcc")
        k.e("v_add_f32 v36, v36, v38")
    if K1G in (1, 2):
        k.nop(32)
        if K1G == 1:
            k.e("v_accvgpr_read_b32 v32, a0")
        else:
            k.e("v_add_f32 v32, v32, v33")
            k.e("v_add_f32 v34, v34, v35")
            k.e("v_add_f32 v32, v32, v34")
        for r in range(16):
            k.e(f"v_accvgpr_read_b32 v{160+r}, a{16+r}")
        k.e("v_cmp_gt_u32 vcc, 32, v1")
        k.e("v_and_b32 v13, 1, v1")
        k.e("s_nop 1")
        if K1G == 1:
            k.e("v_cndmask_b32 v32, 0, v32, vcc")
        k.e("v_cmp_eq_u32 vcc, 1, v13")
        k.e("v_and_b32 v13, 2, v1")
        k.e("v_cmp_eq_u32 s[38:39], 2, v13")
        k.e("v_and_b32 v13, 8, v1")
        k.e("v_cmp_eq_u32 s[40:41], 8, v13")
        for r in range(8):
            k.e(f"v_cndmask_b32 v{160+2*r}, v{160+2*r}, v{161+2*r}, vcc")
        k.e("v_and_b32 v13, 16, v1")
        k.e("v_cmp_eq_u32 vcc, 16, v13")
        for r in range(4):
            k.e(f"v_cndmask_b32 v{160+4*r}, v{160+4*r}, v{162+4*r}, s[38:39]")
        k.e("v_bfe_u32 v13, v1, 2, 1")
        k.e("v_cmp_eq_u32 s[38:39], v13, v8")
        for r in range(2):
            k.e(f"v_cndmask_b32 v{160+8*r}, v{160+8*r}, v{164+8*r}, s[40:41]")
        k.e("s_nop 0")
        k.e("v_cndmask_b32 v160, v160, v168, vcc")
        k.e("v_cndmask_b32 v36, 0, v160, s[38:39]")
    k.stamp()
    k.e("s_nop 1")
    if not K1G:
        k.e("v_add_f32 v32, v32, v33")
        k.e("v_add_f32 v34, v34, v35")
        k.e("v_add_f32 v36, v36, v37")
        k.e("v_add_f32 v38, v38, v39")
        k.e("v_add_f32 v32, v32, v34")
        k.e("v_add_f32 v36, v36, v38")
    for t in range(3):
        k.e(f"v_add_f32 v{40+4*t}, v{40+4*t}, v{41+4*t}")
        k.e(f"v_add_f32 v{42+4*t}, v{42+4*t}, v{43+4*t}")
        k.e(f"v_add_f32 v{40+4*t}, v{40+4*t}, v{42+4*t}")
    k.e("v_mov_b32 v33, v32")
    k.e("v_mov_b32 v37, v36")
    k.e("s_lshl_b32 s40, s3, 3")
    k.e(f"s_add_u32 s40, s40, {SCR}")
    k.e("v_lshlrev_b32 v13, 5, v12")
    k.e("v_lshl_add_u32 v13, v8, 2, v13")
    k.e("v_add_u32 v13, s40, v13")
    for t in range(3):
        k.e(f"ds_write_b32 v13, v{40+4*t} offset:{1024*t}")
    k.e("v_permlane32_swap_b32 v32, v33")
    k.e("v_permlane32_swap_b32 v36, v37")
    k.e("s_nop 1")
    k.e("v_add_f32 v32, v32, v33")
    k.e("v_add_f32 v36, v36, v37")
    k.e(f"s_mov_b32 s40, {hex(f2u(1.0/448))}")
    k.e("v_mul_f32 v32, s40, v32")
    k.e("v_mul_f32 v36, s40, v36")
    k.e("v_fma_f32 v36, -v32, v32, v36")
    k.e("v_max_f32 v36, 0, v36")
    k.e(f"v_add_f32 v36, {hex(f2u(1e-5))}, v36")
    k.e("v_rsq_f32 v33, v36")
    k.e("s_nop 0")
    k.e("v_mov_b32 v34, v32")
    k.e("v_mov_b32 v35, v33")
    k.e("s_lshl_b32 s40, s3, 8")
    k.e(f"s_add_u32 s40, s40, {SCR+4096}")
    k.e("v_lshl_add_u32 v14, v12, 3, s40")
    k.e("ds_write_b64 v14, v[34:35]")
    k.e("s_waitcnt lgkmcnt(0)")
    k.e("s_barrier")
    k.e("v_lshlrev_b32 v13, 5, v1")
    k.e(f"v_add_u32 v13, {SCR}, v13")
    k.e("ds_read_b128 v[40:43], v13")
    k.e("ds_read_b128 v[44:47], v13 offset:16")
    k.e("v_lshlrev_b32 v13, 5, v12")
    k.e(f"v_add_u32 v13, {SCR+2048}, v13")
    k.e("ds_read_b128 v[48:51], v13")
    k.e("ds_read_b128 v[52:55], v13 offset:16")
    k.e("v_lshlrev_b32 v14, 5, v8")
    k.e("v_add_u32 v14, s40, v14")
    for g in range(4):
        k.e(f"ds_read_b128 {vr(128+8*g,4)}, v14 offset:{64*g}")
        k.e(f"ds_read_b128 {vr(132+8*g,4)}, v14 offset:{64*g+16}")
    k.e("s_waitcnt lgkmcnt(8)")
    for b in (40, 48):
        k.e(f"v_add_f32 v{b}, v{b}, v{b+1}")
        k.e(f"v_add_f32 v{b+2}, v{b+2}, v{b+3}")
        k.e(f"v_add_f32 v{b+4}, v{b+4}, v{b+5}")
        k.e(f"v_add_f32 v{b+6}, v{b+6}, v{b+7}")
        k.e(f"v_add_f32 v{b}, v{b}, v{b+2}")
        k.e(f"v_add_f32 v{b+4}, v{b+4}, v{b+6}")
        k.e(f"v_add_f32 v{b}, v{b}, v{b+4}")
    k.e("s_lshl_b32 s41, s3, 8")
    k.e(f"s_add_u32 s41, s41, {SCR+3072}")
    k.e("v_lshlrev_b32 v13, 2, v1")
    k.e("v_add_u32 v13, s41, v13")
    k.e("ds_write_b32 v13, v40")
    k.e("v_lshlrev_b32 v13, 4, v8")
    k.e("v_add_u32 v13, s41, v13")
    k.e("s_waitcnt lgkmcnt(0)")
    for u in range(2):
        for g in range(4):
            k.e(f"ds_read_b128 {vr(160+16*u+4*g,4)}, v13 offset:{128*u+32*g}")
    k.e("s_lshl_b32 s34, s30, 7")
    k.e("s_lshl_b32 s35, s3, 5")
    k.e("s_add_u32 s34, s34, s35")
    k.e("s_lshl_b32 s36, s34, 6")
    k.e("v_lshlrev_b32 v23, 4, v1")
    k.e("v_add_u32 v23, s36, v23")
    k.e(f"v_mul_f32 v34, {hex(f2u(DH ** -0.5 * math.log2(math.e)))}, v33")
    E = k.L[n_e0:]
    del k.L[n_e0:]
    M = Ml
    K1E = int(os.environ.get("K1E", "7" if K1G == 3 else "5"))
    ei = 0
    for n in range(len(M)):
        k.L.append(M[n])
        k.L += E[ei:ei + K1E]
        ei += K1E
    k.L += E[ei:]
    k.nop(16)
    k.e("s_waitcnt lgkmcnt(0)")
    for c in range(2):
        a = ACC + 16 * c
        rs = "v34" if c == 0 else "v33"
        for r in range(16):
            k.e(f"v_fma_f32 v{a+r}, -v32, v{160+16*c+r}, v{a+r}")
            k.e(f"v_mul_f32 v{a+r}, {rs}, v{a+r}")
        k.e("v_cmp_gt_u32 vcc, 32, v1")
        k.e("s_nop 1")
        for r in range(12, 16):
            pad = "1.0" if (c == 1 and r == 12) else "0"
            k.e(f"v_cndmask_b32 v{a+r}, {pad}, v{a+r}, vcc")
        for g in range(4):
            k.e(f"v_cvt_pk_bf16_f32 v{96+8*c+2*g}, v{a+4*g}, v{a+4*g+1}")
            k.e(f"v_cvt_pk_bf16_f32 v{97+8*c+2*g}, v{a+4*g+2}, v{a+4*g+3}")
        k.e(f"s_mov_b32 s37, {hex(c*0x200000)}")
        for g in range(2):
            k.e(f"buffer_store_dwordx4 v[{96+8*c+4*g}:{99+8*c+4*g}], v23, s[16:19], s37 offen offset:{1024*g}")
    a = ACC + 32
    for r in range(16):
        g, j = r >> 2, r & 3
        mreg = 128 + 8 * g + 2 * j
        k.e(f"v_fma_f32 v{a+r}, -v{mreg}, v48, v{a+r}")
        k.e(f"v_mul_f32 v{a+r}, v{mreg+1}, v{a+r}")
    k.e("v_cmp_gt_u32 vcc, 28, v12")
    k.e("v_cmp_eq_u32 s[38:39], 28, v12")
    k.e("v_cndmask_b32 v27, 0, 1.0, s[38:39]")
    k.e("s_nop 1")
    for r in range(16):
        k.e(f"v_cndmask_b32 v{a+r}, v27, v{a+r}, vcc")
    for r in range(8):
        k.e(f"v_cvt_pk_bf16_f32 v{112+r}, v{a+2*r}, v{a+2*r+1}")
    k.e("s_mov_b32 s37, 0x400000")
    for g_ in range(2):
        k.e(f"buffer_store_dwordx4 v[{112+4*g_}:{115+4*g_}], v23, s[16:19], s37 offen offset:{1024*g_}")
    finish(k)
    return k, 256, (R * SLOT if K1G == 3 else SCR + 4096 + 1024), 256


def gen_k2():
    G.OFRAG = True
    k = G.gen_k2()
    return k, 256, 4 * 32768 + 64, 512


def build():
    ks = [gen_k1(), gen_k2(), gen_sk(3), gen_k4(), gen_sk(5)]
    out = [HEADER.rstrip("\n")]
    for k, g, lds, blk in ks:
        out.append(f"; @launch kernel={k.name} grid=({g},1,1) block=({blk},1,1) lds={lds}")
    out.append('.amdgcn_target "amdgcn-amd-amdhsa--gfx950"')
    out.append(".text")
    for k, g, lds, blk in ks:
        out.append(f".globl {k.name}")
        out.append(".p2align 8")
        out.append(f".type {k.name},@function")
        out.append(f"{k.name}:")
        idx = [kk[0] for kk in ks].index(k)
        L = [l for l in k.L if l is not None]
        if SC1 & (1 << idx):
            end = len(L)
            for n, l in enumerate(L):
                if l.strip().startswith(k.name + "_end"):
                    end = n
            nst = 0
            L2 = []
            for n, l in enumerate(L):
                if "buffer_store" in l and "s[56:59]" not in l and "s[92:95]" not in l:
                    l = l + " " + SCF
                    nst += 1
                L2.append(l)
            L = L2
            print("sc1 stores in", k.name, nst)
        out += L
    out.append('.section .rodata,"a"')
    for k, g, lds, blk in ks:
        out.append(".p2align 6")
        out.append(f".amdhsa_kernel {k.name}")
        out.append("  .amdhsa_next_free_vgpr " + ("512" if k.name.startswith("k1") else "256"))
        out.append("  .amdhsa_next_free_sgpr 102")
        out.append("  .amdhsa_accum_offset 256")
        out.append("  .amdhsa_group_segment_fixed_size 0")
        out.append("  .amdhsa_kernarg_size 80")
        out.append("  .amdhsa_user_sgpr_count 2")
        out.append("  .amdhsa_user_sgpr_kernarg_segment_ptr 1")
        out.append("  .amdhsa_system_sgpr_workgroup_id_x 1")
        out.append(".end_amdhsa_kernel")
    return "\n".join(out) + "\n"


if __name__ == "__main__":
    txt = build()
    open(OUT or ("cdna_kernels/" + NAME + ".s"), "w").write(txt)
    print("written", len(txt))
```

```python
import math, sys, os
import gen as G
from gen import K, vr, f2u, finish, NAME, S, D, H, DH, F, HEADER

STAMP = G.STAMP
OUT = os.environ.get("OUT", "")
WS_Q, WS_K, WS_V = 0x0, 0x200000, 0x400000
WS_O = 0x600000
WS_H = 0x800000
WS_ACT = 0xA00000
WS_ST = 0x1200000
ROT = int(os.environ.get("ROT", "7"))
SC1 = int(os.environ.get("SC1", "11"))
EXP = int(os.environ.get("EXP", "0"))
SCF = os.environ.get("SCF", "sc1")


WS_CS = 0x1240000


def cap(k, fn, *a):
    n0 = len(k.L)
    fn(*a)
    out = k.L[n0:]
    del k.L[n0:]
    return out


def pieces(lines):
    out, cur = [], []
    for l in lines:
        cur.append(l)
        if "buffer_load" in l:
            out.append(cur)
            cur = []
    if cur:
        out[-1] += cur
    return out


def dma(k, voff, srd, soff, m0expr):
    k.e(f"buffer_load_dwordx4 {voff}, s[{srd}:{srd+3}], {soff} offen lds")


def gen_sk(which):
    is3 = which == 3
    name = "k3_wo_kernel" if is3 else "k5_down_kernel"
    k = K(name)
    NKS = 32 if is3 else 112
    NST = NKS // 4
    DEP = int(os.environ.get("DEP3" if is3 else "DEP5", "4"))
    ACC = 64
    VAF = 128
    VBF = 192
    k.e("s_cmp_ge_u32 s2, 224")
    k.e(f"s_cbranch_scc1 {k.name}_" + ("cs" if is3 else "end"))
    k.e("s_load_dwordx2 s[28:29], s[0:1], 72")
    k.e(f"s_load_dwordx2 s[6:7], s[0:1], {16 if is3 else 48}")
    if is3:
        k.e("s_load_dwordx2 s[20:21], s[0:1], 0")
    else:
        k.e("s_load_dwordx2 s[20:21], s[0:1], 56")
    k.e("v_and_b32 v1, 63, v0")
    k.e("v_lshrrev_b32 v2, 6, v0")
    k.e("s_and_b32 s30, s2, 7")
    k.e("s_lshr_b32 s31, s2, 3")
    k.e("v_readfirstlane_b32 s3, v2")
    k.e("s_and_b32 s32, s31, 3")
    k.e("s_lshl_b32 s30, s30, 2")
    k.e("s_add_u32 s30, s30, s32")
    k.e("s_lshr_b32 s31, s31, 2")
    k.stamp()
    k.e("v_lshlrev_b32 v3, 4, v1")
    k.e("v_lshrrev_b32 v4, 3, v1")
    k.e("v_and_b32 v5, 7, v1")
    k.e("v_bfe_u32 v6, v1, 4, 1")
    k.e("v_lshlrev_b32 v6, 2, v6")
    k.e("v_xor_b32 v5, v5, v6")
    k.e("s_movk_i32 s44, 896")
    if is3:
        k.e("s_and_b32 s33, s3, 1")
        k.e("s_lshl_b32 s33, s33, 4")
        k.e("v_add_u32 v6, s33, v4")
        k.e("v_add_u32 v7, 8, v6")
        k.e("v_min_u32 v7, 27, v7")
        k.e("v_mul_u32_u24 v6, s44, v6")
        k.e("v_mul_u32_u24 v7, s44, v7")
        k.e("v_lshl_add_u32 v6, v5, 4, v6")
        k.e("v_lshl_add_u32 v7, v5, 4, v7")
    else:
        k.e("v_mul_u32_u24 v6, s44, v4")
        k.e("v_lshl_add_u32 v6, v5, 4, v6")
        k.e(f"v_add_u32 v7, {8*896}, v6")
    k.e("s_waitcnt lgkmcnt(0)")
    k.srd(8, 28, WS_O if is3 else WS_ACT, 64 * NKS * 1024)
    k.srd(12, 6, 0, (D if is3 else F) * D * 2)
    k.e(f"s_mul_i32 s34, s30, {2*NKS*1024}")
    k.e("s_lshl_b32 s35, s3, 10")
    k.e("s_add_u32 s34, s34, s35")
    k.e("s_lshl_b32 s36, s31, 7")
    if is3:
        k.e("s_lshr_b32 s37, s3, 1")
        k.e(f"s_mul_i32 s37, s37, {28*896}")
        bstep = 2 * 28 * 896
    else:
        k.e(f"s_mul_i32 s37, s3, {16*896}")
        bstep = 64 * 896
    k.e("s_add_u32 s36, s36, s37")
    k.e(f"s_mul_i32 s38, s3, {DEP*2048}")
    if ROT & 1:
        ca, cb = (1, 2) if is3 else (4, 7)
        k.e(f"s_mul_i32 s47, s31, {ca}")
        k.e(f"s_mul_i32 s48, s32, {cb}")
        k.e("s_add_u32 s47, s47, s48")
        k.e(f"s_cmp_ge_u32 s47, {NST}")
        k.e(f"s_cselect_b32 s48, {NST}, 0")
        k.e("s_sub_u32 s47, s47, s48")
        k.e("s_lshl_b32 s48, s47, 12")
        k.e("s_add_u32 s34, s34, s48")
        k.e(f"s_mul_i32 s48, s47, {bstep}")
        k.e("s_add_u32 s36, s36, s48")

    def issue(t):
        sl = t % DEP
        a = VAF + 8 * sl
        k.e(f"buffer_load_dwordx4 {vr(a,4)}, v3, s[8:11], s34 offen")
        k.e(f"s_add_u32 s39, s34, {NKS*1024}")
        k.e(f"buffer_load_dwordx4 {vr(a+4,4)}, v3, s[8:11], s39 offen")
        k.e(f"s_add_u32 m0, s38, {sl*2048}")
        k.e("s_add_u32 s34, s34, 4096")
        k.e("buffer_load_dwordx4 v6, s[12:15], s36 offen lds")
        k.e(f"s_add_u32 m0, s38, {sl*2048+1024}")
        k.e("s_nop 0")
        k.e("buffer_load_dwordx4 v7, s[12:15], s36 offen lds")
        k.e(f"s_add_u32 s36, s36, {bstep}")
        if ROT & 1:
            k.e("s_add_u32 s47, s47, 1")
            k.e(f"s_cmp_eq_u32 s47, {NST}")
            k.e(f"s_cselect_b32 s48, {NST*4096}, 0")
            k.e(f"s_cselect_b32 s49, {NST*bstep}, 0")
            k.e("s_sub_u32 s34, s34, s48")
            k.e("s_sub_u32 s36, s36, s49")

    for t in range(min(DEP, NST)):
        issue(t)
    k.e("v_lshrrev_b32 v8, 5, v1")
    k.e("v_bfe_u32 v9, v1, 2, 2")
    k.e("v_lshl_add_u32 v10, v8, 2, v9")
    k.e("v_lshlrev_b32 v10, 7, v10")
    k.e("v_lshrrev_b32 v11, 1, v9")
    k.e("v_lshl_add_u32 v10, v11, 6, v10")
    k.e("v_bfe_u32 v11, v1, 4, 1")
    k.e("v_lshl_add_u32 v10, v11, 5, v10")
    k.e("v_and_b32 v11, 3, v1")
    k.e("v_lshl_add_u32 v10, v11, 3, v10")
    k.e("v_add_u32 v10, s38, v10")
    k.e("v_xor_b32 v11, 64, v10")

    def rdB(t):
        sl = t % DEP
        b = VBF + 8 * (t & 1)
        for ct in range(2):
            for i in range(2):
                k.e(f"ds_read_b64_tr_b16 v[{b+4*ct+2*i}:{b+4*ct+2*i+1}], v{10+ct} offset:{sl*2048+1024*i}")

    def outstanding_after(t):
        return None

    issued = min(DEP, NST)
    k.e(f"s_waitcnt vmcnt({4*(issued-1)})")
    k.stamp()
    rdB(0)
    for t in range(NST):
        if t + 1 < NST:
            k.e(f"s_waitcnt vmcnt({4*(issued-(t+2))})")
            rdB(t + 1)
            k.e("s_waitcnt lgkmcnt(4)")
        else:
            k.e("s_waitcnt lgkmcnt(0)")
        a = VAF + 8 * (t % DEP)
        b = VBF + 8 * (t & 1)
        for rt in range(2):
            for ct in range(2):
                acc = ACC + 16 * (2 * rt + ct)
                k.mfma(acc, b + 4 * ct, a + 4 * rt, "0" if t == 0 else acc)
        if issued < NST:
            issue(issued)
            issued += 1
    k.stamp()
    k.e("s_lshr_b32 s40, s3, 1")
    k.e("s_and_b32 s41, s3, 1")
    k.e("s_lshl_b32 s42, s30, 1")
    k.e("s_add_u32 s42, s42, s40")
    k.e("s_lshl_b32 s43, s31, 1")
    k.e("s_add_u32 s43, s43, s41")
    k.e("v_and_b32 v12, 31, v1")
    if is3:
        k.srd(16, 20, 0, S * D * 2)
        k.srd(24, 28, WS_H, 64 * 28 * 1024)
        k.e("s_lshl_b32 s45, s42, 5")
        k.e("v_add_u32 v13, s45, v12")
        k.e("v_mul_u32_u24 v13, s44, v13")
        k.e("v_lshl_add_u32 v13, v8, 3, v13")
        k.e("s_lshl_b32 s45, s43, 6")
        for g in range(4):
            k.e(f"buffer_load_dwordx2 v[{208+2*g}:{209+2*g}], v13, s[16:19], s45 offen offset:{16*g}")
    else:
        k.srd(16, 28, WS_H, 64 * 28 * 1024)
        k.srd(24, 20, 0, S * D * 2)
        k.e("s_mul_i32 s45, s42, 28")
        k.e("s_lshl_b32 s46, s43, 1")
        k.e("s_add_u32 s45, s45, s46")
        k.e("s_lshl_b32 s45, s45, 10")
        for g in range(2):
            k.e(f"buffer_load_dwordx4 v[{208+4*g}:{211+4*g}], v3, s[16:19], s45 offen offset:{1024*g}")
    k.e("s_barrier")
    k.nop(8)
    for o in range(4):
        skip = k.newlab("own")
        k.e(f"s_cmp_eq_u32 s3, {o}")
        k.e(f"s_cbranch_scc1 {skip}")
        k.e(f"s_sub_u32 s45, s3, {o+1}")
        k.e("s_and_b32 s45, s45, 3")
        k.e("s_lshl_b32 s45, s45, 12")
        k.e(f"s_add_u32 s45, s45, {o*3*4096}")
        k.e("v_add_u32 v14, s45, v3")
        for q in range(4):
            k.e(f"ds_write_b128 v14, {vr(ACC+16*o+4*q,4)} offset:{1024*q}")
        k.lab(skip)
    for o in range(4):
        skip = k.newlab("mv")
        k.e(f"s_cmp_lg_u32 s3, {o}")
        k.e(f"s_cbranch_scc1 {skip}")
        for r in range(16):
            k.e(f"v_mov_b32 v{128+r}, v{ACC+16*o+r}")
        k.lab(skip)
    k.e("s_waitcnt lgkmcnt(0)")
    k.e("s_barrier")
    k.e(f"s_mul_i32 s45, s3, {3*4096}")
    k.e("v_add_u32 v14, s45, v3")
    for sl in range(3):
        for q in range(4):
            k.e(f"ds_read_b128 {vr(144+16*sl+4*q,4)}, v14 offset:{4096*sl+1024*q}")
    for sl in range(3):
        k.e(f"s_waitcnt lgkmcnt({8-4*sl})")
        for r in range(16):
            k.e(f"v_add_f32 v{128+r}, v{128+r}, v{144+16*sl+r}")
    k.e("s_waitcnt vmcnt(0)")
    k.stamp()
    for p in range(8):
        src = 208 + p
        k.e(f"v_lshlrev_b32 v14, 16, v{src}")
        k.e(f"v_and_b32 v15, 0xffff0000, v{src}")
        k.e(f"v_add_f32 v14, v14, v{128+2*p}")
        k.e(f"v_add_f32 v15, v15, v{128+2*p+1}")
        k.e(f"v_cvt_pk_bf16_f32 v{src}, v14, v15")
    if is3:
        k.e("s_mul_i32 s45, s42, 28")
        k.e("s_lshl_b32 s46, s43, 1")
        k.e("s_add_u32 s45, s45, s46")
        k.e("s_lshl_b32 s45, s45, 10")
        for g in range(2):
            k.e(f"buffer_store_dwordx4 v[{208+4*g}:{211+4*g}], v3, s[24:27], s45 offen offset:{1024*g}")
        k.e("v_mov_b32 v16, 0")
        k.e("v_mov_b32 v17, 0")
        k.e("s_mov_b32 s46, 0x3f803f80")
        for p in range(8):
            k.e(f"v_dot2_f32_bf16 v16, v{208+p}, s46, v16")
            k.e(f"v_dot2_f32_bf16 v17, v{208+p}, v{208+p}, v17")
        k.e("s_nop 1")
        k.e("v_mov_b32 v18, v16")
        k.e("v_mov_b32 v19, v17")
        k.e("s_nop 1")
        k.e("v_permlane32_swap_b32 v16, v18")
        k.e("v_permlane32_swap_b32 v17, v19")
        k.e("s_nop 1")
        k.e("v_add_f32 v16, v16, v18")
        k.e("v_add_f32 v17, v17, v19")
        k.srd(16, 28, WS_ST, S * 14 * 8)
        k.e("s_lshl_b32 s45, s42, 5")
        k.e("v_add_u32 v13, s45, v12")
        k.e("v_lshlrev_b32 v13, 3, v13")
        k.e("s_lshl_b32 s45, s43, 14")
        k.e("v_cmp_gt_u32 vcc, 32, v1")
        k.e("s_and_saveexec_b64 s[46:47], vcc")
        k.e("buffer_store_dwordx2 v[16:17], v13, s[16:19], s45 offen")
    else:
        k.e("s_nop 1")
        for g in (0, 2):
            k.e(f"v_permlane32_swap_b32 v{208+2*g}, v{208+2*g+2}")
            k.e(f"v_permlane32_swap_b32 v{208+2*g+1}, v{208+2*g+3}")
        k.e("s_lshl_b32 s45, s42, 5")
        k.e("v_add_u32 v13, s45, v12")
        k.e("v_mul_u32_u24 v13, s44, v13")
        k.e("v_lshl_add_u32 v13, v8, 4, v13")
        k.e("s_lshl_b32 s45, s43, 6")
        k.e("s_nop 0")
        for g in range(2):
            k.e(f"buffer_store_dwordx4 v[{208+4*g}:{211+4*g}], v13, s[24:27], s45 offen offset:{32*g}")
    if is3:
        k.e(f"s_branch {k.name}_fin")
        k.lab(f"{k.name}_cs")
        k.e("s_cmp_ge_u32 s2, 252")
        k.e(f"s_cbranch_scc1 {k.name}_end")
        k.e("s_load_dwordx2 s[28:29], s[0:1], 72")
        k.e("s_load_dwordx2 s[4:5], s[0:1], 32")
        k.e("s_load_dwordx2 s[6:7], s[0:1], 40")
        k.e("v_and_b32 v1, 63, v0")
        k.e("v_lshrrev_b32 v2, 6, v0")
        k.e("s_sub_u32 s30, s2, 224")
        k.e("v_readfirstlane_b32 s3, v2")
        k.e("s_cmp_ge_u32 s30, 14")
        k.e("s_cselect_b32 s31, 14, 0")
        k.e("s_cselect_b32 s33, 1, 0")
        k.e("s_sub_u32 s32, s30, s31")
        k.e("v_lshrrev_b32 v4, 4, v1")
        k.e("v_and_b32 v5, 15, v1")
        k.e("s_movk_i32 s44, 3584")
        k.e("v_mul_u32_u24 v4, s44, v4")
        k.e("v_lshl_add_u32 v4, v5, 4, v4")
        k.e("s_waitcnt lgkmcnt(0)")
        k.e("s_cmp_eq_u32 s33, 1")
        k.e("s_cselect_b32 s4, s6, s4")
        k.e("s_cselect_b32 s5, s7, s5")
        k.srd(8, 4, 0, D * F * 2)
        k.e(f"s_mul_i32 s34, s3, {112*3584}")
        k.e("s_lshl_b32 s35, s32, 8")
        k.e("s_add_u32 s34, s34, s35")
        for n in range(28):
            k.e(f"buffer_load_dwordx4 {vr(64+4*n,4)}, v4, s[8:11], s34 offen")
            k.e(f"s_add_u32 s34, s34, {4*3584}")
        for r in range(8):
            k.e(f"v_mov_b32 v{16+r}, 0")
        for n in range(28):
            k.e(f"s_waitcnt vmcnt({27-n})")
            for d in range(4):
                x = 64 + 4 * n + d
                k.e(f"v_lshlrev_b32 v{24+2*d}, 16, v{x}")
                k.e(f"v_and_b32 v{25+2*d}, 0xffff0000, v{x}")
            for r in range(8):
                k.e(f"v_add_f32 v{16+r}, v{16+r}, v{24+r}")
        k.e("v_lshrrev_b32 v6, 4, v1")
        k.e("s_lshl_b32 s35, s3, 2")
        k.e("v_add_u32 v6, s35, v6")
        k.e("v_lshlrev_b32 v6, 9, v6")
        k.e("v_lshl_add_u32 v6, v5, 5, v6")
        k.e("ds_write_b128 v6, v[16:19]")
        k.e("ds_write_b128 v6, v[20:23] offset:16")
        k.e("s_waitcnt lgkmcnt(0)")
        k.e("s_barrier")
        k.e("s_cmp_ge_u32 s3, 2")
        k.e(f"s_cbranch_scc1 {k.name}_end")
        k.e("v_lshlrev_b32 v6, 2, v0")
        for j in range(16):
            k.e(f"ds_read_b32 v{32+j}, v6 offset:{512*j}")
        k.srd(12, 28, WS_CS, 2 * F * 4)
        k.e(f"s_mul_i32 s35, s33, {F*4}")
        k.e("s_lshl_b32 s36, s32, 9")
        k.e("s_add_u32 s35, s35, s36")
        k.e("s_waitcnt lgkmcnt(0)")
        for st in (8, 4, 2, 1):
            for j in range(st):
                k.e(f"v_add_f32 v{32+j}, v{32+j}, v{32+j+st}")
        k.e("buffer_store_dword v32, v6, s[12:15], s35 offen")
        k.e(f"s_branch {k.name}_end")
        k.lab(f"{k.name}_fin")
    finish(k)
    return k, 252 if is3 else 224, 4 * DEP * 2048 if 4 * DEP * 2048 > 48 * 1024 else 48 * 1024 + 0, 256


def gen_k4():
    k = K("k4_ffn_kernel")
    SLOT = 49152
    R = 3
    NSL = 7
    ACC = 192
    FR = [64, 128]
    PK = int(os.environ.get("PK", "1"))
    k.e("s_cmp_ge_u32 s2, 224")
    k.e(f"s_cbranch_scc1 {k.name}_end")
    k.e("s_load_dwordx2 s[28:29], s[0:1], 72")
    k.e("s_load_dwordx2 s[4:5], s[0:1], 32")
    k.e("s_load_dwordx2 s[6:7], s[0:1], 40")
    PF4 = int(os.environ.get("PF4", "1"))
    if PF4:
        k.e("s_load_dwordx2 s[50:51], s[0:1], 48")
    k.e("v_and_b32 v1, 63, v0")
    k.e("v_lshrrev_b32 v2, 6, v0")
    k.e("s_and_b32 s30, s2, 7")
    k.e("s_lshr_b32 s31, s2, 3")
    k.e("v_readfirstlane_b32 s3, v2")
    k.e("s_and_b32 s32, s30, 3")
    k.e("s_lshl_b32 s32, s32, 2")
    k.e("s_and_b32 s33, s31, 3")
    k.e("s_add_u32 s32, s32, s33")
    k.e("s_lshr_b32 s30, s30, 2")
    k.e("s_mul_i32 s30, s30, 7")
    k.e("s_lshr_b32 s31, s31, 2")
    if ROT & 2:
        k.e("s_lshl_b32 s47, s33, 1")
        k.e("s_add_u32 s47, s47, s31")
        k.e("s_cmp_ge_u32 s47, 7")
        k.e("s_cselect_b32 s48, 7, 0")
        k.e("s_sub_u32 s47, s47, s48")
    k.e("s_add_u32 s31, s31, s30")
    k.e("s_mov_b32 s30, s32")
    k.e("s_lshr_b32 s32, s3, 2")
    k.e("s_and_b32 s33, s3, 3")
    k.stamp()
    k.e("v_lshlrev_b32 v3, 4, v1")
    k.e("v_and_b32 v12, 31, v1")
    k.e("v_lshrrev_b32 v8, 5, v1")
    k.e("v_lshrrev_b32 v4, 4, v1")
    k.e("v_and_b32 v5, 15, v1")
    k.e("v_lshlrev_b32 v6, 2, v4")
    k.e("v_xor_b32 v5, v5, v6")
    k.e("s_movk_i32 s44, 3584")
    k.e("v_mul_u32_u24 v4, s44, v4")
    k.e("v_lshl_add_u32 v4, v5, 4, v4")
    k.e("s_lshl_b32 s36, s3, 10")
    k.e("s_lshl_b32 s37, s30, 2")
    k.e("s_add_u32 s37, s37, s32")
    k.e("s_mul_i32 s37, s37, 28")
    k.e("s_add_u32 s37, s37, s33")
    k.e("s_lshl_b32 s37, s37, 10")
    k.e(f"s_mul_i32 s38, s3, {4*3584}")
    k.e("s_lshl_b32 s39, s31, 8")
    k.e("s_add_u32 s38, s38, s39")
    if ROT & 2:
        k.e("s_lshl_b32 s48, s47, 12")
        k.e("s_add_u32 s37, s37, s48")
        k.e(f"s_mul_i32 s48, s47, {64*3584}")
        k.e("s_add_u32 s38, s38, s48")
    k.e("s_waitcnt lgkmcnt(0)")
    if EXP & 16:
        k.stamp()
    k.srd(8, 28, WS_H, 64 * 28 * 1024)
    k.srd(12, 4, 0, D * F * 2)
    k.srd(16, 6, 0, D * F * 2)

    def issue(sl):
        sb = (sl % R) * SLOT
        k.e(f"s_add_u32 m0, s36, {sb}")
        k.e(f"s_add_u32 s39, s37, {56*1024}")
        k.e("buffer_load_dwordx4 v3, s[8:11], s37 offen lds")
        k.e(f"s_add_u32 m0, s36, {sb+8192}")
        k.e("s_add_u32 s37, s37, 4096")
        k.e("buffer_load_dwordx4 v3, s[8:11], s39 offen lds")
        for u in range(2):
            k.e(f"s_add_u32 m0, s36, {sb+16384*(1+u)}")
            k.e(f"s_add_u32 s39, s38, {32*3584}")
            k.e(f"buffer_load_dwordx4 v4, s[{12+4*u}:{15+4*u}], s38 offen lds")
            k.e(f"s_add_u32 m0, s36, {sb+16384*(1+u)+8192}")
            k.e("s_nop 0")
            k.e(f"buffer_load_dwordx4 v4, s[{12+4*u}:{15+4*u}], s39 offen lds")
        k.e(f"s_add_u32 s38, s38, {64*3584}")
        if ROT & 2:
            k.e("s_add_u32 s47, s47, 1")
            k.e("s_cmp_eq_u32 s47, 7")
            k.e(f"s_cselect_b32 s48, {7*4096}, 0")
            k.e(f"s_cselect_b32 s49, {7*64*3584}, 0")
            k.e("s_sub_u32 s37, s37, s48")
            k.e("s_sub_u32 s38, s38, s49")

    K4S = int(os.environ.get("K4S", "1"))
    K4Q = int(os.environ.get("K4Q", "1")) if K4S else 0
    XB = R * SLOT
    issue(0)
    if int(os.environ.get("K4B", "1")) & 1:
        k.e("s_barrier")
    if not K4S:
        issue(1)
    if EXP & 16:
        k.stamp()
    k.srd(20, 28, WS_ST, S * 14 * 8)
    k.srd(24, 28, WS_ACT, 64 * 112 * 1024)
    k.srd(52, 28, WS_CS, 2 * F * 4)
    k.e("s_lshl_b32 s34, s30, 7")
    k.e("s_lshl_b32 s35, s32, 6")
    k.e("s_add_u32 s34, s34, s35")
    k.e("v_add_u32 v5, s34, v1")
    k.e("v_lshlrev_b32 v5, 3, v5")
    if K4S:
        k.e("s_lshl_b32 s40, s33, 14")
        for j in range(4):
            k.e(f"buffer_load_dwordx2 v[{36+2*j}:{37+2*j}], v5, s[20:23], s40 offen")
            if j < 3:
                k.e("s_add_u32 s40, s40, 65536")
        if not K4Q:
            issue(1)
        k.e("v_lshlrev_b32 v16, 3, v0")
        k.e(f"v_add_u32 v16, {XB}, v16")
        k.e("s_lshl_b32 s40, s32, 11")
        k.e("v_lshlrev_b32 v17, 3, v1")
        k.e("v_add_u32 v17, s40, v17")
        k.e(f"v_add_u32 v17, {XB}, v17")
    else:
        for q in range(14):
            k.e(f"s_mov_b32 s40, {q*16384}")
            k.e(f"buffer_load_dwordx2 v[{36+2*q}:{37+2*q}], v5, s[20:23], s40 offen")
    k.e("s_lshl_b32 s40, s32, 13")
    k.e("v_add_u32 v20, s40, v3")
    k.e(f"v_add_u32 v21, {SLOT}, v20")
    k.e(f"v_add_u32 v22, {2*SLOT}, v20")
    k.e("v_bfe_u32 v9, v1, 2, 2")
    k.e("v_lshl_add_u32 v10, v8, 2, v9")
    k.e("v_lshlrev_b32 v10, 8, v10")
    k.e("v_xor_b32 v11, s33, v9")
    k.e("v_lshl_add_u32 v10, v11, 6, v10")
    k.e("v_bfe_u32 v11, v1, 4, 1")
    k.e("v_lshl_add_u32 v10, v11, 5, v10")
    k.e("v_and_b32 v11, 3, v1")
    k.e("v_lshl_add_u32 v24, v11, 3, v10")
    k.e(f"v_add_u32 v25, {SLOT}, v24")
    k.e(f"v_add_u32 v26, {2*SLOT}, v24")
    k.e("v_lshlrev_b32 v6, 4, v8")
    k.e("s_lshl_b32 s41, s31, 9")
    k.e("s_lshl_b32 s42, s33, 7")
    k.e("s_add_u32 s41, s41, s42")
    k.e(f"s_add_u32 s42, s41, {F*4}")

    if EXP & 16:
        k.stamp()
    k1 = -2.0 * math.sqrt(2.0 / math.pi) * math.log2(math.e)
    k3 = k1 * 0.044715

    def csreg(u, g):
        idx = 4 * u + g
        return 36 + 4 * idx if idx < 7 else 16

    def stats():
        if K4S:
            k.e("v_add_f32 v44, v44, v46")
            k.e("v_add_f32 v45, v45, v47")
            k.e("v_add_f32 v48, v48, v50")
            k.e("v_add_f32 v49, v49, v51")
            k.e("v_add_f32 v36, v44, v48")
            k.e("v_add_f32 v37, v45, v49")
        else:
            for q in range(7):
                k.e(f"v_add_f32 v{36+2*q}, v{36+2*q}, v{50+2*q}")
                k.e(f"v_add_f32 v{37+2*q}, v{37+2*q}, v{51+2*q}")
            for (a, b) in ((0, 4), (1, 5), (2, 6), (0, 2), (1, 3), (0, 1)):
                k.e(f"v_add_f32 v{36+2*a}, v{36+2*a}, v{36+2*b}")
                k.e(f"v_add_f32 v{37+2*a}, v{37+2*a}, v{36+2*b+1}")
        k.e(f"s_mov_b32 s40, {hex(f2u(1.0/448))}")
        k.e("v_mul_f32 v13, s40, v36")
        k.e("v_mul_f32 v14, s40, v37")
        k.e("v_fma_f32 v14, -v13, v13, v14")
        k.e("v_max_f32 v14, 0, v14")
        k.e(f"v_add_f32 v34, {hex(f2u(1e-5))}, v14")
        k.e("v_rsq_f32 v15, v34")
        k.e("v_sub_f32 v28, 0, v13")
        k.e("v_mul_f32 v7, v15, v15")
        k.e("v_mul_f32 v7, v7, v15")
        k.e(f"v_mul_f32 v30, {hex(f2u(k1))}, v15")
        k.e(f"v_mul_f32 v32, {hex(f2u(k3))}, v7")
        for r in (28, 30, 32, 34):
            k.e(f"v_mov_b32 v{r+1}, v{r}")
        k.e("s_nop 1")
        for r in (34, 28, 30, 32):
            k.e(f"v_permlane32_swap_b32 v{r}, v{r+1}")

    def csloads():
        for u in range(2):
            for g in range(4):
                k.e(f"buffer_load_dwordx4 {vr(csreg(u,g),4)}, v6, s[52:55], s{41+u} offen offset:{32*g}")

    K4C = int(os.environ.get("K4C", "1")) if K4S else 0

    def cs_s(u):
        if u == 0:
            k.e(f"s_add_u32 s62, s28, {WS_CS}")
            k.e("s_addc_u32 s63, s29, 0")
            k.e("s_add_u32 s62, s62, s41")
            k.e("s_addc_u32 s63, s63, 0")
        k.e(f"s_load_dwordx16 s[64:79], s[62:63], {u*F*4}")
        k.e(f"s_load_dwordx8 s[80:87], s[62:63], {u*F*4+64}")
        k.e(f"s_load_dwordx8 s[92:99], s[62:63], {u*F*4+96}")

    def csg(c):
        return 64 + c if c < 24 else 92 + c - 24

    def cs_v(u):
        out = []
        for g in range(4):
            for j in range(4):
                out.append(f"  v_mov_b32 v{csreg(u,g)+j}, s{csg(8*g+j)}")
            grp = ["  s_mov_b32 exec_lo, 0"]
            for j in range(4):
                grp.append(f"  v_mov_b32 v{csreg(u,g)+j}, s{csg(8*g+4+j)}")
            grp.append("  s_mov_b32 exec_lo, -1")
            out.append("\n".join(grp))
        return out

    def reads(sl):
        fr = FR[sl & 1]
        s_ = sl % R
        for ks in range(4):
            for i in range(2):
                k.e(f"ds_read_b128 {vr(fr+16*ks+4*i,4)}, v{20+s_} offset:{4096*i+1024*ks}")
            for u in range(2):
                for h in range(2):
                    r0 = fr + 16 * ks + 8 + 4 * u + 2 * h
                    k.e(f"ds_read_b64_tr_b16 v[{r0}:{r0+1}], v{24+s_} offset:{16384*(1+u)+4096*ks+2048*h}")

    def mfmas(sl):
        fr = FR[sl & 1]
        for ks in range(4):
            for i in range(2):
                for u in range(2):
                    acc = ACC + 16 * (2 * i + u)
                    k.mfma(acc, fr + 16 * ks + 8 + 4 * u, fr + 16 * ks + 4 * i, "0" if (sl == 0 and ks == 0) else acc)

    wv = {0: 20, 1: 20, 2: 6, 3: 14, 4: 14, 5: 6, 6: 0}
    if K4S:
        wv = {0: 4 if K4Q else 10, 1: 6, 2: 6, 3: 6, 4: 14, 5: 14, 6: 0}
        if K4C:
            wv[4] = wv[5] = 6

    def st_part():
        k.e("v_add_f32 v36, v36, v38")
        k.e("v_add_f32 v37, v37, v39")
        k.e("v_add_f32 v40, v40, v42")
        k.e("v_add_f32 v41, v41, v43")
        k.e("v_add_f32 v36, v36, v40")
        k.e("v_add_f32 v37, v37, v41")
        k.e("ds_write_b64 v16, v[36:37]")

    def st_read():
        for j in range(4):
            k.e(f"ds_read_b64 v[{44+2*j}:{45+2*j}], v17 offset:{512*j}")
    PFS = int(os.environ.get("PFS", "5"))
    if PF4:
        for s_ in range(PFS + 1, NSL):
            if s_ <= PFS + 2:
                wv[s_] += 1

    def pfload():
        k.e("v_min_u32 v7, 447, v0")
        k.e("v_lshlrev_b32 v7, 7, v7")
        k.e("s_lshr_b32 s43, s2, 3")
        k.e("s_mul_i32 s43, s43, 57344")
        k.srd(56, 50, 0, F * D * 2)
        k.e("buffer_load_dword v23, v7, s[56:59], s43 offen")
    for sl in range(NSL):
        if sl == 0 and EXP & 32:
            for c_ in (24, 20):
                k.e(f"s_waitcnt vmcnt({c_})")
                k.stamp()
        k.e(f"s_waitcnt vmcnt({wv[sl]}) lgkmcnt(0)")
        k.e("s_barrier")
        k.stamp()
        if K4Q and sl == 0:
            Rd = cap(k, reads, 0)
            P1 = pieces(cap(k, issue, 1))
            P2 = pieces(cap(k, issue, 2))
            M0 = [l for l in cap(k, mfmas, 0) if l is not None]
            k.L += Rd
            k.L += P1[0] + P1[1]
            k.e("s_waitcnt lgkmcnt(0)")
            for n in range(8):
                k.L.append(M0[n])
                if n < 4:
                    k.L += P1[2 + n]
            for p in P2:
                k.L += p
            continue
        if K4Q and sl == 1:
            Rd = cap(k, reads, 1)
            P3 = pieces(cap(k, issue, 3))
            X = cap(k, st_part)
            for n in range(8):
                k.L.append(M0[8 + n])
                k.L += Rd[3 * n:3 * n + 3]
                if n == 7:
                    k.L += X
            for p in P3:
                k.L += p
            continue
        P = pieces(cap(k, issue, sl + R - 1)) if sl + R - 1 < NSL else []
        Rd = cap(k, reads, sl)
        M = cap(k, mfmas, sl - 1) if sl >= 1 else []
        X = []
        if K4S:
            if sl == 1:
                X = cap(k, st_part)
            if sl == 2:
                X = cap(k, st_read) + (cap(k, cs_s, 0) if K4C else [])
            if sl == 3:
                X = cap(k, stats) + (cs_v(0) if K4C else cap(k, csloads))
            if sl == 4 and K4C:
                X = cap(k, cs_s, 1)
            if sl == 5 and K4C:
                X = cs_v(1)
        elif sl == 2:
            X = cap(k, stats) + cap(k, csloads)
        if sl == PFS and PF4:
            X = X + cap(k, pfload)
        M = [l for l in M if l is not None]
        if not M:
            for p in P:
                k.L += p
            k.L += Rd
        else:
            xi = 0
            for n in range(16):
                k.L.append(M[n])
                if n < len(P):
                    k.L += P[n]
                if n < 12:
                    k.L += Rd[2 * n:2 * n + 2]
                if n >= 6 and X:
                    cnt = (len(X) + 9) // 10
                    k.L += X[xi:xi + cnt]
                    xi += cnt
            k.L += X[xi:]
    k.e("s_waitcnt lgkmcnt(0)")
    mfmas(NSL - 1)
    k.stamp()
    k.e("s_lshl_b32 s40, s30, 2")
    k.e("s_lshl_b32 s41, s32, 1")
    k.e("s_add_u32 s40, s40, s41")
    k.e("s_mul_i32 s40, s40, 112")
    k.e("s_lshl_b32 s41, s31, 2")
    k.e("s_add_u32 s41, s41, s33")
    k.e("s_lshl_b32 s41, s41, 1")
    k.e("s_add_u32 s40, s40, s41")
    k.e("s_lshl_b32 s40, s40, 10")
    k.nop(16)
    for i in range(2):
        ag = ACC + 16 * (2 * i)
        au = ACC + 16 * (2 * i + 1)
        T = 96
        sel = f"op_sel:[0,{i},{i}] op_sel_hi:[1,{i},{i}]"

        def pk(op, d, a, b, c=None, bsel=None, csel=None):
            if c is None:
                os_ = f"op_sel:[0,{bsel or 0}] op_sel_hi:[1,{1 if bsel is None else bsel}]"
                k.e(f"v_pk_{op}_f32 v[{d}:{d+1}], v[{a}:{a+1}], v[{b}:{b+1}] {os_}")
            else:
                os_ = (f"op_sel:[0,{bsel or 0},{csel or 0}] op_sel_hi:[1,{1 if bsel is None else bsel},"
                       f"{1 if csel is None else csel}]")
                k.e(f"v_pk_{op}_f32 v[{d}:{d+1}], v[{a}:{a+1}], v[{b}:{b+1}], v[{c}:{c+1}] {os_}")
        if PK:
            for r in range(0, 16, 2):
                cg = csreg(0, r >> 2) + (r & 3)
                cu = csreg(1, r >> 2) + (r & 3)
                pk("fma", ag + r, cg, 28, ag + r, bsel=i)
                pk("fma", au + r, cu, 28, au + r, bsel=i)
            for r in range(0, 16, 2):
                pk("mul", T + r, ag + r, ag + r)
            for r in range(0, 16, 2):
                pk("fma", T + r, T + r, 32, 30, bsel=i, csel=i)
            for r in range(0, 16, 2):
                pk("mul", T + r, T + r, ag + r)
            for r in range(16):
                k.e(f"v_exp_f32 v{T+r}, v{T+r}")
            for r in range(0, 16, 2):
                pk("mul", au + r, au + r, ag + r)
            for r in range(0, 16, 2):
                pk("fma", T + r, T + r, 34, 34, bsel=i, csel=i)
            for r in range(16):
                k.e(f"v_rcp_f32 v{T+r}, v{T+r}")
            k.e("s_nop 0")
            for r in range(0, 16, 2):
                pk("mul", au + r, au + r, T + r)
        else:
            for r in range(16):
                cg = csreg(0, r >> 2) + (r & 3)
                cu = csreg(1, r >> 2) + (r & 3)
                k.e(f"v_fma_f32 v{ag+r}, v{28+i}, v{cg}, v{ag+r}")
                k.e(f"v_fma_f32 v{au+r}, v{28+i}, v{cu}, v{au+r}")
            for r in range(16):
                k.e(f"v_mul_f32 v{T+r}, v{ag+r}, v{ag+r}")
            for r in range(16):
                k.e(f"v_fma_f32 v{T+r}, v{T+r}, v{32+i}, v{30+i}")
            for r in range(16):
                k.e(f"v_mul_f32 v{T+r}, v{T+r}, v{ag+r}")
            for r in range(16):
                k.e(f"v_exp_f32 v{T+r}, v{T+r}")
            for r in range(16):
                k.e(f"v_mul_f32 v{au+r}, v{au+r}, v{ag+r}")
            for r in range(16):
                k.e(f"v_fma_f32 v{T+r}, v{T+r}, v{34+i}, v{34+i}")
            for r in range(16):
                k.e(f"v_rcp_f32 v{T+r}, v{T+r}")
            k.e("s_nop 0")
            for r in range(16):
                k.e(f"v_mul_f32 v{au+r}, v{au+r}, v{T+r}")
        for p in range(8):
            k.e(f"v_cvt_pk_bf16_f32 v{T+16+p}, v{au+2*p}, v{au+2*p+1}")
        if i == 1:
            k.e(f"s_add_u32 s40, s40, {112*1024}")
        for g in range(2):
            k.e(f"buffer_store_dwordx4 {vr(T+16+4*g,4)}, v3, s[24:27], s40 offen offset:{1024*g}")
    finish(k)
    return k, 224, R * SLOT + (4096 if K4S else 0), 512


def gen_k1():
    k = K("k1_qkv_kernel")
    K1G = int(os.environ.get("K1G", "3"))
    SLOT = 32256 if K1G == 3 else 28672
    R = 5
    NSL = 7
    ACC = 192
    FR = [64, 128]
    SCR = 0 if K1G == 3 else R * SLOT
    k.e("s_cmp_ge_u32 s2, 256")
    k.e(f"s_cbranch_scc1 {k.name}_end")
    k.e("s_load_dwordx2 s[28:29], s[0:1], 72")
    k.e("s_load_dwordx2 s[4:5], s[0:1], 0")
    k.e("s_load_dwordx2 s[6:7], s[0:1], 8")
    k.e("v_and_b32 v1, 63, v0")
    k.e("v_lshrrev_b32 v2, 6, v0")
    k.e("s_and_b32 s30, s2, 7")
    k.e("s_lshr_b32 s31, s2, 3")
    k.e("v_readfirstlane_b32 s3, v2")
    k.e("s_and_b32 s32, s30, 3")
    k.e("s_lshl_b32 s32, s32, 2")
    k.e("s_and_b32 s33, s31, 3")
    k.e("s_add_u32 s32, s32, s33")
    k.e("s_lshr_b32 s30, s30, 2")
    k.e("s_lshl_b32 s30, s30, 3")
    k.e("s_lshr_b32 s31, s31, 2")
    if ROT & 4:
        k.e("s_lshl_b32 s47, s33, 1")
        k.e("s_add_u32 s47, s47, s31")
        k.e("s_cmp_ge_u32 s47, 7")
        k.e("s_cselect_b32 s48, 7, 0")
        k.e("s_sub_u32 s47, s47, s48")
    k.e("s_add_u32 s31, s31, s30")
    k.e("s_mov_b32 s30, s32")
    k.stamp()
    k.e("v_lshlrev_b32 v3, 4, v1")
    k.e("v_and_b32 v12, 31, v1")
    k.e("v_lshrrev_b32 v8, 5, v1")
    k.e("v_lshrrev_b32 v4, 3, v1")
    k.e("v_and_b32 v5, 7, v1")
    k.e("v_lshrrev_b32 v6, 4, v1")
    k.e("s_and_b32 s33, s3, 1")
    k.e("s_lshl_b32 s33, s33, 2")
    k.e("v_or_b32 v6, s33, v6")
    k.e("v_xor_b32 v5, v5, v6")
    k.e("s_movk_i32 s44, 896")
    k.e("v_mul_u32_u24 v4, s44, v4")
    k.e("v_lshl_add_u32 v4, v5, 4, v4")
    k.e("v_lshrrev_b32 v5, 2, v1")
    k.e("s_movk_i32 s45, 2688")
    k.e("v_mul_u32_u24 v5, s45, v5")
    k.e("v_and_b32 v6, 3, v1")
    k.e("v_lshl_add_u32 v5, v6, 4, v5")
    if K1G == 3:
        k.e("v_min_u32 v13, 223, v0")
        k.e("v_lshlrev_b32 v13, 4, v13")
        k.e("v_add_u32 v13, 28672, v13")
        for r in range(52, 56):
            k.e(f"v_mov_b32 v{r}, 0x3f803f80")
        k.e(f"v_add_u32 v14, {2*SLOT}, v13")
        k.e(f"v_add_u32 v15, {4*SLOT}, v13")
        k.e("ds_write_b128 v13, v[52:55]")
        k.e(f"ds_write_b128 v13, v[52:55] offset:{SLOT}")
        k.e("ds_write_b128 v14, v[52:55]")
        k.e(f"ds_write_b128 v14, v[52:55] offset:{SLOT}")
        k.e("ds_write_b128 v15, v[52:55]")
    k.e("s_waitcnt lgkmcnt(0)")
    k.srd(8, 4, 0, S * D * 2)
    k.srd(12, 6, 0, D * 3 * D * 2)
    k.e("s_lshl_b32 s33, s31, 17")
    k.e("s_add_u32 s16, s28, s33")
    k.e("s_addc_u32 s17, s29, 0")
    k.e(f"s_mov_b32 s18, {hex(0x400000 + 0x20000)}")
    k.e("s_mov_b32 s19, 0x00020000")
    k.e("s_lshl_b32 s36, s3, 10")
    k.e("s_lshl_b32 s37, s30, 7")
    k.e("s_lshl_b32 s38, s3, 3")
    k.e("s_add_u32 s37, s37, s38")
    k.e("s_mul_i32 s37, s37, 896")
    k.e(f"s_mul_i32 s38, s3, {16*2688}")
    k.e("s_mul_i32 s39, s31, 56")
    k.e("s_add_u32 s38, s38, s39")
    if ROT & 4:
        k.e("s_lshl_b32 s48, s47, 7")
        k.e("s_add_u32 s37, s37, s48")
        k.e(f"s_mul_i32 s48, s47, {64*2688}")
        k.e("s_add_u32 s38, s38, s48")

    def issue(sl):
        sb = (sl % R) * SLOT
        for i in range(4):
            k.e(f"s_add_u32 m0, s36, {sb+4096*i}")
            k.e(f"s_add_u32 s39, s37, {32*896*i}")
            k.e("buffer_load_dwordx4 v4, s[8:11], s39 offen lds")
        for sg in range(3):
            k.e(f"s_add_u32 m0, s36, {sb+16384+4096*sg}")
            k.e(f"s_add_u32 s39, s38, {896*sg}")
            k.e("buffer_load_dwordx4 v5, s[12:15], s39 offen lds")
        k.e("s_add_u32 s37, s37, 128")
        k.e(f"s_add_u32 s38, s38, {64*2688}")
        if ROT & 4:
            k.e("s_add_u32 s47, s47, 1")
            k.e("s_cmp_eq_u32 s47, 7")
            k.e(f"s_cselect_b32 s48, {7*128}, 0")
            k.e(f"s_cselect_b32 s49, {7*64*2688}, 0")
            k.e("s_sub_u32 s37, s37, s48")
            k.e("s_sub_u32 s38, s38, s49")

    K1P = int(os.environ.get("K1P", "2"))
    K1N = int(os.environ.get("K1N", "1"))
    K1R = int(os.environ.get("K1R", "3"))
    K1C = int(os.environ.get("K1C", "12"))
    for sl in range(K1P):
        issue(sl)
    k.stamp()
    k.e("v_bfe_u32 v9, v1, 1, 3")
    k.e("v_xor_b32 v9, v9, v8")
    k.e("v_lshlrev_b32 v9, 4, v9")
    k.e("v_lshl_add_u32 v9, v12, 7, v9")
    k.e("s_lshl_b32 s40, s3, 12")
    k.e("v_add_u32 v9, s40, v9")
    for grp in range(3):
        for ks in range(4):
            r = 16 + 4 * grp + ks
            k.e(f"v_xor_b32 v{r}, {ks<<5}, v9")
            if grp:
                k.e(f"v_add_u32 v{r}, {2*grp*SLOT}, v{r}")
    k.e("v_lshlrev_b32 v10, 9, v8")
    k.e("v_bfe_u32 v11, v1, 2, 2")
    k.e("v_lshl_add_u32 v10, v11, 6, v10")
    k.e("v_bfe_u32 v11, v1, 4, 1")
    k.e("v_lshl_add_u32 v10, v11, 5, v10")
    k.e("v_and_b32 v11, 3, v1")
    k.e("v_lshl_add_u32 v28, v11, 3, v10")
    k.e(f"v_add_u32 v29, {2*SLOT}, v28")
    k.e(f"v_add_u32 v30, {4*SLOT}, v28")
    if K1G == 3:
        k.e("v_and_b32 v10, 19, v1")
        k.e("v_cmp_eq_u32 vcc, 19, v10")
        k.e("v_mov_b32 v11, 12288")
        k.e("v_cndmask_b32 v56, v28, v11, vcc")
        k.e(f"v_add_u32 v57, {2*SLOT}, v56")
        k.e(f"v_add_u32 v58, {4*SLOT}, v56")
    for r in range(32, 52):
        k.e(f"v_mov_b32 v{r}, 0")
    k.e("s_mov_b32 s46, 0x3f803f80")
    for r in range(52, 56):
        k.e(f"v_mov_b32 v{r}, s46")

    def reads(sl):
        fr = FR[sl & 1]
        s_ = sl % R
        grp, o = s_ >> 1, (s_ & 1) * SLOT
        for ks in range(4):
            k.e(f"ds_read_b128 {vr(fr+16*ks,4)}, v{16+4*grp+ks} offset:{o}")
            for sg in range(3):
                for h in range(2):
                    r0 = fr + 16 * ks + 4 + 4 * sg + 2 * h
                    ar = 56 + grp if (K1G == 3 and sg == 0) else 28 + grp
                    k.e(f"ds_read_b64_tr_b16 v[{r0}:{r0+1}], v{ar} offset:{o+16384+4096*sg+1024*ks+256*h}")

    def mfm(sl, stat=True):
        fr = FR[sl & 1]
        for ks in range(4):
            a = fr + 16 * ks
            c0 = (sl == 0 and ks == 0)
            k.mfma(ACC, a + 4, a, "0" if c0 else ACC)
            k.mfma(ACC + 16, a + 8, a, "0" if c0 else ACC + 16)
            k.mfma(ACC + 32, a, a + 12, "0" if c0 else ACC + 32)
            if K1G in (1, 2) and stat:
                stm(sl, ks)

    def stm(sl, ks):
        a = FR[sl & 1] + 16 * ks
        c0 = (sl == 0 and ks == 0)
        if K1G == 1:
            k.e(f"v_mfma_f32_32x32x16_bf16 a[0:15], v[52:55], v[{a}:{a+3}], " + ("0" if c0 else "a[0:15]"))
        k.e(f"v_mfma_f32_32x32x16_bf16 a[16:31], v[{a}:{a+3}], v[{a}:{a+3}], " + ("0" if c0 else "a[16:31]"))

    def dots(sl):
        if K1G == 1:
            return
        fr = FR[sl & 1]
        for ks in range(4):
            a = fr + 16 * ks
            for j in range(4):
                if K1G != 3:
                    k.e(f"v_dot2_f32_bf16 v{32+j}, v{a+j}, s46, v{32+j}")
                if K1G in (0, 3):
                    k.e(f"v_dot2_f32_bf16 v{36+j}, v{a+j}, v{a+j}, v{36+j}")

    def csum(sl):
        fr = FR[sl & 1]
        done = k.newlab("csd")
        for w in range(4):
            nx = k.newlab("cs")
            if w < 3:
                k.e(f"s_cmp_eq_u32 s3, {w}")
                k.e(f"s_cbranch_scc0 {nx}")
            for j in range(12):
                k.e(f"v_dot2_f32_bf16 v{40+j}, v{fr+16*w+4+j}, s46, v{40+j}")
            if w < 3:
                k.e(f"s_branch {done}")
                k.lab(nx)
        k.lab(done)

    issued = K1P
    for sl in range(NSL):
        pend = issued - 1 - sl
        k.e(f"s_waitcnt vmcnt({7*pend}) lgkmcnt(0)")
        k.e("s_barrier")
        k.stamp()
        P = []
        for _ in range(K1N):
            if issued < min(NSL, sl + R):
                P += pieces(cap(k, issue, issued))
                issued += 1
        Rd = cap(k, reads, sl)
        if sl == 0:
            k.L += Rd
            for p in P:
                k.L += p
        else:
            M = [l for l in cap(k, mfm, sl - 1) if l is not None]
            Dd = cap(k, dots, sl - 1)
            assert len(M) == (12, 20, 16, 12)[K1G], M
            ri = di = 0
            for n in range(len(M)):
                k.L.append(M[n])
                per = (len(P) + 11) // 12
                for p in P[n * per:(n + 1) * per]:
                    k.L += p
                c = (3 if n < 4 else 2) if K1R == 0 else K1R
                k.L += Rd[ri:ri + c]
                ri += c
                c = (2 if n < 8 else 4) if K1R == 0 else (0 if n < 4 else 4)
                if K1G == 2:
                    c = 1
                if K1G == 3:
                    c = 0 if n < 4 else 2
                k.L += Dd[di:di + c]
                di += c
                if K1G in (1, 2) and n == K1C:
                    csum(sl - 1)
            assert ri >= 28 and di >= len(Dd)
            if K1G in (0, 3):
                csum(sl - 1)
    k.e("s_waitcnt lgkmcnt(0)")
    Ml = [l for l in cap(k, mfm, NSL - 1, False) if l is not None]
    if K1G == 3:
        k.L += Ml[0::3]
        Ml = [m for i, m in enumerate(Ml) if i % 3]
    dots(NSL - 1)
    if K1G in (1, 2):
        for ks in range(4):
            stm(NSL - 1, ks)
    csum(NSL - 1)
    n_e0 = len(k.L)
    if K1G == 3:
        k.e("v_cmp_le_u32 vcc, 32, v1")
        k.e("v_add_f32 v36, v36, v37")
        k.e("v_add_f32 v38, v38, v39")
        k.e(f"v_cndmask_b32 v32, 0, v{ACC+12}, vcc")
        k.e("v_add_f32 v36, v36, v38")
    if K1G in (1, 2):
        k.nop(32)
        if K1G == 1:
            k.e("v_accvgpr_read_b32 v32, a0")
        else:
            k.e("v_add_f32 v32, v32, v33")
            k.e("v_add_f32 v34, v34, v35")
            k.e("v_add_f32 v32, v32, v34")
        for r in range(16):
            k.e(f"v_accvgpr_read_b32 v{160+r}, a{16+r}")
        k.e("v_cmp_gt_u32 vcc, 32, v1")
        k.e("v_and_b32 v13, 1, v1")
        k.e("s_nop 1")
        if K1G == 1:
            k.e("v_cndmask_b32 v32, 0, v32, vcc")
        k.e("v_cmp_eq_u32 vcc, 1, v13")
        k.e("v_and_b32 v13, 2, v1")
        k.e("v_cmp_eq_u32 s[38:39], 2, v13")
        k.e("v_and_b32 v13, 8, v1")
        k.e("v_cmp_eq_u32 s[40:41], 8, v13")
        for r in range(8):
            k.e(f"v_cndmask_b32 v{160+2*r}, v{160+2*r}, v{161+2*r}, vcc")
        k.e("v_and_b32 v13, 16, v1")
        k.e("v_cmp_eq_u32 vcc, 16, v13")
        for r in range(4):
            k.e(f"v_cndmask_b32 v{160+4*r}, v{160+4*r}, v{162+4*r}, s[38:39]")
        k.e("v_bfe_u32 v13, v1, 2, 1")
        k.e("v_cmp_eq_u32 s[38:39], v13, v8")
        for r in range(2):
            k.e(f"v_cndmask_b32 v{160+8*r}, v{160+8*r}, v{164+8*r}, s[40:41]")
        k.e("s_nop 0")
        k.e("v_cndmask_b32 v160, v160, v168, vcc")
        k.e("v_cndmask_b32 v36, 0, v160, s[38:39]")
    k.stamp()
    k.e("s_nop 1")
    if not K1G:
        k.e("v_add_f32 v32, v32, v33")
        k.e("v_add_f32 v34, v34, v35")
        k.e("v_add_f32 v36, v36, v37")
        k.e("v_add_f32 v38, v38, v39")
        k.e("v_add_f32 v32, v32, v34")
        k.e("v_add_f32 v36, v36, v38")
    for t in range(3):
        k.e(f"v_add_f32 v{40+4*t}, v{40+4*t}, v{41+4*t}")
        k.e(f"v_add_f32 v{42+4*t}, v{42+4*t}, v{43+4*t}")
        k.e(f"v_add_f32 v{40+4*t}, v{40+4*t}, v{42+4*t}")
    k.e("v_mov_b32 v33, v32")
    k.e("v_mov_b32 v37, v36")
    k.e("s_lshl_b32 s40, s3, 3")
    k.e(f"s_add_u32 s40, s40, {SCR}")
    k.e("v_lshlrev_b32 v13, 5, v12")
    k.e("v_lshl_add_u32 v13, v8, 2, v13")
    k.e("v_add_u32 v13, s40, v13")
    for t in range(3):
        k.e(f"ds_write_b32 v13, v{40+4*t} offset:{1024*t}")
    k.e("v_permlane32_swap_b32 v32, v33")
    k.e("v_permlane32_swap_b32 v36, v37")
    k.e("s_nop 1")
    k.e("v_add_f32 v32, v32, v33")
    k.e("v_add_f32 v36, v36, v37")
    k.e(f"s_mov_b32 s40, {hex(f2u(1.0/448))}")
    k.e("v_mul_f32 v32, s40, v32")
    k.e("v_mul_f32 v36, s40, v36")
    k.e("v_fma_f32 v36, -v32, v32, v36")
    k.e("v_max_f32 v36, 0, v36")
    k.e(f"v_add_f32 v36, {hex(f2u(1e-5))}, v36")
    k.e("v_rsq_f32 v33, v36")
    k.e("s_nop 0")
    k.e("v_mov_b32 v34, v32")
    k.e("v_mov_b32 v35, v33")
    k.e("s_lshl_b32 s40, s3, 8")
    k.e(f"s_add_u32 s40, s40, {SCR+4096}")
    k.e("v_lshl_add_u32 v14, v12, 3, s40")
    k.e("ds_write_b64 v14, v[34:35]")
    k.e("s_waitcnt lgkmcnt(0)")
    k.e("s_barrier")
    k.e("v_lshlrev_b32 v13, 5, v1")
    k.e(f"v_add_u32 v13, {SCR}, v13")
    k.e("ds_read_b128 v[40:43], v13")
    k.e("ds_read_b128 v[44:47], v13 offset:16")
    k.e("v_lshlrev_b32 v13, 5, v12")
    k.e(f"v_add_u32 v13, {SCR+2048}, v13")
    k.e("ds_read_b128 v[48:51], v13")
    k.e("ds_read_b128 v[52:55], v13 offset:16")
    k.e("v_lshlrev_b32 v14, 5, v8")
    k.e("v_add_u32 v14, s40, v14")
    for g in range(4):
        k.e(f"ds_read_b128 {vr(128+8*g,4)}, v14 offset:{64*g}")
        k.e(f"ds_read_b128 {vr(132+8*g,4)}, v14 offset:{64*g+16}")
    k.e("s_waitcnt lgkmcnt(8)")
    for b in (40, 48):
        k.e(f"v_add_f32 v{b}, v{b}, v{b+1}")
        k.e(f"v_add_f32 v{b+2}, v{b+2}, v{b+3}")
        k.e(f"v_add_f32 v{b+4}, v{b+4}, v{b+5}")
        k.e(f"v_add_f32 v{b+6}, v{b+6}, v{b+7}")
        k.e(f"v_add_f32 v{b}, v{b}, v{b+2}")
        k.e(f"v_add_f32 v{b+4}, v{b+4}, v{b+6}")
        k.e(f"v_add_f32 v{b}, v{b}, v{b+4}")
    k.e("s_lshl_b32 s41, s3, 8")
    k.e(f"s_add_u32 s41, s41, {SCR+3072}")
    k.e("v_lshlrev_b32 v13, 2, v1")
    k.e("v_add_u32 v13, s41, v13")
    k.e("ds_write_b32 v13, v40")
    k.e("v_lshlrev_b32 v13, 4, v8")
    k.e("v_add_u32 v13, s41, v13")
    k.e("s_waitcnt lgkmcnt(0)")
    for u in range(2):
        for g in range(4):
            k.e(f"ds_read_b128 {vr(160+16*u+4*g,4)}, v13 offset:{128*u+32*g}")
    k.e("s_lshl_b32 s34, s30, 7")
    k.e("s_lshl_b32 s35, s3, 5")
    k.e("s_add_u32 s34, s34, s35")
    k.e("s_lshl_b32 s36, s34, 6")
    k.e("v_lshlrev_b32 v23, 4, v1")
    k.e("v_add_u32 v23, s36, v23")
    k.e(f"v_mul_f32 v34, {hex(f2u(DH ** -0.5 * math.log2(math.e)))}, v33")
    E = k.L[n_e0:]
    del k.L[n_e0:]
    M = Ml
    K1E = int(os.environ.get("K1E", "7" if K1G == 3 else "5"))
    ei = 0
    for n in range(len(M)):
        k.L.append(M[n])
        k.L += E[ei:ei + K1E]
        ei += K1E
    k.L += E[ei:]
    k.nop(16)
    k.e("s_waitcnt lgkmcnt(0)")
    for c in range(2):
        a = ACC + 16 * c
        rs = "v34" if c == 0 else "v33"
        for r in range(16):
            k.e(f"v_fma_f32 v{a+r}, -v32, v{160+16*c+r}, v{a+r}")
            k.e(f"v_mul_f32 v{a+r}, {rs}, v{a+r}")
        k.e("v_cmp_gt_u32 vcc, 32, v1")
        k.e("s_nop 1")
        for r in range(12, 16):
            pad = "1.0" if (c == 1 and r == 12) else "0"
            k.e(f"v_cndmask_b32 v{a+r}, {pad}, v{a+r}, vcc")
        for g in range(4):
            k.e(f"v_cvt_pk_bf16_f32 v{96+8*c+2*g}, v{a+4*g}, v{a+4*g+1}")
            k.e(f"v_cvt_pk_bf16_f32 v{97+8*c+2*g}, v{a+4*g+2}, v{a+4*g+3}")
        k.e(f"s_mov_b32 s37, {hex(c*0x200000)}")
        for g in range(2):
            k.e(f"buffer_store_dwordx4 v[{96+8*c+4*g}:{99+8*c+4*g}], v23, s[16:19], s37 offen offset:{1024*g}")
    a = ACC + 32
    for r in range(16):
        g, j = r >> 2, r & 3
        mreg = 128 + 8 * g + 2 * j
        k.e(f"v_fma_f32 v{a+r}, -v{mreg}, v48, v{a+r}")
        k.e(f"v_mul_f32 v{a+r}, v{mreg+1}, v{a+r}")
    k.e("v_cmp_gt_u32 vcc, 28, v12")
    k.e("v_cmp_eq_u32 s[38:39], 28, v12")
    k.e("v_cndmask_b32 v27, 0, 1.0, s[38:39]")
    k.e("s_nop 1")
    for r in range(16):
        k.e(f"v_cndmask_b32 v{a+r}, v27, v{a+r}, vcc")
    for r in range(8):
        k.e(f"v_cvt_pk_bf16_f32 v{112+r}, v{a+2*r}, v{a+2*r+1}")
    k.e("s_mov_b32 s37, 0x400000")
    for g_ in range(2):
        k.e(f"buffer_store_dwordx4 v[{112+4*g_}:{115+4*g_}], v23, s[16:19], s37 offen offset:{1024*g_}")
    finish(k)
    return k, 256, (R * SLOT if K1G == 3 else SCR + 4096 + 1024), 256


def gen_k2():
    G.OFRAG = True
    k = G.gen_k2()
    return k, 256, 4 * 32768 + 64, 512


def build():
    ks = [gen_k1(), gen_k2(), gen_sk(3), gen_k4(), gen_sk(5)]
    out = [HEADER.rstrip("\n")]
    for k, g, lds, blk in ks:
        out.append(f"; @launch kernel={k.name} grid=({g},1,1) block=({blk},1,1) lds={lds}")
    out.append('.amdgcn_target "amdgcn-amd-amdhsa--gfx950"')
    out.append(".text")
    for k, g, lds, blk in ks:
        out.append(f".globl {k.name}")
        out.append(".p2align 8")
        out.append(f".type {k.name},@function")
        out.append(f"{k.name}:")
        idx = [kk[0] for kk in ks].index(k)
        L = [l for l in k.L if l is not None]
        if SC1 & (1 << idx):
            end = len(L)
            for n, l in enumerate(L):
                if l.strip().startswith(k.name + "_end"):
                    end = n
            nst = 0
            L2 = []
            for n, l in enumerate(L):
                if "buffer_store" in l and "s[56:59]" not in l and "s[92:95]" not in l:
                    l = l + " " + SCF
                    nst += 1
                L2.append(l)
            L = L2
            print("sc1 stores in", k.name, nst)
        out += L
    out.append('.section .rodata,"a"')
    for k, g, lds, blk in ks:
        out.append(".p2align 6")
        out.append(f".amdhsa_kernel {k.name}")
        out.append("  .amdhsa_next_free_vgpr " + ("512" if k.name.startswith("k1") else "256"))
        out.append("  .amdhsa_next_free_sgpr 102")
        out.append("  .amdhsa_accum_offset 256")
        out.append("  .amdhsa_group_segment_fixed_size 0")
        out.append("  .amdhsa_kernarg_size 80")
        out.append("  .amdhsa_user_sgpr_count 2")
        out.append("  .amdhsa_user_sgpr_kernarg_segment_ptr 1")
        out.append("  .amdhsa_system_sgpr_workgroup_id_x 1")
        out.append(".end_amdhsa_kernel")
    return "\n".join(out) + "\n"


if __name__ == "__main__":
    txt = build()
    open(OUT or ("cdna_kernels/" + NAME + ".s"), "w").write(txt)
    print("written", len(txt))
```

```python
import math, sys, os
STAMP = int(os.environ.get("STAMP", "0"))
EXPT = int(os.environ.get("EXPT", "0"))
OFRAG = False
OUT = os.environ.get("OUT", "")

NAME = "sequential_preLN__softmax_full_mha__geglu_ffn__prompt"
S, D, H, DH, F = 2048, 448, 16, 28, 1792
WS_Q, WS_K, WS_V, WS_O, WS_H, WS_ACT = 0x0, 0x200000, 0x400000, 0x600000, 0x800000, 0xA00000
WS_SIZE = 268435456


def f2u(x):
    import struct
    return struct.unpack("<I", struct.pack("<f", x))[0]


class K:
    def __init__(s, name):
        s.name = name
        s.L = []
        s.nlab = 0
        s.nst = 0

    def e(s, x):
        s.L.append("    " + x)

    def lab(s, l):
        s.L.append(l + ":")

    def newlab(s, p="L"):
        s.nlab += 1
        return f"{s.name}_{p}{s.nlab}"

    def nop(s, n):
        while n > 0:
            k = min(n, 16)
            s.e(f"s_nop {k-1}")
            n -= k

    def stamp(s):
        if STAMP == 2:
            if s.nst == 0:
                s.e("s_memrealtime s[90:91]")
                s.nst = 1
            return
        if not STAMP:
            return
        i = s.nst
        s.nst += 1
        s.e("s_memtime s[60:61]")
        s.e("s_waitcnt lgkmcnt(0)")
        s.e(f"s_mov_b32 s{64+i}, s60")

    def srd(s, sd, sb, off, nbytes):
        if off:
            s.e(f"s_add_u32 s{sd}, s{sb}, {hex(off)}")
            s.e(f"s_addc_u32 s{sd+1}, s{sb+1}, 0")
        else:
            s.e(f"s_mov_b32 s{sd}, s{sb}")
            s.e(f"s_mov_b32 s{sd+1}, s{sb+1}")
        s.e(f"s_mov_b32 s{sd+2}, {hex(nbytes)}")
        s.e(f"s_mov_b32 s{sd+3}, 0x00020000")

    def mfma(s, d, a, b, c):
        cs = f"v[{c}:{c+15}]" if isinstance(c, int) else c
        s.e(f"v_mfma_f32_32x32x16_bf16 v[{d}:{d+15}], v[{a}:{a+3}], v[{b}:{b+3}], {cs}")


def vr(a, n):
    return f"v[{a}:{a+n-1}]"


VA = 64
VACC0 = 176
VACC1 = 192
VB = 208
VPF = 224
A_STRIDE = 912
A_WAVE = 32 * A_STRIDE
BBUF = 28672


def tmpl_prologue(k, nwg, a_arg, a_off, a_bytes):
    k.e(f"s_cmp_ge_u32 s2, {nwg}")
    k.e(f"s_cbranch_scc1 {k.name}_end")
    k.e(f"s_load_dwordx2 s[4:5], s[0:1], {a_arg}")
    k.e(f"s_load_dwordx2 s[28:29], s[0:1], 72")
    k.e("v_and_b32 v1, 63, v0")
    k.e("v_lshrrev_b32 v2, 6, v0")
    k.e("s_nop 0")
    k.e("v_readfirstlane_b32 s3, v2")
    k.stamp()


def b_loads(k, srd, colbytes_sreg_or_imm, stride):
    if isinstance(colbytes_sreg_or_imm, str):
        k.e(f"s_mov_b32 s40, {colbytes_sreg_or_imm}")
    else:
        k.e(f"s_mov_b32 s40, {hex(colbytes_sreg_or_imm)}")
    for i in range(7):
        k.e(f"buffer_load_dwordx4 {vr(VPF+4*i,4)}, v3, s[{srd}:{srd+3}], s40 offen")
        if i < 6:
            k.e(f"s_add_u32 s40, s40, {hex(64*stride)}")


def b_writes(k, buf):
    for i in range(7):
        k.e(f"ds_write_b128 v4, {vr(VPF+4*i,4)} offset:{buf*BBUF + i*4096}")


def a_stage(k, do_ln):
    k.e("v_lshlrev_b32 v5, 4, v1")
    for i in range(28):
        if i % 4 == 0:
            if i == 0:
                k.e("s_mov_b32 s42, s41")
            else:
                k.e("s_add_u32 s42, s42, 4096")
        k.e(f"buffer_load_dwordx4 {vr(VA+4*i,4)}, v5, s[8:11], s42 offen offset:{(i%4)*1024}")
    k.e(f"s_mul_i32 s43, s3, {A_WAVE}")
    k.e("s_movk_i32 s44, 2341")
    addr_regs = []
    for i in range(28):
        pass
    k.e("s_waitcnt vmcnt(0)")
    k.stamp()
    for i in range(28):
        k.e(f"v_add_u32 v7, {i*64}, v1")
        k.e("v_mul_u32_u24 v8, s44, v7")
        k.e("v_lshrrev_b32 v8, 17, v8")
        k.e("v_add_lshl_u32 v7, v7, v8, 4")
        k.e("v_add_u32 v7, s43, v7")
        k.e(f"ds_write_b128 v7, {vr(VA+4*i,4)}")
    k.e("v_and_b32 v7, 31, v1")
    k.e(f"v_mul_u32_u24 v7, {A_STRIDE}, v7")
    k.e("v_lshrrev_b32 v8, 5, v1")
    k.e("v_lshl_add_u32 v7, v8, 4, v7")
    k.e("v_add_u32 v7, s43, v7")
    k.e("s_waitcnt lgkmcnt(0)")
    for s_ in range(28):
        k.e(f"ds_read_b128 {vr(VA+4*s_,4)}, v7 offset:{32*s_}")
    k.e("s_waitcnt lgkmcnt(0)")
    k.stamp()


def a_ln(k):
    k.e("s_mov_b32 s44, 0x3f803f80")
    for r in (8, 9, 10, 11):
        k.e(f"v_mov_b32 v{r}, 0")
    for r in range(112):
        k.e(f"v_dot2_f32_bf16 v{8+(r&1)}, v{VA+r}, s44, v{8+(r&1)}")
        k.e(f"v_dot2_f32_bf16 v{10+(r&1)}, v{VA+r}, v{VA+r}, v{10+(r&1)}")
    k.e("s_nop 1")
    k.e("v_add_f32 v8, v8, v9")
    k.e("v_add_f32 v10, v10, v11")
    k.e("s_nop 0")
    k.e("v_mov_b32 v9, v8")
    k.e("v_mov_b32 v11, v10")
    k.e("s_nop 1")
    k.e("v_permlane32_swap_b32 v8, v9")
    k.e("v_permlane32_swap_b32 v10, v11")
    k.e("s_nop 1")
    k.e("v_add_f32 v8, v8, v9")
    k.e("v_add_f32 v10, v10, v11")
    k.e(f"s_mov_b32 s44, {hex(f2u(1.0/448))}")
    k.e("v_mul_f32 v8, s44, v8")
    k.e("v_mul_f32 v10, s44, v10")
    k.e("v_fma_f32 v10, -v8, v8, v10")
    k.e("v_max_f32 v10, 0, v10")
    k.e(f"v_add_f32 v10, {hex(f2u(1e-5))}, v10")
    k.e("v_rsq_f32 v12, v10")
    k.e("s_nop 0")
    k.e("v_mov_b32 v13, v12")
    k.e("v_mul_f32 v14, v8, v12")
    k.e("v_sub_f32 v14, 0, v14")
    k.e("v_mov_b32 v15, v14")
    for r in range(112):
        t = 16 + 2 * (r & 1)
        k.e(f"v_lshlrev_b32 v{t}, 16, v{VA+r}")
        k.e(f"v_and_b32 v{t+1}, 0xffff0000, v{VA+r}")
        k.e(f"v_pk_fma_f32 v[{t}:{t+1}], v[{t}:{t+1}], v[12:13], v[14:15]")
        k.e(f"v_cvt_pk_bf16_f32 v{VA+r}, v{t}, v{t+1}")
    k.stamp()


def chunk_mfma(k, buf, acc, w_first):
    def rd(s_):
        b = VB + 4 * (s_ % 4)
        k.e(f"ds_read_b64_tr_b16 v[{b}:{b+1}], v21 offset:{buf*BBUF + 1024*s_}")
        k.e(f"ds_read_b64_tr_b16 v[{b+2}:{b+3}], v21 offset:{buf*BBUF + 1024*s_ + 256}")
    for s_ in range(3):
        rd(s_)
    for s_ in range(28):
        if s_ + 3 < 28:
            rd(s_ + 3)
            k.e("s_waitcnt lgkmcnt(6)")
        else:
            k.e(f"s_waitcnt lgkmcnt({2*(27-s_)})")
        b = VB + 4 * (s_ % 4)
        a = VA + 4 * s_
        c = "0" if s_ == 0 else acc
        if w_first:
            k.mfma(acc, b, a, c)
        else:
            k.mfma(acc, a, b, c)
    k.stamp()


def tr_addr(k):
    k.e("v_lshrrev_b32 v22, 5, v1")
    k.e("v_lshlrev_b32 v21, 9, v22")
    k.e("v_bfe_u32 v22, v1, 2, 2")
    k.e("v_lshl_add_u32 v21, v22, 6, v21")
    k.e("v_bfe_u32 v22, v1, 4, 1")
    k.e("v_lshl_add_u32 v21, v22, 5, v21")
    k.e("v_and_b32 v22, 3, v1")
    k.e("v_lshl_add_u32 v21, v22, 3, v21")


def b_thread_addr(k, stride):
    k.e("v_lshrrev_b32 v3, 2, v0")
    k.e(f"s_movk_i32 s44, {stride}" if stride < 32768 else f"s_mov_b32 s44, {stride}")
    k.e("v_mul_u32_u24 v3, s44, v3")
    k.e("v_and_b32 v4, 3, v0")
    k.e("v_lshl_add_u32 v3, v4, 4, v3")
    k.e("v_lshlrev_b32 v4, 4, v0")


KIDX = {"k1": 0, "k2": 1, "k3": 2, "k4": 3, "k5": 4}
def finish(k):
    if STAMP == 2:
        k.e("s_cmp_lg_u32 s3, 0")
        k.e(f"s_cbranch_scc1 {k.name}_end")
        k.e("s_waitcnt vmcnt(0)")
        k.e("s_memrealtime s[92:93]")
        k.srd(56, 28, 0x1F00000 + 8192 * KIDX[k.name[:2]], 8192)
        k.e("s_mov_b64 exec, -1")
        k.e("s_waitcnt lgkmcnt(0)")
        k.e("s_lshl_b32 s63, s2, 4")
        k.e("v_mov_b32 v1, s63")
        k.e("v_mov_b32 v4, s90")
        k.e("v_mov_b32 v5, s92")
        k.e("buffer_store_dwordx2 v[4:5], v1, s[56:59], 0 offen")
    elif STAMP and k.nst:
        k.stamp()
        k.e("s_cmp_lg_u32 s2, 0")
        k.e(f"s_cbranch_scc1 {k.name}_end")
        if os.environ.get("SW"):
            k.e("s_load_dwordx2 s[60:61], s[0:1], 64")
            k.e("s_waitcnt lgkmcnt(0)")
            k.srd(56, 60, 0, 256)
            k.e("s_mov_b64 exec, -1")
            k.e("s_lshl_b32 s63, s3, 5")
            k.e("v_mov_b32 v1, s63")
            for i in range(min(8, k.nst)):
                k.e(f"v_mov_b32 v2, s{64+i}")
                k.e(f"buffer_store_dword v2, v1, s[56:59], 0 offen offset:{4*i}")
            k.lab(f"{k.name}_end")
            k.e("s_endpgm")
            return
        k.e("s_cmp_lg_u32 s3, 0")
        k.e(f"s_cbranch_scc1 {k.name}_end")
        k.e("s_load_dwordx2 s[60:61], s[0:1], 64")
        k.e("s_waitcnt lgkmcnt(0)")
        k.srd(56, 60, 0, 256)
        k.e("s_mov_b64 exec, -1")
        k.e("v_mov_b32 v1, 0")
        for i in range(k.nst):
            k.e(f"s_sub_u32 s63, s{64+i}, s64")
            k.e("v_mov_b32 v2, s63")
            k.e(f"buffer_store_dword v2, v1, s[56:59], 0 offen offset:{4*i}")
    k.lab(f"{k.name}_end")
    k.e("s_endpgm")


def gen_k1():
    k = K("k1_qkv_kernel")
    tmpl_prologue(k, 256, 0, 0, 0)
    k.e("s_load_dwordx2 s[6:7], s[0:1], 8")
    k.e("s_and_b32 s30, s2, 15")
    k.e("s_lshr_b32 s31, s2, 4")
    k.e("s_waitcnt lgkmcnt(0)")
    k.srd(8, 4, 0, S * D * 2)
    k.srd(12, 6, 0, D * 3 * D * 2)
    k.e("s_lshl_b32 s32, s31, 17")
    k.e("s_add_u32 s16, s28, s32")
    k.e("s_addc_u32 s17, s29, 0")
    k.e(f"s_mov_b32 s18, {hex(0x400000 + 0x20000)}")
    k.e("s_mov_b32 s19, 0x00020000")
    b_thread_addr(k, 2688)
    tr_addr(k)
    k.e("s_mul_i32 s33, s31, 56")
    b_loads(k, 12, "s33", 2688)
    k.e("s_lshl_b32 s41, s30, 2")
    k.e("s_add_u32 s41, s41, s3")
    k.e("s_lshl_b32 s34, s41, 5")
    k.e(f"s_mul_i32 s41, s41, {32*896}")
    a_stage(k, True)
    k.e("s_barrier")
    b_writes(k, 0)
    k.e("s_add_u32 s35, s33, 896")
    b_loads(k, 12, "s35", 2688)
    a_ln(k)
    k.e("v_and_b32 v25, 31, v1")
    k.e("v_lshrrev_b32 v26, 5, v1")
    k.e("v_add_u32 v23, s34, v25")
    k.e("v_lshlrev_b32 v23, 6, v23")
    k.e("v_lshl_add_u32 v23, v26, 3, v23")
    k.e("v_lshlrev_b32 v24, 12, v25")
    k.e("v_lshl_add_u32 v24, v26, 4, v24")
    k.e("s_lshl_b32 s36, s34, 1")
    k.e("v_add_u32 v24, s36, v24")
    k.e("s_waitcnt lgkmcnt(0)")
    k.e("s_barrier")
    for c in range(3):
        chunk_mfma(k, c & 1, VACC0, w_first=(c < 2))
        if c < 2:
            k.e("s_waitcnt vmcnt(0)")
            b_writes(k, (c + 1) & 1)
            if c == 0:
                k.e("s_add_u32 s35, s33, 1792")
                b_loads(k, 12, "s35", 2688)
        k.nop(16)
        if c < 2:
            k.e("v_cmp_gt_u32 vcc, 32, v1")
            k.e("s_nop 1")
            if c == 0:
                k.e(f"s_mov_b32 s37, {hex(f2u(DH ** -0.5 * math.log2(math.e)))}")
                for r in range(16):
                    k.e(f"v_mul_f32 v{VACC0+r}, s37, v{VACC0+r}")
            for r in range(12, 16):
                pad = "1.0" if (c == 1 and r == 12) else "0"
                k.e(f"v_cndmask_b32 v{VACC0+r}, {pad}, v{VACC0+r}, vcc")
            for g in range(4):
                k.e(f"v_cvt_pk_bf16_f32 v{28+2*g}, v{VACC0+4*g}, v{VACC0+4*g+1}")
                k.e(f"v_cvt_pk_bf16_f32 v{29+2*g}, v{VACC0+4*g+2}, v{VACC0+4*g+3}")
            k.e(f"s_mov_b32 s37, {hex(c*0x200000)}")
            for g in range(4):
                k.e(f"buffer_store_dwordx2 v[{28+2*g}:{29+2*g}], v23, s[16:19], s37 offen offset:{16*g}")
        else:
            k.e("v_cmp_gt_u32 vcc, 28, v25")
            k.e("v_cmp_eq_u32 s[38:39], 28, v25")
            k.e("v_cndmask_b32 v27, 0, 1.0, s[38:39]")
            k.e("s_nop 1")
            for r in range(16):
                k.e(f"v_cndmask_b32 v{VACC0+r}, v27, v{VACC0+r}, vcc")
            for r in range(8):
                k.e(f"v_cvt_pk_bf16_f32 v{28+r}, v{VACC0+2*r}, v{VACC0+2*r+1}")
            k.e("s_mov_b32 s37, 0x400000")
            for G in range(2):
                k.e(f"buffer_store_dwordx4 v[{28+4*G}:{31+4*G}], v24, s[16:19], s37 offen offset:{32*G}")
        if c < 2:
            k.e("s_waitcnt lgkmcnt(0)")
            k.e("s_barrier")
    finish(k)
    return k


def gen_k2():
    k = K("k2_attn_kernel")
    VQ = 8
    VS = 64
    VO = 128
    VP = 144
    VKF = 176
    VVF = 192
    VPFK = 224
    VPFV = 232
    KB = 256 * 80
    VST = 528
    VBS = 32 * VST
    BUF = KB + VBS
    T = 6.0
    k.e("s_cmp_ge_u32 s2, 256")
    k.e(f"s_cbranch_scc1 {k.name}_end")
    k.e("s_load_dwordx2 s[28:29], s[0:1], 72")
    k.e("v_and_b32 v1, 63, v0")
    k.e("v_lshrrev_b32 v2, 6, v0")
    K2M = int(os.environ.get("K2M", "1"))
    PF = int(os.environ.get("PF", "3"))
    PFC = int(os.environ.get("PFC", "5"))
    if PF:
        k.e("s_load_dwordx2 s[48:49], s[0:1], 16")
        k.e("s_load_dwordx2 s[50:51], s[0:1], 32")
        k.e("s_load_dwordx2 s[52:53], s[0:1], 40")
        k.e("s_load_dwordx2 s[54:55], s[0:1], 48")
    if K2M:
        k.e("s_and_b32 s31, s2, 7")
        k.e("s_lshl_b32 s31, s31, 1")
        k.e("s_lshr_b32 s30, s2, 7")
        k.e("s_add_u32 s31, s31, s30")
        k.e("s_bfe_u32 s30, s2, 0x40003")
    else:
        k.e("s_and_b32 s30, s2, 15")
        k.e("s_lshr_b32 s31, s2, 4")
    k.e("v_readfirstlane_b32 s3, v2")
    k.e("s_lshl_b32 s32, s31, 17")
    k.e("s_and_b32 s33, s3, 3")
    k.e("s_lshr_b32 s44, s3, 2")
    k.e("s_waitcnt lgkmcnt(0)")
    k.e("s_add_u32 s8, s28, s32")
    k.e("s_addc_u32 s9, s29, 0")
    k.e(f"s_mov_b32 s10, {hex(0x400000 + 0x20000)}")
    k.e("s_mov_b32 s11, 0x00020000")
    k.srd(16, 28, WS_O, 64 * 32 * 1024 if OFRAG else S * D * 2)
    k.e("s_lshl_b32 s34, s30, 2")
    k.e("s_add_u32 s34, s34, s33")
    k.e("s_lshl_b32 s34, s34, 5")
    k.e("v_and_b32 v25, 31, v1")
    k.e("v_lshrrev_b32 v26, 5, v1")
    k.e("s_lshl_b32 s45, s34, 6")
    k.e("v_lshlrev_b32 v4, 4, v1")
    k.e("v_add_u32 v3, s45, v4")
    k.e("buffer_load_dwordx4 v[8:11], v3, s[8:11], 0 offen")
    k.e("buffer_load_dwordx4 v[12:15], v3, s[8:11], 0 offen offset:1024")
    k.e("s_lshl_b32 s45, s44, 13")
    k.e("v_add_u32 v18, s45, v4")
    k.e("v_add_u32 v42, 0x10000, v18")
    k.e("s_lshl_b32 s43, s3, 11")
    k.e("s_mov_b32 s46, 0")
    k.e("s_mov_b32 s47, -1")

    CB = 32768

    def g_loads(buf):
        k.e(f"s_add_u32 m0, s43, {buf*CB}")
        k.e("s_add_u32 s36, s35, 0x200000")
        k.e("buffer_load_dwordx4 v4, s[8:11], s35 offen lds")
        k.e("buffer_load_dwordx4 v4, s[8:11], s35 offen offset:1024 lds")
        k.e(f"s_add_u32 m0, s43, {buf*CB+16384}")
        k.e("s_add_u32 s35, s35, 16384")
        k.e("buffer_load_dwordx4 v4, s[8:11], s36 offen lds")
        k.e("buffer_load_dwordx4 v4, s[8:11], s36 offen offset:1024 lds")

    def chunk(buf, first):
        k.e("s_waitcnt vmcnt(0)")
        k.e("s_barrier")
        skip = k.newlab("skip")
        k.e(f"s_cmp_ge_u32 s35, {hex(0x200000 + 8*16384)}")
        k.e(f"s_cbranch_scc1 {skip}")
        g_loads(buf ^ 1)
        k.lab(skip)
        for kt in range(4):
            kf = VKF + 8 * (kt & 1)
            k.e(f"ds_read_b128 {vr(kf,4)}, v18 offset:{buf*CB + kt*2048}")
            k.e(f"ds_read_b128 {vr(kf+4,4)}, v18 offset:{buf*CB + kt*2048 + 1024}")
            if kt >= 1:
                pk = VKF + 8 * ((kt - 1) & 1)
                k.e("s_waitcnt lgkmcnt(2)")
                k.mfma(VS + 16 * (kt - 1), pk, VQ, "0")
                k.mfma(VS + 16 * (kt - 1), pk + 4, VQ + 4, VS + 16 * (kt - 1))
        k.e("s_waitcnt lgkmcnt(0)")
        k.mfma(VS + 48, VKF + 8, VQ, "0")
        k.mfma(VS + 48, VKF + 12, VQ + 4, VS + 48)
        for kt in range(4):
            for G in range(2):
                k.e(f"ds_read_b128 {vr(VVF+4*(2*kt+G),4)}, v18 offset:{buf*CB + 16384 + kt*2048 + 1024*G}")
        k.nop(12)
        k.e(f"v_max3_f32 v21, v{VS}, v{VS+1}, v{VS+2}")
        for i in range(3, 63, 2):
            k.e(f"v_max3_f32 v21, v21, v{VS+i}, v{VS+i+1}")
        k.e(f"v_max_f32 v21, v21, v{VS+63}")
        fast = k.newlab("fast")
        if not first:
            k.e("v_cmp_lt_f32 vcc, s38, v21")
            k.e(f"s_cbranch_vccz {fast}")
        k.e("v_mov_b32 v22, v21")
        k.e("s_nop 1")
        k.e("v_permlane32_swap_b32 v21, v22")
        k.e("s_nop 1")
        k.e("v_max_f32 v21, v21, v22")
        if not first:
            k.e("v_max_f32 v21, 0, v21")
        k.e("v_add_f32 v22, v20, v21")
        k.e("v_cvt_pk_bf16_f32 v23, v22, v22")
        k.e("v_lshlrev_b32 v22, 16, v23")
        k.e("v_sub_f32 v21, v22, v20")
        k.e("v_mov_b32 v20, v22")
        for i in range(64):
            k.e(f"v_sub_f32 v{VS+i}, v{VS+i}, v21")
        if not first:
            k.e("v_exp_f32 v24, -v21")
            k.e("s_nop 0")
            for r in range(16):
                k.e(f"v_mul_f32 v{VO+r}, v{VO+r}, v24")
        k.e("v_xor_b32 v23, 0x8000, v23")
        k.e("v_and_b32 v23, 0xffff, v23")
        k.e(f"v_cndmask_b32 v{VQ+6}, v{VQ+6}, v23, s[46:47]")
        k.lab(fast)
        for i in range(64):
            k.e(f"v_exp_f32 v{VS+i}, v{VS+i}")
        k.e("s_nop 0")
        for i in range(32):
            k.e(f"v_cvt_pk_bf16_f32 v{VP+i}, v{VS+2*i}, v{VS+2*i+1}")
        k.e("s_waitcnt lgkmcnt(0)")
        k.e("s_nop 1")
        for kt in range(4):
            for G in range(2):
                j = 2 * kt + G
                k.mfma(VO, VVF + 4 * j, VP + 4 * j, VO)

    FS = [64, 80]
    FP = [96, 104]
    FK = [112, 120]
    FV = [128, 136]
    FO = 144
    FLAG = 4 * CB
    vq = []

    def fdma(c, part):
        buf = c % 4
        k.e(f"s_add_u32 m0, s43, {buf*CB + 16384*part}")
        k.e(f"s_add_u32 s35, s43, {hex(0x200000*(part+1) + c*16384)}")
        k.e("buffer_load_dwordx4 v4, s[8:11], s35 offen lds")
        k.e("buffer_load_dwordx4 v4, s[8:11], s35 offen offset:1024 lds")
        vq.extend([c, c])

    def vwait(c):
        idx = max(i for i, t_ in enumerate(vq) if t_ == c)
        k.e(f"s_waitcnt vmcnt({len(vq) - 1 - idx})")

    def rdK(t):
        c, kt = t >> 2, t & 3
        kf = FK[t & 1]
        a, o = ("v18" if (c % 4) < 2 else "v42"), (c & 1) * CB
        k.e(f"ds_read_b128 {vr(kf,4)}, {a} offset:{o + kt*2048}")
        k.e(f"ds_read_b128 {vr(kf+4,4)}, {a} offset:{o + kt*2048 + 1024}")

    def rdV(t):
        c, kt = t >> 2, t & 3
        vf = FV[t & 1]
        for G in range(2):
            a, o = ("v18" if (c % 4) < 2 else "v42"), (c & 1) * CB
            k.e(f"ds_read_b128 {vr(vf+4*G,4)}, {a} offset:{o + 16384 + kt*2048 + 1024*G}")

    k.stamp()
    K2Q = int(os.environ.get("K2Q", "4"))
    for c_ in range(3 if K2Q == 0 else 1):
        fdma(c_, 0)
        if K2Q != 4:
            fdma(c_, 1)
    if K2Q:
        k.e("s_barrier")
    if K2Q == 4:
        fdma(0, 1)
    if K2Q in (1, 3, 4):
        fdma(1, 0)
        fdma(1, 1)
    if K2Q == 3:
        fdma(2, 0)
    if K2Q == 4:
        k.e(f"s_waitcnt vmcnt({len(vq) - 2})")
    else:
        vwait(0)
    k.stamp()
    k.e("s_barrier")
    for kt in range(4):
        k.e(f"ds_read_b128 {vr(128+8*kt,4)}, v18 offset:{kt*2048}")
        k.e(f"ds_read_b128 {vr(132+8*kt,4)}, v18 offset:{kt*2048 + 1024}")
    for kt in range(4):
        k.e(f"s_waitcnt lgkmcnt({6-2*kt})")
        k.mfma(64 + 16 * kt, 128 + 8 * kt, VQ, "0")
        k.mfma(64 + 16 * kt, 132 + 8 * kt, VQ + 4, 64 + 16 * kt)
    rdK(0)
    rdK(1)
    if K2Q == 2:
        fdma(1, 0)
        fdma(1, 1)
    if K2Q in (1, 2, 4):
        fdma(2, 0)
    if K2Q:
        fdma(2, 1)
    k.nop(12)
    k.e("v_max3_f32 v21, v64, v65, v66")
    for i in range(3, 63, 2):
        k.e(f"v_max3_f32 v21, v21, v{64+i}, v{64+i+1}")
    k.e("v_max_f32 v21, v21, v127")
    k.e("v_mov_b32 v22, v21")
    k.e("s_nop 1")
    k.e("v_permlane32_swap_b32 v21, v22")
    k.e("s_nop 1")
    k.e("v_max_f32 v21, v21, v22")
    k.e("v_cvt_pk_bf16_f32 v23, v21, v21")
    k.e("v_lshlrev_b32 v20, 16, v23")
    k.e("v_xor_b32 v23, 0x8000, v23")
    k.e("v_and_b32 v23, 0xffff, v23")
    k.e(f"v_cndmask_b32 v{VQ+6}, v{VQ+6}, v23, s[46:47]")
    k.e("s_waitcnt lgkmcnt(0)")
    k.e("s_nop 1")
    k.mfma(FS[0], FK[0], VQ, "0")
    k.mfma(FS[0], FK[0] + 4, VQ + 4, FS[0])
    k.nop(16)
    if K2Q == 4:
        vwait(0)
        k.e("s_barrier")
    NT = 32
    for t in range(NT):
        c, kt = t >> 2, t & 3
        if kt == 0:
            k.stamp()
        if kt == 1 and EXPT != 6:
            if c + 1 < 8:
                vwait(c + 1)
            k.e("s_barrier")
        nrd = 0
        if EXPT != 4:
            if t + 2 < NT:
                rdK(t + 2); nrd += 2
            rdV(t); nrd += 2
            k.e(f"s_waitcnt lgkmcnt({nrd})")
        if EXPT == 7:
            sv_mfma = k.mfma
            k.mfma = lambda *a: None
        s = FS[t & 1]
        sn = FS[(t + 1) & 1]
        p = FP[t & 1]
        pp = FP[(t - 1) & 1]
        kf = FK[(t + 1) & 1]
        vf = FV[(t - 1) & 1]
        def ex(a, b):
            for i in range(a, b):
                if EXPT == 1:
                    k.e(f"v_mul_f32 v{s+i}, v{s+i}, v{s+i}")
                elif EXPT in (2, 4, 5, 6):
                    pass
                else:
                    k.e(f"v_exp_f32 v{s+i}, v{s+i}")
        def cv(a, b):
            for i in range(a, b):
                if EXPT not in (3, 5):
                    k.e(f"v_cvt_pk_bf16_f32 v{p+i}, v{s+2*i}, v{s+2*i+1}")
        if t + 1 < NT:
            k.mfma(sn, kf, VQ, "0")
        ex(0, 4)
        if t + 1 < NT:
            k.mfma(sn, kf + 4, VQ + 4, sn)
        ex(4, 8)
        cv(0, 2)
        if t >= 1:
            k.mfma(FO, vf, pp, "0" if t == 1 else FO)
        ex(8, 12)
        cv(2, 4)
        if t >= 1:
            k.mfma(FO, vf + 4, pp + 4, FO)
        ex(12, 16)
        cv(4, 8)
        if EXPT == 7:
            k.mfma = sv_mfma
        if kt in (1, 2) and c + 3 < 8:
            fdma(c + 3, kt - 1)
        if kt == 2:
            if c == PFC and PF:
                k.e("s_and_b32 s80, s2, 7")
                if os.environ.get("PFX"):
                    k.e("s_xor_b32 s80, s80, 4")
                k.e("s_lshr_b32 s81, s2, 3")
                k.e("v_lshrrev_b32 v244, 4, v1")
                k.e("s_lshl_b32 s82, s33, 2")
                k.e("v_add_u32 v244, s82, v244")
                k.e("v_min_u32 v244, 13, v244")
                k.e("s_mul_i32 s82, s81, 14")
                k.e("v_add_u32 v244, s82, v244")
                k.e("s_movk_i32 s82, 3584")
                k.e("v_mul_u32_u24 v244, s82, v244")
                k.e("v_and_b32 v245, 15, v1")
                k.e("v_min_u32 v245, 13, v245")
                k.e("v_lshl_add_u32 v244, v245, 7, v244")
                k.e("s_lshr_b32 s82, s80, 2")
                k.e("s_mul_i32 s82, s82, 1792")
                k.e("s_cmp_eq_u32 s44, 0")
                k.e("s_cselect_b32 s84, s50, s52")
                k.e("s_cselect_b32 s85, s51, s53")
                k.e(f"s_mov_b32 s86, {D*F*2}")
                k.e("s_mov_b32 s87, 0x00020000")
                if PF & 1:
                    k.e("buffer_load_dword v240, v244, s[84:87], s82 offen")
                    vq.append("pf")
                k.e("v_min_u32 v245, 97, v0")
                k.e("v_lshlrev_b32 v245, 7, v245")
                k.e("s_mul_i32 s82, s81, 12544")
                k.srd(84, 48, 0, D * D * 2)
                if PF & 2:
                    k.e("buffer_load_dword v241, v245, s[84:87], s82 offen")
                    vq.append("pf")
                k.e("v_min_u32 v246, 391, v0")
                k.e("v_lshlrev_b32 v246, 7, v246")
                k.e("s_mul_i32 s82, s81, 50176")
                k.srd(84, 54, 0, D * F * 2)
                if PF & 4:
                    k.e("buffer_load_dword v242, v246, s[84:87], s82 offen")
                    vq.append("pf")
    k.stamp()
    k.e("s_waitcnt lgkmcnt(0)")
    k.e("s_nop 1")
    k.mfma(FO, FV[(NT - 1) & 1], FP[(NT - 1) & 1], FO)
    k.mfma(FO, FV[(NT - 1) & 1] + 4, FP[(NT - 1) & 1] + 4, FO)
    k.nop(16)
    for r in range(16):
        k.e(f"v_mov_b32 v{VO+r}, v{FO+r}") if VO != FO else None
    k.e(f"s_mov_b32 s38, {hex(f2u(2.0**40))}")
    k.e(f"v_cmp_nlt_f32 vcc, v{FO+12}, s38")
    k.e("s_and_b64 vcc, vcc, s[46:47]")
    k.e("s_cmp_lg_u64 vcc, 0")
    k.e("s_cselect_b32 s38, 1, 0")
    k.e("v_mov_b32 v21, s38")
    k.e("v_lshlrev_b32 v22, 2, v2")
    k.e(f"v_add_u32 v22, {FLAG}, v22")
    k.e(f"ds_write_b32 v22, v21")
    k.e("s_waitcnt lgkmcnt(0)")
    k.e("s_barrier")
    k.e("v_and_b32 v22, 7, v1")
    k.e("v_lshlrev_b32 v22, 2, v22")
    k.e(f"v_add_u32 v22, {FLAG}, v22")
    k.e(f"ds_read_b32 v21, v22")
    k.e("s_waitcnt lgkmcnt(0)")
    k.e("v_cmp_ne_u32 vcc, 0, v21")
    combine = k.newlab("combine")
    k.e(f"s_cbranch_vccz {combine}")
    k.e(f"v_cndmask_b32 v{VQ+6}, v{VQ+6}, 0, s[46:47]")
    k.e("s_waitcnt vmcnt(0)")
    k.e("s_barrier")
    k.e("s_add_u32 s35, s43, 0x200000")
    g_loads(0)
    for r in range(16):
        k.e(f"v_mov_b32 v{VO+r}, 0")
    k.e("v_mov_b32 v20, 0")
    k.e(f"s_mov_b32 s38, {hex(f2u(T))}")
    chunk(0, True)
    chunk(1, False)
    k.e("s_mov_b32 s39, 0")
    loop = k.newlab("loop")
    k.lab(loop)
    chunk(0, False)
    chunk(1, False)
    k.e("s_add_u32 s39, s39, 1")
    k.e("s_cmp_lt_u32 s39, 3")
    k.e(f"s_cbranch_scc1 {loop}")
    k.nop(16)
    k.lab(combine)
    k.e("v_lshlrev_b32 v3, 2, v1")
    k.e(f"s_mul_i32 s45, s33, {17*256}")
    k.e("v_add_u32 v3, s45, v3")
    up = k.newlab("up")
    k.e("s_cmp_eq_u32 s44, 0")
    k.e(f"s_cbranch_scc1 {up}")
    for r in range(16):
        k.e(f"ds_write_b32 v3, v{VO+r} offset:{256*r}")
    k.e(f"ds_write_b32 v3, v20 offset:{256*16}")
    k.e("s_waitcnt lgkmcnt(0)")
    k.e("s_barrier")
    k.e("s_endpgm")
    k.lab(up)
    k.e("s_barrier")
    for r in range(16):
        k.e(f"ds_read_b32 v{VS+r}, v3 offset:{256*r}")
    k.e(f"ds_read_b32 v{VS+16}, v3 offset:{256*16}")
    k.e("s_waitcnt lgkmcnt(0)")
    k.e(f"v_max_f32 v21, v20, v{VS+16}")
    k.e("v_sub_f32 v22, v20, v21")
    k.e(f"v_sub_f32 v23, v{VS+16}, v21")
    k.e("v_exp_f32 v22, v22")
    k.e("v_exp_f32 v23, v23")
    k.e("s_nop 0")
    for r in range(16):
        k.e(f"v_mul_f32 v{VO+r}, v{VO+r}, v22")
        k.e(f"v_fma_f32 v{VO+r}, v{VS+r}, v23, v{VO+r}")
    k.e("s_nop 0")
    k.e(f"v_mov_b32 v21, v{VO+12}")
    k.e(f"v_mov_b32 v22, v{VO+12}")
    k.e("s_nop 1")
    k.e("v_permlane32_swap_b32 v21, v22")
    k.e("s_nop 1")
    k.e("v_rcp_f32 v22, v22")
    k.e("s_nop 0")
    for r in range(16):
        k.e(f"v_mul_f32 v{VO+r}, v{VO+r}, v22")
    if OFRAG:
        for r in range(12, 16):
            k.e(f"v_cndmask_b32 v{VO+r}, v{VO+r}, 0, s[46:47]")
    for g in range(4):
        k.e(f"v_cvt_pk_bf16_f32 v{28+2*g}, v{VO+4*g}, v{VO+4*g+1}")
        k.e(f"v_cvt_pk_bf16_f32 v{29+2*g}, v{VO+4*g+2}, v{VO+4*g+3}")
    if OFRAG:
        k.e("v_lshlrev_b32 v3, 4, v1")
        k.e("s_lshr_b32 s40, s34, 5")
        k.e("s_lshl_b32 s40, s40, 5")
        k.e("s_lshl_b32 s41, s31, 1")
        k.e("s_add_u32 s40, s40, s41")
        k.e("s_lshl_b32 s40, s40, 10")
        for g in range(2):
            k.e(f"buffer_store_dwordx4 v[{28+4*g}:{31+4*g}], v3, s[16:19], s40 offen offset:{1024*g}")
        finish(k)
        return k
    k.e("v_add_u32 v3, s34, v25")
    k.e("s_movk_i32 s40, 896")
    k.e("v_mul_u32_u24 v3, s40, v3")
    k.e("v_lshl_add_u32 v3, v26, 3, v3")
    k.e("s_mul_i32 s40, s31, 56")
    for g in range(3):
        k.e(f"buffer_store_dwordx2 v[{28+2*g}:{29+2*g}], v3, s[16:19], s40 offen offset:{16*g}")
    k.e("v_cmp_gt_u32 vcc, 32, v1")
    k.e("s_and_saveexec_b64 s[42:43], vcc")
    k.e(f"buffer_store_dwordx2 v[34:35], v3, s[16:19], s40 offen offset:48")
    finish(k)
    return k


def gen_k3():
    k = K("k3_wo_kernel")
    tmpl_prologue(k, 224, 72, 0, 0)
    k.e("s_load_dwordx2 s[6:7], s[0:1], 16")
    k.e("s_load_dwordx2 s[20:21], s[0:1], 0")
    k.e("s_and_b32 s30, s2, 15")
    k.e("s_lshr_b32 s31, s2, 4")
    k.e("s_waitcnt lgkmcnt(0)")
    k.srd(8, 4, WS_O, S * D * 2)
    k.srd(12, 6, 0, D * D * 2)
    k.srd(16, 28, WS_H, S * D * 2)
    k.srd(24, 20, 0, S * D * 2)
    b_thread_addr(k, 896)
    tr_addr(k)
    k.e("s_lshl_b32 s33, s31, 6")
    b_loads(k, 12, "s33", 896)
    k.e("s_lshl_b32 s41, s30, 2")
    k.e("s_add_u32 s41, s41, s3")
    k.e("s_lshl_b32 s34, s41, 5")
    k.e(f"s_mul_i32 s41, s41, {32*896}")
    a_stage(k, False)
    k.e("s_barrier")
    b_writes(k, 0)
    k.e("v_and_b32 v25, 31, v1")
    k.e("v_lshrrev_b32 v26, 5, v1")
    k.e("v_add_u32 v23, s34, v25")
    k.e("s_movk_i32 s40, 896")
    k.e("v_mul_u32_u24 v23, s40, v23")
    k.e("v_lshl_add_u32 v23, v26, 3, v23")
    for g in range(4):
        k.e(f"buffer_load_dwordx2 v[{28+2*g}:{29+2*g}], v23, s[24:27], s33 offen offset:{16*g}")
    k.e("s_waitcnt lgkmcnt(0)")
    k.e("s_barrier")
    chunk_mfma(k, 0, VACC0, True)
    k.nop(16)
    k.e("s_waitcnt vmcnt(0)")
    for g in range(4):
        for h in range(2):
            src = 28 + 2 * g + h
            k.e(f"v_lshlrev_b32 v36, 16, v{src}")
            k.e(f"v_and_b32 v37, 0xffff0000, v{src}")
            k.e(f"v_add_f32 v36, v36, v{VACC0+4*g+2*h}")
            k.e(f"v_add_f32 v37, v37, v{VACC0+4*g+2*h+1}")
            k.e(f"v_cvt_pk_bf16_f32 v{src}, v36, v37")
    for g in range(4):
        k.e(f"buffer_store_dwordx2 v[{28+2*g}:{29+2*g}], v23, s[16:19], s33 offen offset:{16*g}")
    finish(k)
    return k


def gen_k4():
    k = K("k4_ffn1_kernel")
    tmpl_prologue(k, 224, 72, 0, 0)
    k.e("s_load_dwordx2 s[6:7], s[0:1], 32")
    k.e("s_load_dwordx2 s[20:21], s[0:1], 40")
    k.e("s_and_b32 s30, s2, 15")
    k.e("s_lshr_b32 s31, s2, 4")
    k.e("s_waitcnt lgkmcnt(0)")
    k.srd(8, 4, WS_H, S * D * 2)
    k.srd(12, 6, 0, D * F * 2)
    k.srd(24, 20, 0, D * F * 2)
    k.srd(16, 28, WS_ACT, S * F * 2)
    b_thread_addr(k, 3584)
    tr_addr(k)
    k.e("s_lshl_b32 s33, s31, 8")
    b_loads(k, 12, "s33", 3584)
    k.e("s_lshl_b32 s41, s30, 2")
    k.e("s_add_u32 s41, s41, s3")
    k.e("s_lshl_b32 s34, s41, 5")
    k.e(f"s_mul_i32 s41, s41, {32*896}")
    a_stage(k, True)
    k.e("s_barrier")
    b_writes(k, 0)
    b_loads(k, 24, "s33", 3584)
    a_ln(k)
    k.e("v_and_b32 v25, 31, v1")
    k.e("v_lshrrev_b32 v26, 5, v1")
    k.e("v_add_u32 v23, s34, v25")
    k.e("s_movk_i32 s40, 3584")
    k.e("v_mul_u32_u24 v23, s40, v23")
    k.e("v_lshl_add_u32 v23, v26, 3, v23")
    c0 = -2.0 * math.log2(math.e) * math.sqrt(2.0 / math.pi)
    c1 = c0 * 0.044715
    k.e(f"s_mov_b32 s45, {hex(f2u(c0))}")
    k.e(f"s_mov_b32 s46, {hex(f2u(c1))}")
    k.e("s_waitcnt lgkmcnt(0)")
    k.e("s_barrier")
    nch = 8
    for c in range(nch):
        acc = VACC0 if c % 2 == 0 else VACC1
        chunk_mfma(k, c & 1, acc, True)
        if c + 1 < nch:
            k.e("s_waitcnt vmcnt(0)")
            b_writes(k, (c + 1) & 1)
            if c + 2 < nch:
                j = (c + 2) // 2
                k.e(f"s_add_u32 s35, s33, {64*j}")
                b_loads(k, 12 if (c + 2) % 2 == 0 else 24, "s35", 3584)
        if c % 2 == 1:
            k.nop(16)
            for r in range(16):
                g_, u_ = VACC0 + r, VACC1 + r
                t = 36 + (r & 3)
                k.e(f"v_mul_f32 v{t}, v{g_}, v{g_}")
                k.e(f"v_fma_f32 v{t}, v{t}, s46, v47")
                k.e(f"v_mul_f32 v{t}, v{t}, v{g_}")
                k.e(f"v_exp_f32 v{t}, v{t}")
                k.e("s_nop 0")
                k.e(f"v_add_f32 v{t}, 1.0, v{t}")
                k.e(f"v_rcp_f32 v{t}, v{t}")
                k.e("s_nop 0")
                k.e(f"v_mul_f32 v{t}, v{t}, v{g_}")
                k.e(f"v_mul_f32 v{g_}, v{t}, v{u_}")
            for g in range(4):
                k.e(f"v_cvt_pk_bf16_f32 v{28+2*g}, v{VACC0+4*g}, v{VACC0+4*g+1}")
                k.e(f"v_cvt_pk_bf16_f32 v{29+2*g}, v{VACC0+4*g+2}, v{VACC0+4*g+3}")
            k.e(f"s_add_u32 s37, s33, {64*(c//2)}")
            for g in range(4):
                k.e(f"buffer_store_dwordx2 v[{28+2*g}:{29+2*g}], v23, s[16:19], s37 offen offset:{16*g}")
        if c + 1 < nch:
            k.e("s_waitcnt lgkmcnt(0)")
            k.e("s_barrier")
        if c == 0:
            k.e("v_mov_b32 v47, s45")
    finish(k)
    return k


def gen_k5():
    k = K("k5_down_kernel")
    AST = 464
    ABUF = 64 * AST
    BB = 2 * 224 * 64
    BUF = ABUF + BB
    VPA = 64
    VPB = 96
    VAF = 128
    VBF = 144
    ACC = 160
    k.e("s_cmp_ge_u32 s2, 224")
    k.e(f"s_cbranch_scc1 {k.name}_end")
    k.e("s_load_dwordx2 s[28:29], s[0:1], 72")
    k.e("s_load_dwordx2 s[6:7], s[0:1], 48")
    k.e("s_load_dwordx2 s[20:21], s[0:1], 56")
    k.e("v_and_b32 v1, 63, v0")
    k.e("v_lshrrev_b32 v2, 6, v0")
    k.e("s_and_b32 s30, s2, 31")
    k.e("s_lshr_b32 s31, s2, 5")
    k.e("v_readfirstlane_b32 s3, v2")
    k.e("s_waitcnt lgkmcnt(0)")
    k.srd(8, 28, WS_ACT, S * F * 2)
    k.srd(12, 6, 0, F * D * 2)
    k.srd(16, 20, 0, S * D * 2)
    k.srd(24, 28, WS_H, S * D * 2)
    k.e("s_movk_i32 s44, 2341")
    k.e("s_movk_i32 s44, 4682")
    for i in range(7):
        k.e(f"v_add_u32 v7, {i*256}, v0")
        k.e("v_mul_u32_u24 v8, s44, v7")
        k.e("v_lshrrev_b32 v8, 17, v8")
        k.e("v_mul_u32_u24 v9, 28, v8")
        k.e("v_sub_u32 v9, v7, v9")
        k.e("v_mul_u32_u24 v10, s45, v8") if False else None
        k.e(f"v_lshlrev_b32 v10, 4, v9")
        k.e(f"s_movk_i32 s45, 3584")
        k.e(f"v_mad_u32_u24 v{32+i}, v8, s45, v10")
        k.e(f"s_movk_i32 s45, {AST}")
        k.e(f"v_mad_u32_u24 v{40+i}, v8, s45, v10")
    k.e("v_lshrrev_b32 v7, 3, v0")
    k.e("v_and_b32 v8, 7, v0")
    k.e("s_movk_i32 s45, 896")
    k.e("v_mul_u32_u24 v48, s45, v7")
    k.e("v_lshl_add_u32 v48, v8, 4, v48")
    k.e("v_lshlrev_b32 v49, 6, v7")
    k.e("v_and_b32 v9, 3, v8")
    k.e("v_lshl_add_u32 v49, v9, 4, v49")
    k.e("v_lshrrev_b32 v9, 2, v8")
    k.e(f"s_movk_i32 s45, {224*64}")
    k.e("v_mad_u32_u24 v49, v9, s45, v49")
    k.e(f"v_add_u32 v49, {ABUF}, v49")
    k.e(f"s_mul_i32 s35, s30, {64*3584}")
    k.e("s_lshl_b32 s36, s31, 7")

    def g_loads():
        for i in range(7):
            k.e(f"buffer_load_dwordx4 {vr(VPA+4*i,4)}, v{32+i}, s[8:11], s35 offen")
        k.e("s_mov_b32 s37, s36")
        for i in range(7):
            k.e(f"buffer_load_dwordx4 {vr(VPB+4*i,4)}, v48, s[12:15], s37 offen")
            if i < 6:
                k.e(f"s_add_u32 s37, s37, {32*896}")
        k.e("s_add_u32 s35, s35, 448")
        k.e(f"s_add_u32 s36, s36, {224*896}")

    def l_writes(buf):
        for i in range(7):
            k.e(f"ds_write_b128 v{(50 if buf else 40)+i}, {vr(VPA+4*i,4)}")
        for i in range(7):
            k.e(f"ds_write_b128 v{57 if buf else 49}, {vr(VPB+4*i,4)} offset:{i*32*64}")

    g_loads()
    for i in range(7):
        k.e(f"v_add_u32 v{50+i}, {BUF}, v{40+i}")
    k.e(f"v_add_u32 v57, {BUF}, v49")
    tr_addr(k)
    k.e("s_and_b32 s38, s3, 1")
    k.e(f"s_mul_i32 s38, s38, {224*64}")
    k.e(f"s_add_u32 s38, s38, {ABUF}")
    k.e("v_add_u32 v21, s38, v21")
    k.e("s_lshr_b32 s39, s3, 1")
    k.e("v_and_b32 v25, 31, v1")
    k.e("v_lshrrev_b32 v26, 5, v1")
    k.e("s_lshl_b32 s40, s39, 5")
    k.e("v_add_u32 v20, s40, v25")
    k.e(f"s_movk_i32 s45, {AST}")
    k.e("v_mul_u32_u24 v20, s45, v20")
    k.e("v_lshl_add_u32 v20, v26, 4, v20")
    k.e(f"v_add_u32 v58, {BUF}, v20")
    k.e(f"v_add_u32 v59, {BUF}, v21")
    k.e("s_waitcnt vmcnt(0)")
    l_writes(0)
    g_loads()
    k.e("s_waitcnt lgkmcnt(0)")
    k.e("s_barrier")
    for c in range(8):
        buf = c & 1

        def rd(s_):
            a = VAF + 4 * (s_ % 4)
            b = VBF + 4 * (s_ % 4)
            k.e(f"ds_read_b128 {vr(a,4)}, v{58 if buf else 20} offset:{32*s_}")
            k.e(f"ds_read_b64_tr_b16 v[{b}:{b+1}], v{59 if buf else 21} offset:{1024*s_}")
            k.e(f"ds_read_b64_tr_b16 v[{b+2}:{b+3}], v{59 if buf else 21} offset:{1024*s_ + 256}")
        for s_ in range(3):
            rd(s_)
        for s_ in range(14):
            if s_ + 3 < 14:
                rd(s_ + 3)
                k.e("s_waitcnt lgkmcnt(9)")
            else:
                k.e(f"s_waitcnt lgkmcnt({3*(13-s_)})")
            a = VAF + 4 * (s_ % 4)
            b = VBF + 4 * (s_ % 4)
            k.mfma(ACC, b, a, "0" if (c == 0 and s_ == 0) else ACC)
        if c + 1 < 8:
            k.e("s_waitcnt vmcnt(0)")
            l_writes(buf ^ 1)
            if c + 2 < 8:
                g_loads()
            k.e("s_waitcnt lgkmcnt(0)")
            k.e("s_barrier")
    k.e("s_lshl_b32 s41, s30, 6")
    k.e("s_add_u32 s41, s41, s40")
    k.e("v_add_u32 v23, s41, v25")
    k.e("s_movk_i32 s45, 896")
    k.e("v_mul_u32_u24 v23, s45, v23")
    k.e("v_lshl_add_u32 v23, v26, 3, v23")
    k.e("s_lshl_b32 s42, s31, 7")
    k.e("s_and_b32 s43, s3, 1")
    k.e("s_lshl_b32 s43, s43, 6")
    k.e("s_add_u32 s42, s42, s43")
    for g in range(4):
        k.e(f"buffer_load_dwordx2 v[{28+2*g}:{29+2*g}], v23, s[24:27], s42 offen offset:{16*g}")
    k.nop(16)
    k.e("s_waitcnt vmcnt(0)")
    for g in range(4):
        for h in range(2):
            src = 28 + 2 * g + h
            k.e(f"v_lshlrev_b32 v36, 16, v{src}")
            k.e(f"v_and_b32 v37, 0xffff0000, v{src}")
            k.e(f"v_add_f32 v36, v36, v{ACC+4*g+2*h}")
            k.e(f"v_add_f32 v37, v37, v{ACC+4*g+2*h+1}")
            k.e(f"v_cvt_pk_bf16_f32 v{src}, v36, v37")
    for g in range(4):
        k.e(f"buffer_store_dwordx2 v[{28+2*g}:{29+2*g}], v23, s[16:19], s42 offen offset:{16*g}")
    finish(k)
    return k


HEADER = open("cdna_kernels/" + NAME + ".s.ref").read().split("; Override")[0]


def build(nk=5):
    ks = [(gen_k1(), 256, 4 * A_WAVE, 256), (gen_k2(), 256, 3 * (256 * 80 + 32 * 528) + 64, 512), (gen_k3(), 224, 4 * A_WAVE, 256),
          (gen_k4(), 224, 4 * A_WAVE, 256), (gen_k5(), 224, 2 * (64 * 464 + 28672), 256)][:nk]
    out = [HEADER.rstrip("\n")]
    for k, g, lds, blk in ks:
        out.append(f"; @launch kernel={k.name} grid=({g},1,1) block=({blk},1,1) lds={lds}")
    out.append('.amdgcn_target "amdgcn-amd-amdhsa--gfx950"')
    out.append(".text")
    for k, g, lds, blk in ks:
        out.append(f".globl {k.name}")
        out.append(".p2align 8")
        out.append(f".type {k.name},@function")
        out.append(f"{k.name}:")
        out += [l for l in k.L if l is not None]
    out.append('.section .rodata,"a"')
    for k, g, lds, blk in ks:
        out.append(".p2align 6")
        out.append(f".amdhsa_kernel {k.name}")
        out.append("  .amdhsa_next_free_vgpr 256")
        out.append("  .amdhsa_next_free_sgpr 102")
        out.append("  .amdhsa_accum_offset 256")
        out.append("  .amdhsa_group_segment_fixed_size 0")
        out.append("  .amdhsa_kernarg_size 80")
        out.append("  .amdhsa_user_sgpr_count 2")
        out.append("  .amdhsa_user_sgpr_kernarg_segment_ptr 1")
        out.append("  .amdhsa_system_sgpr_workgroup_id_x 1")
        out.append(".end_amdhsa_kernel")
    return "\n".join(out) + "\n"


if __name__ == "__main__":
    txt = build()
    open(OUT or ("cdna_kernels/" + NAME + ".s"), "w").write(txt)
    print("written", len(txt))
```

```python
import math, sys, os
import gen as G
from gen import K, vr, f2u, finish, NAME, S, D, H, DH, F, HEADER

STAMP = G.STAMP
OUT = os.environ.get("OUT", "")
WS_Q, WS_K, WS_V = 0x0, 0x200000, 0x400000
WS_O = 0x600000
WS_H = 0x800000
WS_ACT = 0xA00000
WS_ST = 0x1200000
ROT = int(os.environ.get("ROT", "7"))
SC1 = int(os.environ.get("SC1", "11"))
EXP = int(os.environ.get("EXP", "0"))
SCF = os.environ.get("SCF", "sc1")


WS_CS = 0x1240000


def cap(k, fn, *a):
    n0 = len(k.L)
    fn(*a)
    out = k.L[n0:]
    del k.L[n0:]
    return out


def pieces(lines):
    out, cur = [], []
    for l in lines:
        cur.append(l)
        if "buffer_load" in l:
            out.append(cur)
            cur = []
    if cur:
        out[-1] += cur
    return out


def dma(k, voff, srd, soff, m0expr):
    k.e(f"buffer_load_dwordx4 {voff}, s[{srd}:{srd+3}], {soff} offen lds")


def gen_sk(which):
    is3 = which == 3
    name = "k3_wo_kernel" if is3 else "k5_down_kernel"
    k = K(name)
    NKS = 32 if is3 else 112
    NST = NKS // 4
    DEP = int(os.environ.get("DEP3" if is3 else "DEP5", "4"))
    ACC = 64
    VAF = 128
    VBF = 192
    k.e("s_cmp_ge_u32 s2, 224")
    k.e(f"s_cbranch_scc1 {k.name}_" + ("cs" if is3 else "end"))
    k.e("s_load_dwordx2 s[28:29], s[0:1], 72")
    k.e(f"s_load_dwordx2 s[6:7], s[0:1], {16 if is3 else 48}")
    if is3:
        k.e("s_load_dwordx2 s[20:21], s[0:1], 0")
    else:
        k.e("s_load_dwordx2 s[20:21], s[0:1], 56")
    k.e("v_and_b32 v1, 63, v0")
    k.e("v_lshrrev_b32 v2, 6, v0")
    k.e("s_and_b32 s30, s2, 7")
    k.e("s_lshr_b32 s31, s2, 3")
    k.e("v_readfirstlane_b32 s3, v2")
    k.e("s_and_b32 s32, s31, 3")
    k.e("s_lshl_b32 s30, s30, 2")
    k.e("s_add_u32 s30, s30, s32")
    k.e("s_lshr_b32 s31, s31, 2")
    k.stamp()
    k.e("v_lshlrev_b32 v3, 4, v1")
    k.e("v_lshrrev_b32 v4, 3, v1")
    k.e("v_and_b32 v5, 7, v1")
    k.e("v_bfe_u32 v6, v1, 4, 1")
    k.e("v_lshlrev_b32 v6, 2, v6")
    k.e("v_xor_b32 v5, v5, v6")
    k.e("s_movk_i32 s44, 896")
    if is3:
        k.e("s_and_b32 s33, s3, 1")
        k.e("s_lshl_b32 s33, s33, 4")
        k.e("v_add_u32 v6, s33, v4")
        k.e("v_add_u32 v7, 8, v6")
        k.e("v_min_u32 v7, 27, v7")
        k.e("v_mul_u32_u24 v6, s44, v6")
        k.e("v_mul_u32_u24 v7, s44, v7")
        k.e("v_lshl_add_u32 v6, v5, 4, v6")
        k.e("v_lshl_add_u32 v7, v5, 4, v7")
    else:
        k.e("v_mul_u32_u24 v6, s44, v4")
        k.e("v_lshl_add_u32 v6, v5, 4, v6")
        k.e(f"v_add_u32 v7, {8*896}, v6")
    k.e("s_waitcnt lgkmcnt(0)")
    k.srd(8, 28, WS_O if is3 else WS_ACT, 64 * NKS * 1024)
    k.srd(12, 6, 0, (D if is3 else F) * D * 2)
    k.e(f"s_mul_i32 s34, s30, {2*NKS*1024}")
    k.e("s_lshl_b32 s35, s3, 10")
    k.e("s_add_u32 s34, s34, s35")
    k.e("s_lshl_b32 s36, s31, 7")
    if is3:
        k.e("s_lshr_b32 s37, s3, 1")
        k.e(f"s_mul_i32 s37, s37, {28*896}")
        bstep = 2 * 28 * 896
    else:
        k.e(f"s_mul_i32 s37, s3, {16*896}")
        bstep = 64 * 896
    k.e("s_add_u32 s36, s36, s37")
    k.e(f"s_mul_i32 s38, s3, {DEP*2048}")
    if ROT & 1:
        ca, cb = (1, 2) if is3 else (4, 7)
        k.e(f"s_mul_i32 s47, s31, {ca}")
        k.e(f"s_mul_i32 s48, s32, {cb}")
        k.e("s_add_u32 s47, s47, s48")
        k.e(f"s_cmp_ge_u32 s47, {NST}")
        k.e(f"s_cselect_b32 s48, {NST}, 0")
        k.e("s_sub_u32 s47, s47, s48")
        k.e("s_lshl_b32 s48, s47, 12")
        k.e("s_add_u32 s34, s34, s48")
        k.e(f"s_mul_i32 s48, s47, {bstep}")
        k.e("s_add_u32 s36, s36, s48")

    def issue(t):
        sl = t % DEP
        a = VAF + 8 * sl
        k.e(f"buffer_load_dwordx4 {vr(a,4)}, v3, s[8:11], s34 offen")
        k.e(f"s_add_u32 s39, s34, {NKS*1024}")
        k.e(f"buffer_load_dwordx4 {vr(a+4,4)}, v3, s[8:11], s39 offen")
        k.e(f"s_add_u32 m0, s38, {sl*2048}")
        k.e("s_add_u32 s34, s34, 4096")
        k.e("buffer_load_dwordx4 v6, s[12:15], s36 offen lds")
        k.e(f"s_add_u32 m0, s38, {sl*2048+1024}")
        k.e("s_nop 0")
        k.e("buffer_load_dwordx4 v7, s[12:15], s36 offen lds")
        k.e(f"s_add_u32 s36, s36, {bstep}")
        if ROT & 1:
            k.e("s_add_u32 s47, s47, 1")
            k.e(f"s_cmp_eq_u32 s47, {NST}")
            k.e(f"s_cselect_b32 s48, {NST*4096}, 0")
            k.e(f"s_cselect_b32 s49, {NST*bstep}, 0")
            k.e("s_sub_u32 s34, s34, s48")
            k.e("s_sub_u32 s36, s36, s49")

    for t in range(min(DEP, NST)):
        issue(t)
    k.e("v_lshrrev_b32 v8, 5, v1")
    k.e("v_bfe_u32 v9, v1, 2, 2")
    k.e("v_lshl_add_u32 v10, v8, 2, v9")
    k.e("v_lshlrev_b32 v10, 7, v10")
    k.e("v_lshrrev_b32 v11, 1, v9")
    k.e("v_lshl_add_u32 v10, v11, 6, v10")
    k.e("v_bfe_u32 v11, v1, 4, 1")
    k.e("v_lshl_add_u32 v10, v11, 5, v10")
    k.e("v_and_b32 v11, 3, v1")
    k.e("v_lshl_add_u32 v10, v11, 3, v10")
    k.e("v_add_u32 v10, s38, v10")
    k.e("v_xor_b32 v11, 64, v10")

    def rdB(t):
        sl = t % DEP
        b = VBF + 8 * (t & 1)
        for ct in range(2):
            for i in range(2):
                k.e(f"ds_read_b64_tr_b16 v[{b+4*ct+2*i}:{b+4*ct+2*i+1}], v{10+ct} offset:{sl*2048+1024*i}")

    def outstanding_after(t):
        return None

    def resid():
        k.e("s_lshr_b32 s40, s3, 1")
        k.e("s_and_b32 s41, s3, 1")
        k.e("s_lshl_b32 s42, s30, 1")
        k.e("s_add_u32 s42, s42, s40")
        k.e("s_lshl_b32 s43, s31, 1")
        k.e("s_add_u32 s43, s43, s41")
        k.e("v_and_b32 v12, 31, v1")
        if is3:
            k.srd(16, 20, 0, S * D * 2)
            k.srd(24, 28, WS_H, 64 * 28 * 1024)
            k.e("s_lshl_b32 s45, s42, 5")
            k.e("v_add_u32 v13, s45, v12")
            k.e("v_mul_u32_u24 v13, s44, v13")
            k.e("v_lshl_add_u32 v13, v8, 3, v13")
            k.e("s_lshl_b32 s45, s43, 6")
            for g in range(4):
                k.e(f"buffer_load_dwordx2 v[{208+2*g}:{209+2*g}], v13, s[16:19], s45 offen offset:{16*g}")
        else:
            k.srd(16, 28, WS_H, 64 * 28 * 1024)
            k.srd(24, 20, 0, S * D * 2)
            k.e("s_mul_i32 s45, s42, 28")
            k.e("s_lshl_b32 s46, s43, 1")
            k.e("s_add_u32 s45, s45, s46")
            k.e("s_lshl_b32 s45, s45, 10")
            for g in range(2):
                k.e(f"buffer_load_dwordx4 v[{208+4*g}:{211+4*g}], v3, s[16:19], s45 offen offset:{1024*g}")

    RSE = int(os.environ.get("RSE", "0"))
    nres = 0
    issued = min(DEP, NST)
    k.e(f"s_waitcnt vmcnt({4*(issued-1)})")
    k.stamp()
    rdB(0)
    for t in range(NST):
        if t + 1 < NST:
            k.e(f"s_waitcnt vmcnt({4*(issued-(t+2)) + nres})")
            rdB(t + 1)
            k.e("s_waitcnt lgkmcnt(4)")
        else:
            k.e("s_waitcnt lgkmcnt(0)")
        a = VAF + 8 * (t % DEP)
        b = VBF + 8 * (t & 1)
        for rt in range(2):
            for ct in range(2):
                acc = ACC + 16 * (2 * rt + ct)
                k.mfma(acc, b + 4 * ct, a + 4 * rt, "0" if t == 0 else acc)
        if issued < NST:
            issue(issued)
            issued += 1
            if issued == NST and RSE:
                resid()
                nres = 4 if is3 else 2
    k.stamp()
    if not RSE:
        resid()
    k.e("s_barrier")
    k.nop(8)
    for o in range(4):
        skip = k.newlab("own")
        k.e(f"s_cmp_eq_u32 s3, {o}")
        k.e(f"s_cbranch_scc1 {skip}")
        k.e(f"s_sub_u32 s45, s3, {o+1}")
        k.e("s_and_b32 s45, s45, 3")
        k.e("s_lshl_b32 s45, s45, 12")
        k.e(f"s_add_u32 s45, s45, {o*3*4096}")
        k.e("v_add_u32 v14, s45, v3")
        for q in range(4):
            k.e(f"ds_write_b128 v14, {vr(ACC+16*o+4*q,4)} offset:{1024*q}")
        k.lab(skip)
    for o in range(4):
        skip = k.newlab("mv")
        k.e(f"s_cmp_lg_u32 s3, {o}")
        k.e(f"s_cbranch_scc1 {skip}")
        for r in range(16):
            k.e(f"v_mov_b32 v{128+r}, v{ACC+16*o+r}")
        k.lab(skip)
    k.e("s_waitcnt lgkmcnt(0)")
    k.e("s_barrier")
    k.e(f"s_mul_i32 s45, s3, {3*4096}")
    k.e("v_add_u32 v14, s45, v3")
    for sl in range(3):
        for q in range(4):
            k.e(f"ds_read_b128 {vr(144+16*sl+4*q,4)}, v14 offset:{4096*sl+1024*q}")
    for sl in range(3):
        k.e(f"s_waitcnt lgkmcnt({8-4*sl})")
        for r in range(16):
            k.e(f"v_add_f32 v{128+r}, v{128+r}, v{144+16*sl+r}")
    k.e("s_waitcnt vmcnt(0)")
    k.stamp()
    for p in range(8):
        src = 208 + p
        k.e(f"v_lshlrev_b32 v14, 16, v{src}")
        k.e(f"v_and_b32 v15, 0xffff0000, v{src}")
        k.e(f"v_add_f32 v14, v14, v{128+2*p}")
        k.e(f"v_add_f32 v15, v15, v{128+2*p+1}")
        k.e(f"v_cvt_pk_bf16_f32 v{src}, v14, v15")
    if is3:
        k.e("s_mul_i32 s45, s42, 28")
        k.e("s_lshl_b32 s46, s43, 1")
        k.e("s_add_u32 s45, s45, s46")
        k.e("s_lshl_b32 s45, s45, 10")
        for g in range(2):
            k.e(f"buffer_store_dwordx4 v[{208+4*g}:{211+4*g}], v3, s[24:27], s45 offen offset:{1024*g}")
        k.e("v_mov_b32 v16, 0")
        k.e("v_mov_b32 v17, 0")
        k.e("s_mov_b32 s46, 0x3f803f80")
        for p in range(8):
            k.e(f"v_dot2_f32_bf16 v16, v{208+p}, s46, v16")
            k.e(f"v_dot2_f32_bf16 v17, v{208+p}, v{208+p}, v17")
        k.e("s_nop 1")
        k.e("v_mov_b32 v18, v16")
        k.e("v_mov_b32 v19, v17")
        k.e("s_nop 1")
        k.e("v_permlane32_swap_b32 v16, v18")
        k.e("v_permlane32_swap_b32 v17, v19")
        k.e("s_nop 1")
        k.e("v_add_f32 v16, v16, v18")
        k.e("v_add_f32 v17, v17, v19")
        k.srd(16, 28, WS_ST, S * 14 * 8)
        k.e("s_lshl_b32 s45, s42, 5")
        k.e("v_add_u32 v13, s45, v12")
        k.e("v_lshlrev_b32 v13, 3, v13")
        k.e("s_lshl_b32 s45, s43, 14")
        k.e("v_cmp_gt_u32 vcc, 32, v1")
        k.e("s_and_saveexec_b64 s[46:47], vcc")
        k.e("buffer_store_dwordx2 v[16:17], v13, s[16:19], s45 offen")
    else:
        k.e("s_nop 1")
        for g in (0, 2):
            k.e(f"v_permlane32_swap_b32 v{208+2*g}, v{208+2*g+2}")
            k.e(f"v_permlane32_swap_b32 v{208+2*g+1}, v{208+2*g+3}")
        k.e("s_lshl_b32 s45, s42, 5")
        k.e("v_add_u32 v13, s45, v12")
        k.e("v_mul_u32_u24 v13, s44, v13")
        k.e("v_lshl_add_u32 v13, v8, 4, v13")
        k.e("s_lshl_b32 s45, s43, 6")
        k.e("s_nop 0")
        for g in range(2):
            k.e(f"buffer_store_dwordx4 v[{208+4*g}:{211+4*g}], v13, s[24:27], s45 offen offset:{32*g}")
    if is3:
        k.e(f"s_branch {k.name}_fin")
        k.lab(f"{k.name}_cs")
        k.e("s_cmp_ge_u32 s2, 252")
        k.e(f"s_cbranch_scc1 {k.name}_end")
        k.e("s_load_dwordx2 s[28:29], s[0:1], 72")
        k.e("s_load_dwordx2 s[4:5], s[0:1], 32")
        k.e("s_load_dwordx2 s[6:7], s[0:1], 40")
        k.e("v_and_b32 v1, 63, v0")
        k.e("v_lshrrev_b32 v2, 6, v0")
        k.e("s_sub_u32 s30, s2, 224")
        k.e("v_readfirstlane_b32 s3, v2")
        k.e("s_cmp_ge_u32 s30, 14")
        k.e("s_cselect_b32 s31, 14, 0")
        k.e("s_cselect_b32 s33, 1, 0")
        k.e("s_sub_u32 s32, s30, s31")
        k.e("v_lshrrev_b32 v4, 4, v1")
        k.e("v_and_b32 v5, 15, v1")
        k.e("s_movk_i32 s44, 3584")
        k.e("v_mul_u32_u24 v4, s44, v4")
        k.e("v_lshl_add_u32 v4, v5, 4, v4")
        k.e("s_waitcnt lgkmcnt(0)")
        k.e("s_cmp_eq_u32 s33, 1")
        k.e("s_cselect_b32 s4, s6, s4")
        k.e("s_cselect_b32 s5, s7, s5")
        k.srd(8, 4, 0, D * F * 2)
        k.e(f"s_mul_i32 s34, s3, {112*3584}")
        k.e("s_lshl_b32 s35, s32, 8")
        k.e("s_add_u32 s34, s34, s35")
        for n in range(28):
            k.e(f"buffer_load_dwordx4 {vr(64+4*n,4)}, v4, s[8:11], s34 offen")
            k.e(f"s_add_u32 s34, s34, {4*3584}")
        for r in range(8):
            k.e(f"v_mov_b32 v{16+r}, 0")
        for n in range(28):
            k.e(f"s_waitcnt vmcnt({27-n})")
            for d in range(4):
                x = 64 + 4 * n + d
                k.e(f"v_lshlrev_b32 v{24+2*d}, 16, v{x}")
                k.e(f"v_and_b32 v{25+2*d}, 0xffff0000, v{x}")
            for r in range(8):
                k.e(f"v_add_f32 v{16+r}, v{16+r}, v{24+r}")
        k.e("v_lshrrev_b32 v6, 4, v1")
        k.e("s_lshl_b32 s35, s3, 2")
        k.e("v_add_u32 v6, s35, v6")
        k.e("v_lshlrev_b32 v6, 9, v6")
        k.e("v_lshl_add_u32 v6, v5, 5, v6")
        k.e("ds_write_b128 v6, v[16:19]")
        k.e("ds_write_b128 v6, v[20:23] offset:16")
        k.e("s_waitcnt lgkmcnt(0)")
        k.e("s_barrier")
        k.e("s_cmp_ge_u32 s3, 2")
        k.e(f"s_cbranch_scc1 {k.name}_end")
        k.e("v_lshlrev_b32 v6, 2, v0")
        for j in range(16):
            k.e(f"ds_read_b32 v{32+j}, v6 offset:{512*j}")
        k.srd(12, 28, WS_CS, 2 * F * 4)
        k.e(f"s_mul_i32 s35, s33, {F*4}")
        k.e("s_lshl_b32 s36, s32, 9")
        k.e("s_add_u32 s35, s35, s36")
        k.e("s_waitcnt lgkmcnt(0)")
        for st in (8, 4, 2, 1):
            for j in range(st):
                k.e(f"v_add_f32 v{32+j}, v{32+j}, v{32+j+st}")
        k.e("buffer_store_dword v32, v6, s[12:15], s35 offen")
        k.e(f"s_branch {k.name}_end")
        k.lab(f"{k.name}_fin")
    finish(k)
    return k, 252 if is3 else 224, 4 * DEP * 2048 if 4 * DEP * 2048 > 48 * 1024 else 48 * 1024 + 0, 256


def gen_k4():
    k = K("k4_ffn_kernel")
    SLOT = 49152
    R = 3
    NSL = 7
    ACC = 192
    FR = [64, 128]
    PK = int(os.environ.get("PK", "1"))
    k.e("s_cmp_ge_u32 s2, 224")
    k.e(f"s_cbranch_scc1 {k.name}_end")
    k.e("s_load_dwordx2 s[28:29], s[0:1], 72")
    k.e("s_load_dwordx2 s[4:5], s[0:1], 32")
    k.e("s_load_dwordx2 s[6:7], s[0:1], 40")
    PF4 = int(os.environ.get("PF4", "1"))
    if PF4:
        k.e("s_load_dwordx2 s[50:51], s[0:1], 48")
    k.e("v_and_b32 v1, 63, v0")
    k.e("v_lshrrev_b32 v2, 6, v0")
    k.e("s_and_b32 s30, s2, 7")
    k.e("s_lshr_b32 s31, s2, 3")
    k.e("v_readfirstlane_b32 s3, v2")
    k.e("s_and_b32 s32, s30, 3")
    k.e("s_lshl_b32 s32, s32, 2")
    k.e("s_and_b32 s33, s31, 3")
    k.e("s_add_u32 s32, s32, s33")
    k.e("s_lshr_b32 s30, s30, 2")
    k.e("s_mul_i32 s30, s30, 7")
    k.e("s_lshr_b32 s31, s31, 2")
    if ROT & 2:
        k.e("s_lshl_b32 s47, s33, 1")
        k.e("s_add_u32 s47, s47, s31")
        k.e("s_cmp_ge_u32 s47, 7")
        k.e("s_cselect_b32 s48, 7, 0")
        k.e("s_sub_u32 s47, s47, s48")
    k.e("s_add_u32 s31, s31, s30")
    k.e("s_mov_b32 s30, s32")
    k.e("s_lshr_b32 s32, s3, 2")
    k.e("s_and_b32 s33, s3, 3")
    k.stamp()
    k.e("v_lshlrev_b32 v3, 4, v1")
    k.e("v_and_b32 v12, 31, v1")
    k.e("v_lshrrev_b32 v8, 5, v1")
    k.e("v_lshrrev_b32 v4, 4, v1")
    k.e("v_and_b32 v5, 15, v1")
    k.e("v_lshlrev_b32 v6, 2, v4")
    k.e("v_xor_b32 v5, v5, v6")
    k.e("s_movk_i32 s44, 3584")
    k.e("v_mul_u32_u24 v4, s44, v4")
    k.e("v_lshl_add_u32 v4, v5, 4, v4")
    k.e("s_lshl_b32 s36, s3, 10")
    k.e("s_lshl_b32 s37, s30, 2")
    k.e("s_add_u32 s37, s37, s32")
    k.e("s_mul_i32 s37, s37, 28")
    k.e("s_add_u32 s37, s37, s33")
    k.e("s_lshl_b32 s37, s37, 10")
    k.e(f"s_mul_i32 s38, s3, {4*3584}")
    k.e("s_lshl_b32 s39, s31, 8")
    k.e("s_add_u32 s38, s38, s39")
    if ROT & 2:
        k.e("s_lshl_b32 s48, s47, 12")
        k.e("s_add_u32 s37, s37, s48")
        k.e(f"s_mul_i32 s48, s47, {64*3584}")
        k.e("s_add_u32 s38, s38, s48")
    k.e("s_waitcnt lgkmcnt(0)")
    if EXP & 16:
        k.stamp()
    k.srd(8, 28, WS_H, 64 * 28 * 1024)
    k.srd(12, 4, 0, D * F * 2)
    k.srd(16, 6, 0, D * F * 2)

    def issue(sl):
        sb = (sl % R) * SLOT
        k.e(f"s_add_u32 m0, s36, {sb}")
        k.e(f"s_add_u32 s39, s37, {56*1024}")
        k.e("buffer_load_dwordx4 v3, s[8:11], s37 offen lds")
        k.e(f"s_add_u32 m0, s36, {sb+8192}")
        k.e("s_add_u32 s37, s37, 4096")
        k.e("buffer_load_dwordx4 v3, s[8:11], s39 offen lds")
        for u in range(2):
            k.e(f"s_add_u32 m0, s36, {sb+16384*(1+u)}")
            k.e(f"s_add_u32 s39, s38, {32*3584}")
            k.e(f"buffer_load_dwordx4 v4, s[{12+4*u}:{15+4*u}], s38 offen lds")
            k.e(f"s_add_u32 m0, s36, {sb+16384*(1+u)+8192}")
            k.e("s_nop 0")
            k.e(f"buffer_load_dwordx4 v4, s[{12+4*u}:{15+4*u}], s39 offen lds")
        k.e(f"s_add_u32 s38, s38, {64*3584}")
        if ROT & 2:
            k.e("s_add_u32 s47, s47, 1")
            k.e("s_cmp_eq_u32 s47, 7")
            k.e(f"s_cselect_b32 s48, {7*4096}, 0")
            k.e(f"s_cselect_b32 s49, {7*64*3584}, 0")
            k.e("s_sub_u32 s37, s37, s48")
            k.e("s_sub_u32 s38, s38, s49")

    K4S = int(os.environ.get("K4S", "1"))
    K4Q = int(os.environ.get("K4Q", "1")) if K4S else 0
    XB = R * SLOT
    issue(0)
    if int(os.environ.get("K4B", "1")) & 1:
        k.e("s_barrier")
    if not K4S:
        issue(1)
    if EXP & 16:
        k.stamp()
    k.srd(20, 28, WS_ST, S * 14 * 8)
    k.srd(24, 28, WS_ACT, 64 * 112 * 1024)
    k.srd(52, 28, WS_CS, 2 * F * 4)
    k.e("s_lshl_b32 s34, s30, 7")
    k.e("s_lshl_b32 s35, s32, 6")
    k.e("s_add_u32 s34, s34, s35")
    k.e("v_add_u32 v5, s34, v1")
    k.e("v_lshlrev_b32 v5, 3, v5")
    if K4S:
        k.e("s_lshl_b32 s40, s33, 14")
        for j in range(4):
            k.e(f"buffer_load_dwordx2 v[{36+2*j}:{37+2*j}], v5, s[20:23], s40 offen")
            if j < 3:
                k.e("s_add_u32 s40, s40, 65536")
        if not K4Q:
            issue(1)
        K4H = int(os.environ.get("K4H", "0")) if K4Q else 0
        if K4Q:
            P1 = pieces(cap(k, issue, 1))
            for p in P1[:K4H]:
                k.L += p
        k.e("v_lshlrev_b32 v16, 3, v0")
        k.e(f"v_add_u32 v16, {XB}, v16")
        k.e("s_lshl_b32 s40, s32, 11")
        k.e("v_lshlrev_b32 v17, 3, v1")
        k.e("v_add_u32 v17, s40, v17")
        k.e(f"v_add_u32 v17, {XB}, v17")
    else:
        for q in range(14):
            k.e(f"s_mov_b32 s40, {q*16384}")
            k.e(f"buffer_load_dwordx2 v[{36+2*q}:{37+2*q}], v5, s[20:23], s40 offen")
    k.e("s_lshl_b32 s40, s32, 13")
    k.e("v_add_u32 v20, s40, v3")
    k.e(f"v_add_u32 v21, {SLOT}, v20")
    k.e(f"v_add_u32 v22, {2*SLOT}, v20")
    k.e("v_bfe_u32 v9, v1, 2, 2")
    k.e("v_lshl_add_u32 v10, v8, 2, v9")
    k.e("v_lshlrev_b32 v10, 8, v10")
    k.e("v_xor_b32 v11, s33, v9")
    k.e("v_lshl_add_u32 v10, v11, 6, v10")
    k.e("v_bfe_u32 v11, v1, 4, 1")
    k.e("v_lshl_add_u32 v10, v11, 5, v10")
    k.e("v_and_b32 v11, 3, v1")
    k.e("v_lshl_add_u32 v24, v11, 3, v10")
    k.e(f"v_add_u32 v25, {SLOT}, v24")
    k.e(f"v_add_u32 v26, {2*SLOT}, v24")
    k.e("v_lshlrev_b32 v6, 4, v8")
    k.e("s_lshl_b32 s41, s31, 9")
    k.e("s_lshl_b32 s42, s33, 7")
    k.e("s_add_u32 s41, s41, s42")
    k.e(f"s_add_u32 s42, s41, {F*4}")

    if EXP & 16:
        k.stamp()
    k1 = -2.0 * math.sqrt(2.0 / math.pi) * math.log2(math.e)
    k3 = k1 * 0.044715

    def csreg(u, g):
        idx = 4 * u + g
        return 36 + 4 * idx if idx < 7 else 16

    def stats():
        if K4S:
            k.e("v_add_f32 v44, v44, v46")
            k.e("v_add_f32 v45, v45, v47")
            k.e("v_add_f32 v48, v48, v50")
            k.e("v_add_f32 v49, v49, v51")
            k.e("v_add_f32 v36, v44, v48")
            k.e("v_add_f32 v37, v45, v49")
        else:
            for q in range(7):
                k.e(f"v_add_f32 v{36+2*q}, v{36+2*q}, v{50+2*q}")
                k.e(f"v_add_f32 v{37+2*q}, v{37+2*q}, v{51+2*q}")
            for (a, b) in ((0, 4), (1, 5), (2, 6), (0, 2), (1, 3), (0, 1)):
                k.e(f"v_add_f32 v{36+2*a}, v{36+2*a}, v{36+2*b}")
                k.e(f"v_add_f32 v{37+2*a}, v{37+2*a}, v{36+2*b+1}")
        k.e(f"s_mov_b32 s40, {hex(f2u(1.0/448))}")
        k.e("v_mul_f32 v13, s40, v36")
        k.e("v_mul_f32 v14, s40, v37")
        k.e("v_fma_f32 v14, -v13, v13, v14")
        k.e("v_max_f32 v14, 0, v14")
        k.e(f"v_add_f32 v34, {hex(f2u(1e-5))}, v14")
        k.e("v_rsq_f32 v15, v34")
        k.e("v_sub_f32 v28, 0, v13")
        k.e("v_mul_f32 v7, v15, v15")
        k.e("v_mul_f32 v7, v7, v15")
        k.e(f"v_mul_f32 v30, {hex(f2u(k1))}, v15")
        k.e(f"v_mul_f32 v32, {hex(f2u(k3))}, v7")
        for r in (28, 30, 32, 34):
            k.e(f"v_mov_b32 v{r+1}, v{r}")
        k.e("s_nop 1")
        for r in (34, 28, 30, 32):
            k.e(f"v_permlane32_swap_b32 v{r}, v{r+1}")

    def csloads():
        for u in range(2):
            for g in range(4):
                k.e(f"buffer_load_dwordx4 {vr(csreg(u,g),4)}, v6, s[52:55], s{41+u} offen offset:{32*g}")

    K4C = int(os.environ.get("K4C", "1")) if K4S else 0

    def cs_s(u):
        if u == 0:
            k.e(f"s_add_u32 s62, s28, {WS_CS}")
            k.e("s_addc_u32 s63, s29, 0")
            k.e("s_add_u32 s62, s62, s41")
            k.e("s_addc_u32 s63, s63, 0")
        k.e(f"s_load_dwordx16 s[64:79], s[62:63], {u*F*4}")
        k.e(f"s_load_dwordx8 s[80:87], s[62:63], {u*F*4+64}")
        k.e(f"s_load_dwordx8 s[92:99], s[62:63], {u*F*4+96}")

    def csg(c):
        return 64 + c if c < 24 else 92 + c - 24

    def cs_v(u):
        out = []
        for g in range(4):
            for j in range(4):
                out.append(f"  v_mov_b32 v{csreg(u,g)+j}, s{csg(8*g+j)}")
            grp = ["  s_mov_b32 exec_lo, 0"]
            for j in range(4):
                grp.append(f"  v_mov_b32 v{csreg(u,g)+j}, s{csg(8*g+4+j)}")
            grp.append("  s_mov_b32 exec_lo, -1")
            out.append("\n".join(grp))
        return out

    def reads(sl):
        fr = FR[sl & 1]
        s_ = sl % R
        for ks in range(4):
            for i in range(2):
                k.e(f"ds_read_b128 {vr(fr+16*ks+4*i,4)}, v{20+s_} offset:{4096*i+1024*ks}")
            for u in range(2):
                for h in range(2):
                    r0 = fr + 16 * ks + 8 + 4 * u + 2 * h
                    k.e(f"ds_read_b64_tr_b16 v[{r0}:{r0+1}], v{24+s_} offset:{16384*(1+u)+4096*ks+2048*h}")

    def mfmas(sl):
        fr = FR[sl & 1]
        for ks in range(4):
            for i in range(2):
                for u in range(2):
                    acc = ACC + 16 * (2 * i + u)
                    k.mfma(acc, fr + 16 * ks + 8 + 4 * u, fr + 16 * ks + 4 * i, "0" if (sl == 0 and ks == 0) else acc)

    wv = {0: 20, 1: 20, 2: 6, 3: 14, 4: 14, 5: 6, 6: 0}
    if K4S:
        wv = {0: 4 + K4H if K4Q else 10, 1: 6, 2: 6, 3: 6, 4: 14, 5: 14, 6: 0}
        if K4C:
            wv[4] = wv[5] = 6

    def st_part():
        k.e("v_add_f32 v36, v36, v38")
        k.e("v_add_f32 v37, v37, v39")
        k.e("v_add_f32 v40, v40, v42")
        k.e("v_add_f32 v41, v41, v43")
        k.e("v_add_f32 v36, v36, v40")
        k.e("v_add_f32 v37, v37, v41")
        k.e("ds_write_b64 v16, v[36:37]")

    def st_read():
        for j in range(4):
            k.e(f"ds_read_b64 v[{44+2*j}:{45+2*j}], v17 offset:{512*j}")
    PFS = int(os.environ.get("PFS", "5"))
    if PF4:
        for s_ in range(PFS + 1, NSL):
            if s_ <= PFS + 2:
                wv[s_] += 1

    def pfload():
        k.e("v_min_u32 v7, 447, v0")
        k.e("v_lshlrev_b32 v7, 7, v7")
        k.e("s_lshr_b32 s43, s2, 3")
        k.e("s_mul_i32 s43, s43, 57344")
        k.srd(56, 50, 0, F * D * 2)
        k.e("buffer_load_dword v23, v7, s[56:59], s43 offen")
    for sl in range(NSL):
        if sl == 0 and EXP & 32:
            for c_ in (24, 20):
                k.e(f"s_waitcnt vmcnt({c_})")
                k.stamp()
        k.e(f"s_waitcnt vmcnt({wv[sl]}) lgkmcnt(0)")
        k.e("s_barrier")
        k.stamp()
        if K4Q and sl == 0:
            Rd = cap(k, reads, 0)
            P1 = P1[K4H:]
            P2 = pieces(cap(k, issue, 2))
            M0 = [l for l in cap(k, mfmas, 0) if l is not None]
            k.L += Rd
            for p in P1[:2]:
                k.L += p
            k.e("s_waitcnt lgkmcnt(0)")
            for n in range(8):
                k.L.append(M0[n])
                if 2 + n < len(P1):
                    k.L += P1[2 + n]
            for p in P2:
                k.L += p
            continue
        if K4Q and sl == 1:
            Rd = cap(k, reads, 1)
            P3 = pieces(cap(k, issue, 3))
            X = cap(k, st_part)
            for n in range(8):
                k.L.append(M0[8 + n])
                k.L += Rd[3 * n:3 * n + 3]
                if n == 7:
                    k.L += X
            for p in P3:
                k.L += p
            continue
        P = pieces(cap(k, issue, sl + R - 1)) if sl + R - 1 < NSL else []
        Rd = cap(k, reads, sl)
        M = cap(k, mfmas, sl - 1) if sl >= 1 else []
        X = []
        if K4S:
            if sl == 1:
                X = cap(k, st_part)
            if sl == 2:
                X = cap(k, st_read) + (cap(k, cs_s, 0) if K4C else [])
            if sl == 3:
                X = cap(k, stats) + (cs_v(0) if K4C else cap(k, csloads))
            if sl == 4 and K4C:
                X = cap(k, cs_s, 1)
            if sl == 5 and K4C:
                X = cs_v(1)
        elif sl == 2:
            X = cap(k, stats) + cap(k, csloads)
        if sl == PFS and PF4:
            X = X + cap(k, pfload)
        M = [l for l in M if l is not None]
        if not M:
            for p in P:
                k.L += p
            k.L += Rd
        else:
            xi = 0
            for n in range(16):
                k.L.append(M[n])
                if n < len(P):
                    k.L += P[n]
                if n < 12:
                    k.L += Rd[2 * n:2 * n + 2]
                if n >= 6 and X:
                    cnt = (len(X) + 9) // 10
                    k.L += X[xi:xi + cnt]
                    xi += cnt
            k.L += X[xi:]
    k.e("s_waitcnt lgkmcnt(0)")
    mfmas(NSL - 1)
    k.stamp()
    k.e("s_lshl_b32 s40, s30, 2")
    k.e("s_lshl_b32 s41, s32, 1")
    k.e("s_add_u32 s40, s40, s41")
    k.e("s_mul_i32 s40, s40, 112")
    k.e("s_lshl_b32 s41, s31, 2")
    k.e("s_add_u32 s41, s41, s33")
    k.e("s_lshl_b32 s41, s41, 1")
    k.e("s_add_u32 s40, s40, s41")
    k.e("s_lshl_b32 s40, s40, 10")
    k.nop(16)
    for i in range(2):
        ag = ACC + 16 * (2 * i)
        au = ACC + 16 * (2 * i + 1)
        T = 96
        sel = f"op_sel:[0,{i},{i}] op_sel_hi:[1,{i},{i}]"

        def pk(op, d, a, b, c=None, bsel=None, csel=None):
            if c is None:
                os_ = f"op_sel:[0,{bsel or 0}] op_sel_hi:[1,{1 if bsel is None else bsel}]"
                k.e(f"v_pk_{op}_f32 v[{d}:{d+1}], v[{a}:{a+1}], v[{b}:{b+1}] {os_}")
            else:
                os_ = (f"op_sel:[0,{bsel or 0},{csel or 0}] op_sel_hi:[1,{1 if bsel is None else bsel},"
                       f"{1 if csel is None else csel}]")
                k.e(f"v_pk_{op}_f32 v[{d}:{d+1}], v[{a}:{a+1}], v[{b}:{b+1}], v[{c}:{c+1}] {os_}")
        if PK:
            for r in range(0, 16, 2):
                cg = csreg(0, r >> 2) + (r & 3)
                cu = csreg(1, r >> 2) + (r & 3)
                pk("fma", ag + r, cg, 28, ag + r, bsel=i)
                pk("fma", au + r, cu, 28, au + r, bsel=i)
            for r in range(0, 16, 2):
                pk("mul", T + r, ag + r, ag + r)
            for r in range(0, 16, 2):
                pk("fma", T + r, T + r, 32, 30, bsel=i, csel=i)
            for r in range(0, 16, 2):
                pk("mul", T + r, T + r, ag + r)
            for r in range(16):
                k.e(f"v_exp_f32 v{T+r}, v{T+r}")
            for r in range(0, 16, 2):
                pk("mul", au + r, au + r, ag + r)
            for r in range(0, 16, 2):
                pk("fma", T + r, T + r, 34, 34, bsel=i, csel=i)
            for r in range(16):
                k.e(f"v_rcp_f32 v{T+r}, v{T+r}")
            k.e("s_nop 0")
            for r in range(0, 16, 2):
                pk("mul", au + r, au + r, T + r)
        else:
            for r in range(16):
                cg = csreg(0, r >> 2) + (r & 3)
                cu = csreg(1, r >> 2) + (r & 3)
                k.e(f"v_fma_f32 v{ag+r}, v{28+i}, v{cg}, v{ag+r}")
                k.e(f"v_fma_f32 v{au+r}, v{28+i}, v{cu}, v{au+r}")
            for r in range(16):
                k.e(f"v_mul_f32 v{T+r}, v{ag+r}, v{ag+r}")
            for r in range(16):
                k.e(f"v_fma_f32 v{T+r}, v{T+r}, v{32+i}, v{30+i}")
            for r in range(16):
                k.e(f"v_mul_f32 v{T+r}, v{T+r}, v{ag+r}")
            for r in range(16):
                k.e(f"v_exp_f32 v{T+r}, v{T+r}")
            for r in range(16):
                k.e(f"v_mul_f32 v{au+r}, v{au+r}, v{ag+r}")
            for r in range(16):
                k.e(f"v_fma_f32 v{T+r}, v{T+r}, v{34+i}, v{34+i}")
            for r in range(16):
                k.e(f"v_rcp_f32 v{T+r}, v{T+r}")
            k.e("s_nop 0")
            for r in range(16):
                k.e(f"v_mul_f32 v{au+r}, v{au+r}, v{T+r}")
        for p in range(8):
            k.e(f"v_cvt_pk_bf16_f32 v{T+16+p}, v{au+2*p}, v{au+2*p+1}")
        if i == 1:
            k.e(f"s_add_u32 s40, s40, {112*1024}")
        for g in range(2):
            k.e(f"buffer_store_dwordx4 {vr(T+16+4*g,4)}, v3, s[24:27], s40 offen offset:{1024*g}")
    finish(k)
    return k, 224, R * SLOT + (4096 if K4S else 0), 512


def gen_k1():
    k = K("k1_qkv_kernel")
    K1G = int(os.environ.get("K1G", "3"))
    SLOT = 32256 if K1G == 3 else 28672
    R = 5
    NSL = 7
    ACC = 192
    FR = [64, 128]
    SCR = 0 if K1G == 3 else R * SLOT
    k.e("s_cmp_ge_u32 s2, 256")
    k.e(f"s_cbranch_scc1 {k.name}_end")
    k.e("s_load_dwordx2 s[28:29], s[0:1], 72")
    k.e("s_load_dwordx2 s[4:5], s[0:1], 0")
    k.e("s_load_dwordx2 s[6:7], s[0:1], 8")
    k.e("v_and_b32 v1, 63, v0")
    k.e("v_lshrrev_b32 v2, 6, v0")
    k.e("s_and_b32 s30, s2, 7")
    k.e("s_lshr_b32 s31, s2, 3")
    k.e("v_readfirstlane_b32 s3, v2")
    k.e("s_and_b32 s32, s30, 3")
    k.e("s_lshl_b32 s32, s32, 2")
    k.e("s_and_b32 s33, s31, 3")
    k.e("s_add_u32 s32, s32, s33")
    k.e("s_lshr_b32 s30, s30, 2")
    k.e("s_lshl_b32 s30, s30, 3")
    k.e("s_lshr_b32 s31, s31, 2")
    if ROT & 4:
        k.e("s_lshl_b32 s47, s33, 1")
        k.e("s_add_u32 s47, s47, s31")
        k.e("s_cmp_ge_u32 s47, 7")
        k.e("s_cselect_b32 s48, 7, 0")
        k.e("s_sub_u32 s47, s47, s48")
    k.e("s_add_u32 s31, s31, s30")
    k.e("s_mov_b32 s30, s32")
    k.stamp()
    k.e("v_lshlrev_b32 v3, 4, v1")
    k.e("v_and_b32 v12, 31, v1")
    k.e("v_lshrrev_b32 v8, 5, v1")
    k.e("v_lshrrev_b32 v4, 3, v1")
    k.e("v_and_b32 v5, 7, v1")
    k.e("v_lshrrev_b32 v6, 4, v1")
    k.e("s_and_b32 s33, s3, 1")
    k.e("s_lshl_b32 s33, s33, 2")
    k.e("v_or_b32 v6, s33, v6")
    k.e("v_xor_b32 v5, v5, v6")
    k.e("s_movk_i32 s44, 896")
    k.e("v_mul_u32_u24 v4, s44, v4")
    k.e("v_lshl_add_u32 v4, v5, 4, v4")
    k.e("v_lshrrev_b32 v5, 2, v1")
    k.e("s_movk_i32 s45, 2688")
    k.e("v_mul_u32_u24 v5, s45, v5")
    k.e("v_and_b32 v6, 3, v1")
    k.e("v_lshl_add_u32 v5, v6, 4, v5")
    if K1G == 3:
        k.e("v_min_u32 v13, 223, v0")
        k.e("v_lshlrev_b32 v13, 4, v13")
        k.e("v_add_u32 v13, 28672, v13")
        for r in range(52, 56):
            k.e(f"v_mov_b32 v{r}, 0x3f803f80")
        k.e(f"v_add_u32 v14, {2*SLOT}, v13")
        k.e(f"v_add_u32 v15, {4*SLOT}, v13")
        k.e("ds_write_b128 v13, v[52:55]")
        k.e(f"ds_write_b128 v13, v[52:55] offset:{SLOT}")
        k.e("ds_write_b128 v14, v[52:55]")
        k.e(f"ds_write_b128 v14, v[52:55] offset:{SLOT}")
        k.e("ds_write_b128 v15, v[52:55]")
    k.e("s_waitcnt lgkmcnt(0)")
    k.srd(8, 4, 0, S * D * 2)
    k.srd(12, 6, 0, D * 3 * D * 2)
    k.e("s_lshl_b32 s33, s31, 17")
    k.e("s_add_u32 s16, s28, s33")
    k.e("s_addc_u32 s17, s29, 0")
    k.e(f"s_mov_b32 s18, {hex(0x400000 + 0x20000)}")
    k.e("s_mov_b32 s19, 0x00020000")
    k.e("s_lshl_b32 s36, s3, 10")
    k.e("s_lshl_b32 s37, s30, 7")
    k.e("s_lshl_b32 s38, s3, 3")
    k.e("s_add_u32 s37, s37, s38")
    k.e("s_mul_i32 s37, s37, 896")
    k.e(f"s_mul_i32 s38, s3, {16*2688}")
    k.e("s_mul_i32 s39, s31, 56")
    k.e("s_add_u32 s38, s38, s39")
    if ROT & 4:
        k.e("s_lshl_b32 s48, s47, 7")
        k.e("s_add_u32 s37, s37, s48")
        k.e(f"s_mul_i32 s48, s47, {64*2688}")
        k.e("s_add_u32 s38, s38, s48")

    def issue(sl):
        sb = (sl % R) * SLOT
        for i in range(4):
            k.e(f"s_add_u32 m0, s36, {sb+4096*i}")
            k.e(f"s_add_u32 s39, s37, {32*896*i}")
            k.e("buffer_load_dwordx4 v4, s[8:11], s39 offen lds")
        for sg in range(3):
            k.e(f"s_add_u32 m0, s36, {sb+16384+4096*sg}")
            k.e(f"s_add_u32 s39, s38, {896*sg}")
            k.e("buffer_load_dwordx4 v5, s[12:15], s39 offen lds")
        k.e("s_add_u32 s37, s37, 128")
        k.e(f"s_add_u32 s38, s38, {64*2688}")
        if ROT & 4:
            k.e("s_add_u32 s47, s47, 1")
            k.e("s_cmp_eq_u32 s47, 7")
            k.e(f"s_cselect_b32 s48, {7*128}, 0")
            k.e(f"s_cselect_b32 s49, {7*64*2688}, 0")
            k.e("s_sub_u32 s37, s37, s48")
            k.e("s_sub_u32 s38, s38, s49")

    K1P = int(os.environ.get("K1P", "2"))
    K1N = int(os.environ.get("K1N", "1"))
    K1R = int(os.environ.get("K1R", "3"))
    K1C = int(os.environ.get("K1C", "12"))
    for sl in range(K1P):
        issue(sl)
    k.stamp()
    k.e("v_bfe_u32 v9, v1, 1, 3")
    k.e("v_xor_b32 v9, v9, v8")
    k.e("v_lshlrev_b32 v9, 4, v9")
    k.e("v_lshl_add_u32 v9, v12, 7, v9")
    k.e("s_lshl_b32 s40, s3, 12")
    k.e("v_add_u32 v9, s40, v9")
    for grp in range(3):
        for ks in range(4):
            r = 16 + 4 * grp + ks
            k.e(f"v_xor_b32 v{r}, {ks<<5}, v9")
            if grp:
                k.e(f"v_add_u32 v{r}, {2*grp*SLOT}, v{r}")
    k.e("v_lshlrev_b32 v10, 9, v8")
    k.e("v_bfe_u32 v11, v1, 2, 2")
    k.e("v_lshl_add_u32 v10, v11, 6, v10")
    k.e("v_bfe_u32 v11, v1, 4, 1")
    k.e("v_lshl_add_u32 v10, v11, 5, v10")
    k.e("v_and_b32 v11, 3, v1")
    k.e("v_lshl_add_u32 v28, v11, 3, v10")
    k.e(f"v_add_u32 v29, {2*SLOT}, v28")
    k.e(f"v_add_u32 v30, {4*SLOT}, v28")
    if K1G == 3:
        k.e("v_and_b32 v10, 19, v1")
        k.e("v_cmp_eq_u32 vcc, 19, v10")
        k.e("v_mov_b32 v11, 12288")
        k.e("v_cndmask_b32 v56, v28, v11, vcc")
        k.e(f"v_add_u32 v57, {2*SLOT}, v56")
        k.e(f"v_add_u32 v58, {4*SLOT}, v56")
    for r in range(32, 52):
        k.e(f"v_mov_b32 v{r}, 0")
    k.e("s_mov_b32 s46, 0x3f803f80")
    for r in range(52, 56):
        k.e(f"v_mov_b32 v{r}, s46")

    def reads(sl):
        fr = FR[sl & 1]
        s_ = sl % R
        grp, o = s_ >> 1, (s_ & 1) * SLOT
        for ks in range(4):
            k.e(f"ds_read_b128 {vr(fr+16*ks,4)}, v{16+4*grp+ks} offset:{o}")
            for sg in range(3):
                for h in range(2):
                    r0 = fr + 16 * ks + 4 + 4 * sg + 2 * h
                    ar = 56 + grp if (K1G == 3 and sg == 0) else 28 + grp
                    k.e(f"ds_read_b64_tr_b16 v[{r0}:{r0+1}], v{ar} offset:{o+16384+4096*sg+1024*ks+256*h}")

    def mfm(sl, stat=True):
        fr = FR[sl & 1]
        for ks in range(4):
            a = fr + 16 * ks
            c0 = (sl == 0 and ks == 0)
            k.mfma(ACC, a + 4, a, "0" if c0 else ACC)
            k.mfma(ACC + 16, a + 8, a, "0" if c0 else ACC + 16)
            k.mfma(ACC + 32, a, a + 12, "0" if c0 else ACC + 32)
            if K1G in (1, 2) and stat:
                stm(sl, ks)

    def stm(sl, ks):
        a = FR[sl & 1] + 16 * ks
        c0 = (sl == 0 and ks == 0)
        if K1G == 1:
            k.e(f"v_mfma_f32_32x32x16_bf16 a[0:15], v[52:55], v[{a}:{a+3}], " + ("0" if c0 else "a[0:15]"))
        k.e(f"v_mfma_f32_32x32x16_bf16 a[16:31], v[{a}:{a+3}], v[{a}:{a+3}], " + ("0" if c0 else "a[16:31]"))

    def dots(sl):
        if K1G == 1:
            return
        fr = FR[sl & 1]
        for ks in range(4):
            a = fr + 16 * ks
            for j in range(4):
                if K1G != 3:
                    k.e(f"v_dot2_f32_bf16 v{32+j}, v{a+j}, s46, v{32+j}")
                if K1G in (0, 3):
                    k.e(f"v_dot2_f32_bf16 v{36+j}, v{a+j}, v{a+j}, v{36+j}")

    def csum(sl):
        fr = FR[sl & 1]
        done = k.newlab("csd")
        for w in range(4):
            nx = k.newlab("cs")
            if w < 3:
                k.e(f"s_cmp_eq_u32 s3, {w}")
                k.e(f"s_cbranch_scc0 {nx}")
            for j in range(12):
                k.e(f"v_dot2_f32_bf16 v{40+j}, v{fr+16*w+4+j}, s46, v{40+j}")
            if w < 3:
                k.e(f"s_branch {done}")
                k.lab(nx)
        k.lab(done)

    issued = K1P
    for sl in range(NSL):
        pend = issued - 1 - sl
        k.e(f"s_waitcnt vmcnt({7*pend}) lgkmcnt(0)")
        k.e("s_barrier")
        k.stamp()
        P = []
        for _ in range(K1N):
            if issued < min(NSL, sl + R):
                P += pieces(cap(k, issue, issued))
                issued += 1
        Rd = cap(k, reads, sl)
        if sl == 0:
            k.L += Rd
            for p in P:
                k.L += p
        else:
            M = [l for l in cap(k, mfm, sl - 1) if l is not None]
            Dd = cap(k, dots, sl - 1)
            assert len(M) == (12, 20, 16, 12)[K1G], M
            ri = di = 0
            for n in range(len(M)):
                k.L.append(M[n])
                per = (len(P) + 11) // 12
                for p in P[n * per:(n + 1) * per]:
                    k.L += p
                c = (3 if n < 4 else 2) if K1R == 0 else K1R
                k.L += Rd[ri:ri + c]
                ri += c
                c = (2 if n < 8 else 4) if K1R == 0 else (0 if n < 4 else 4)
                if K1G == 2:
                    c = 1
                if K1G == 3:
                    c = 0 if n < 4 else 2
                k.L += Dd[di:di + c]
                di += c
                if K1G in (1, 2) and n == K1C:
                    csum(sl - 1)
            assert ri >= 28 and di >= len(Dd)
            if K1G in (0, 3):
                csum(sl - 1)
    k.e("s_waitcnt lgkmcnt(0)")
    Ml = [l for l in cap(k, mfm, NSL - 1, False) if l is not None]
    if K1G == 3:
        k.L += Ml[0::3]
        Ml = [m for i, m in enumerate(Ml) if i % 3]
    dots(NSL - 1)
    if K1G in (1, 2):
        for ks in range(4):
            stm(NSL - 1, ks)
    csum(NSL - 1)
    n_e0 = len(k.L)
    if K1G == 3:
        k.e("v_cmp_le_u32 vcc, 32, v1")
        k.e("v_add_f32 v36, v36, v37")
        k.e("v_add_f32 v38, v38, v39")
        k.e(f"v_cndmask_b32 v32, 0, v{ACC+12}, vcc")
        k.e("v_add_f32 v36, v36, v38")
    if K1G in (1, 2):
        k.nop(32)
        if K1G == 1:
            k.e("v_accvgpr_read_b32 v32, a0")
        else:
            k.e("v_add_f32 v32, v32, v33")
            k.e("v_add_f32 v34, v34, v35")
            k.e("v_add_f32 v32, v32, v34")
        for r in range(16):
            k.e(f"v_accvgpr_read_b32 v{160+r}, a{16+r}")
        k.e("v_cmp_gt_u32 vcc, 32, v1")
        k.e("v_and_b32 v13, 1, v1")
        k.e("s_nop 1")
        if K1G == 1:
            k.e("v_cndmask_b32 v32, 0, v32, vcc")
        k.e("v_cmp_eq_u32 vcc, 1, v13")
        k.e("v_and_b32 v13, 2, v1")
        k.e("v_cmp_eq_u32 s[38:39], 2, v13")
        k.e("v_and_b32 v13, 8, v1")
        k.e("v_cmp_eq_u32 s[40:41], 8, v13")
        for r in range(8):
            k.e(f"v_cndmask_b32 v{160+2*r}, v{160+2*r}, v{161+2*r}, vcc")
        k.e("v_and_b32 v13, 16, v1")
        k.e("v_cmp_eq_u32 vcc, 16, v13")
        for r in range(4):
            k.e(f"v_cndmask_b32 v{160+4*r}, v{160+4*r}, v{162+4*r}, s[38:39]")
        k.e("v_bfe_u32 v13, v1, 2, 1")
        k.e("v_cmp_eq_u32 s[38:39], v13, v8")
        for r in range(2):
            k.e(f"v_cndmask_b32 v{160+8*r}, v{160+8*r}, v{164+8*r}, s[40:41]")
        k.e("s_nop 0")
        k.e("v_cndmask_b32 v160, v160, v168, vcc")
        k.e("v_cndmask_b32 v36, 0, v160, s[38:39]")
    k.stamp()
    k.e("s_nop 1")
    if not K1G:
        k.e("v_add_f32 v32, v32, v33")
        k.e("v_add_f32 v34, v34, v35")
        k.e("v_add_f32 v36, v36, v37")
        k.e("v_add_f32 v38, v38, v39")
        k.e("v_add_f32 v32, v32, v34")
        k.e("v_add_f32 v36, v36, v38")
    for t in range(3):
        k.e(f"v_add_f32 v{40+4*t}, v{40+4*t}, v{41+4*t}")
        k.e(f"v_add_f32 v{42+4*t}, v{42+4*t}, v{43+4*t}")
        k.e(f"v_add_f32 v{40+4*t}, v{40+4*t}, v{42+4*t}")
    k.e("v_mov_b32 v33, v32")
    k.e("v_mov_b32 v37, v36")
    k.e("s_lshl_b32 s40, s3, 3")
    k.e(f"s_add_u32 s40, s40, {SCR}")
    k.e("v_lshlrev_b32 v13, 5, v12")
    k.e("v_lshl_add_u32 v13, v8, 2, v13")
    k.e("v_add_u32 v13, s40, v13")
    for t in range(3):
        k.e(f"ds_write_b32 v13, v{40+4*t} offset:{1024*t}")
    k.e("v_permlane32_swap_b32 v32, v33")
    k.e("v_permlane32_swap_b32 v36, v37")
    k.e("s_nop 1")
    k.e("v_add_f32 v32, v32, v33")
    k.e("v_add_f32 v36, v36, v37")
    k.e(f"s_mov_b32 s40, {hex(f2u(1.0/448))}")
    k.e("v_mul_f32 v32, s40, v32")
    k.e("v_mul_f32 v36, s40, v36")
    k.e("v_fma_f32 v36, -v32, v32, v36")
    k.e("v_max_f32 v36, 0, v36")
    k.e(f"v_add_f32 v36, {hex(f2u(1e-5))}, v36")
    k.e("v_rsq_f32 v33, v36")
    k.e("s_nop 0")
    k.e("v_mov_b32 v34, v32")
    k.e("v_mov_b32 v35, v33")
    k.e("s_lshl_b32 s40, s3, 8")
    k.e(f"s_add_u32 s40, s40, {SCR+4096}")
    k.e("v_lshl_add_u32 v14, v12, 3, s40")
    k.e("ds_write_b64 v14, v[34:35]")
    k.e("s_waitcnt lgkmcnt(0)")
    k.e("s_barrier")
    k.e("v_lshlrev_b32 v13, 5, v1")
    k.e(f"v_add_u32 v13, {SCR}, v13")
    k.e("ds_read_b128 v[40:43], v13")
    k.e("ds_read_b128 v[44:47], v13 offset:16")
    k.e("v_lshlrev_b32 v13, 5, v12")
    k.e(f"v_add_u32 v13, {SCR+2048}, v13")
    k.e("ds_read_b128 v[48:51], v13")
    k.e("ds_read_b128 v[52:55], v13 offset:16")
    k.e("v_lshlrev_b32 v14, 5, v8")
    k.e("v_add_u32 v14, s40, v14")
    for g in range(4):
        k.e(f"ds_read_b128 {vr(128+8*g,4)}, v14 offset:{64*g}")
        k.e(f"ds_read_b128 {vr(132+8*g,4)}, v14 offset:{64*g+16}")
    k.e("s_waitcnt lgkmcnt(8)")
    for b in (40, 48):
        k.e(f"v_add_f32 v{b}, v{b}, v{b+1}")
        k.e(f"v_add_f32 v{b+2}, v{b+2}, v{b+3}")
        k.e(f"v_add_f32 v{b+4}, v{b+4}, v{b+5}")
        k.e(f"v_add_f32 v{b+6}, v{b+6}, v{b+7}")
        k.e(f"v_add_f32 v{b}, v{b}, v{b+2}")
        k.e(f"v_add_f32 v{b+4}, v{b+4}, v{b+6}")
        k.e(f"v_add_f32 v{b}, v{b}, v{b+4}")
    k.e("s_lshl_b32 s41, s3, 8")
    k.e(f"s_add_u32 s41, s41, {SCR+3072}")
    k.e("v_lshlrev_b32 v13, 2, v1")
    k.e("v_add_u32 v13, s41, v13")
    k.e("ds_write_b32 v13, v40")
    k.e("v_lshlrev_b32 v13, 4, v8")
    k.e("v_add_u32 v13, s41, v13")
    k.e("s_waitcnt lgkmcnt(0)")
    for u in range(2):
        for g in range(4):
            k.e(f"ds_read_b128 {vr(160+16*u+4*g,4)}, v13 offset:{128*u+32*g}")
    k.e("s_lshl_b32 s34, s30, 7")
    k.e("s_lshl_b32 s35, s3, 5")
    k.e("s_add_u32 s34, s34, s35")
    k.e("s_lshl_b32 s36, s34, 6")
    k.e("v_lshlrev_b32 v23, 4, v1")
    k.e("v_add_u32 v23, s36, v23")
    k.e(f"v_mul_f32 v34, {hex(f2u(DH ** -0.5 * math.log2(math.e)))}, v33")
    E = k.L[n_e0:]
    del k.L[n_e0:]
    M = Ml
    K1E = int(os.environ.get("K1E", "7" if K1G == 3 else "5"))
    ei = 0
    for n in range(len(M)):
        k.L.append(M[n])
        k.L += E[ei:ei + K1E]
        ei += K1E
    k.L += E[ei:]
    k.nop(16)
    k.e("s_waitcnt lgkmcnt(0)")
    for c in range(2):
        a = ACC + 16 * c
        rs = "v34" if c == 0 else "v33"
        for r in range(16):
            k.e(f"v_fma_f32 v{a+r}, -v32, v{160+16*c+r}, v{a+r}")
            k.e(f"v_mul_f32 v{a+r}, {rs}, v{a+r}")
        k.e("v_cmp_gt_u32 vcc, 32, v1")
        k.e("s_nop 1")
        for r in range(12, 16):
            pad = "1.0" if (c == 1 and r == 12) else "0"
            k.e(f"v_cndmask_b32 v{a+r}, {pad}, v{a+r}, vcc")
        for g in range(4):
            k.e(f"v_cvt_pk_bf16_f32 v{96+8*c+2*g}, v{a+4*g}, v{a+4*g+1}")
            k.e(f"v_cvt_pk_bf16_f32 v{97+8*c+2*g}, v{a+4*g+2}, v{a+4*g+3}")
        k.e(f"s_mov_b32 s37, {hex(c*0x200000)}")
        for g in range(2):
            k.e(f"buffer_store_dwordx4 v[{96+8*c+4*g}:{99+8*c+4*g}], v23, s[16:19], s37 offen offset:{1024*g}")
    a = ACC + 32
    for r in range(16):
        g, j = r >> 2, r & 3
        mreg = 128 + 8 * g + 2 * j
        k.e(f"v_fma_f32 v{a+r}, -v{mreg}, v48, v{a+r}")
        k.e(f"v_mul_f32 v{a+r}, v{mreg+1}, v{a+r}")
    k.e("v_cmp_gt_u32 vcc, 28, v12")
    k.e("v_cmp_eq_u32 s[38:39], 28, v12")
    k.e("v_cndmask_b32 v27, 0, 1.0, s[38:39]")
    k.e("s_nop 1")
    for r in range(16):
        k.e(f"v_cndmask_b32 v{a+r}, v27, v{a+r}, vcc")
    for r in range(8):
        k.e(f"v_cvt_pk_bf16_f32 v{112+r}, v{a+2*r}, v{a+2*r+1}")
    k.e("s_mov_b32 s37, 0x400000")
    for g_ in range(2):
        k.e(f"buffer_store_dwordx4 v[{112+4*g_}:{115+4*g_}], v23, s[16:19], s37 offen offset:{1024*g_}")
    finish(k)
    return k, 256, (R * SLOT if K1G == 3 else SCR + 4096 + 1024), 256


def gen_k2():
    G.OFRAG = True
    k = G.gen_k2()
    return k, 256, 4 * 32768 + 64, 512


def build():
    ks = [gen_k1(), gen_k2(), gen_sk(3), gen_k4(), gen_sk(5)]
    out = [HEADER.rstrip("\n")]
    for k, g, lds, blk in ks:
        out.append(f"; @launch kernel={k.name} grid=({g},1,1) block=({blk},1,1) lds={lds}")
    out.append('.amdgcn_target "amdgcn-amd-amdhsa--gfx950"')
    out.append(".text")
    for k, g, lds, blk in ks:
        out.append(f".globl {k.name}")
        out.append(".p2align 8")
        out.append(f".type {k.name},@function")
        out.append(f"{k.name}:")
        idx = [kk[0] for kk in ks].index(k)
        L = [l for l in k.L if l is not None]
        if SC1 & (1 << idx):
            end = len(L)
            for n, l in enumerate(L):
                if l.strip().startswith(k.name + "_end"):
                    end = n
            nst = 0
            L2 = []
            for n, l in enumerate(L):
                if "buffer_store" in l and "s[56:59]" not in l and "s[92:95]" not in l:
                    l = l + " " + SCF
                    nst += 1
                L2.append(l)
            L = L2
            print("sc1 stores in", k.name, nst)
        out += L
    out.append('.section .rodata,"a"')
    for k, g, lds, blk in ks:
        out.append(".p2align 6")
        out.append(f".amdhsa_kernel {k.name}")
        out.append("  .amdhsa_next_free_vgpr " + ("512" if k.name.startswith("k1") else "256"))
        out.append("  .amdhsa_next_free_sgpr 102")
        out.append("  .amdhsa_accum_offset 256")
        out.append("  .amdhsa_group_segment_fixed_size 0")
        out.append("  .amdhsa_kernarg_size 80")
        out.append("  .amdhsa_user_sgpr_count 2")
        out.append("  .amdhsa_user_sgpr_kernarg_segment_ptr 1")
        out.append("  .amdhsa_system_sgpr_workgroup_id_x 1")
        out.append(".end_amdhsa_kernel")
    return "\n".join(out) + "\n"


if __name__ == "__main__":
    txt = build()
    open(OUT or ("cdna_kernels/" + NAME + ".s"), "w").write(txt)
    print("written", len(txt))
```
